```python
import torch

def _softmax(x, axis=-1):
    return torch.softmax(x, dim=axis)
def _gelu(x):
    return torch.nn.functional.gelu(x, approximate="tanh")
def _silu(x):
    return torch.nn.functional.silu(x)
def _sigmoid(x):
    return torch.sigmoid(x)
def _layernorm(x, axis=-1, eps=1e-5):
    m = x.mean(dim=axis, keepdim=True)
    v = x.var(dim=axis, keepdim=True, unbiased=False)
    return (x - m) / torch.sqrt(v + eps)
def _scatter_add(tgt, idx, src, axis=0):
    return tgt.clone().index_add_(axis, idx, src)
def _segment_sum(src, seg, n):
    out = torch.zeros((n,) + src.shape[1:], dtype=src.dtype)
    return out.index_add_(0, seg, src)
def _pad(x, pw):
    flat = tuple(v for pair in reversed(pw) for v in pair)
    return torch.nn.functional.pad(x, flat)

kernel_name = 'standalone__weight_only_int_omniquant__prompt'

def setup_inputs():

    _w = (lambda a: (lambda t: t.to(torch.bfloat16) if t.is_floating_point() else t)(torch.as_tensor(a)))
    B, S, D, F = 1, 2048, 1024, 3584
    bits = 4
    G = -1 if -1 > 0 else D
    D = (D // G) * G
    ng = D // G
    qmax = (1 << bits) - 1
    qw = torch.randint(0, qmax + 1, (D, F)).to(torch.int32)
    scales = (torch.abs((lambda *s: torch.randn(*s, dtype=torch.bfloat16) * 0.05)(ng, F)) * 0.05 + 0.01).to(float)
    zeros = torch.randint(0, qmax + 1, (ng, F)).to(float)
    act_scale = (torch.abs((lambda *s: torch.randn(*s, dtype=torch.bfloat16) * 0.05)(D)) * 0.5 + 0.5).to(float)
    return {
        "x": _w((lambda *s: torch.randn(*s, dtype=torch.bfloat16) * 0.05)(B, S, D)),
        "qw": _w(qw),
        "scales": _w(scales),
        "zeros": _w(zeros),
        "act_scale": _w(act_scale),
    }

def reference(x, qw, scales, zeros, act_scale):
    B, S, D = x.shape
    ng, F = scales.shape
    G = D // ng
    s = (lambda x, n, axis: torch.repeat_interleave(x, n, dim=axis))(scales, G, axis=0)
    z = (lambda x, n, axis: torch.repeat_interleave(x, n, dim=axis))(zeros, G, axis=0)
    w = ((lambda x, dt: x.to(dt))(qw, x.dtype) - z) * s
    xs = x * (lambda x, dt: x.to(dt))(act_scale, x.dtype)
    return torch.einsum("bsd,df->bsf", xs, w)
```

```python
import sys, argparse
KN = "standalone__weight_only_int_omniquant__prompt_kernel"
M, K, N = 2048, 1024, 3584
QROW = N*4
OROW = N*2
NST = 16
XSLOT = 32768
WSLOT = 14336

class Cfg:
    def __init__(s, **kw):
        s.NX = 4
        s.RW = 2
        s.ndma0 = 16
        s.stamps = False
        s.xcd = "8x4"
        s.prio = 1
        s.pprio = 0
        s.codepf = True
        s.loop = True
        s.__dict__.update(kw)
        s.WBASE = s.NX*XSLOT
        s.ABASE = s.WBASE + 2*WSLOT
        s.LDS = s.ABASE + 4096

class Emit:
    def __init__(s): s.L=[]; s.vm=[]
    def __call__(s, x): s.L.append(x)
    def vmem(s, x, tag): s.L.append(x); s.vm.append(tag)
    def waitvm(s, tag, extra=""):
        idx=[i for i,t in enumerate(s.vm) if t==tag]
        n=(len(s.vm)-1-idx[-1]) if idx else 63
        n=min(n,63)
        s.L.append(f"s_waitcnt vmcnt({n}){extra}")
        return n

def stamp(E, cfg, i):
    if cfg.stamps: E(f"s_memtime s[{60+2*i}:{61+2*i}]")

def header(cfg):
    return f"""; Fused weight-only-int4 dequant + bf16 GEMM, out[2048,3584] = (x*act) @ ((qw-z)*s), one 256x112 tile per workgroup.
; @launch grid=(256,1,1) block=(512,1,1) lds={cfg.LDS}
.amdgcn_target "amdgcn-amd-amdhsa--gfx950"
.text
.globl {KN}
.p2align 8
.type {KN},@function
{KN}:
"""
def footer(cfg):
    return f"""
.section .rodata,"a"
.p2align 6
.amdhsa_kernel {KN}
  .amdhsa_next_free_vgpr 256
  .amdhsa_next_free_sgpr 96
  .amdhsa_accum_offset 256
  .amdhsa_group_segment_fixed_size 0
  .amdhsa_kernarg_size 64
  .amdhsa_user_sgpr_count 2
  .amdhsa_user_sgpr_kernarg_segment_ptr 1
  .amdhsa_system_sgpr_workgroup_id_x 1
  .amdhsa_float_denorm_mode_32 3
.end_amdhsa_kernel
"""

def common_prologue(E, cfg):
    if cfg.stamps:
        E("s_memrealtime s[76:77]")
    stamp(E,cfg,0)
    E("s_cmp_ge_u32 s2, 256"); E("s_cbranch_scc1 L_exit")
    E("s_load_dwordx4 s[4:7], s[0:1], 0")
    E("s_load_dwordx4 s[8:11], s[0:1], 16")
    E("s_load_dwordx4 s[12:15], s[0:1], 32")
    if cfg.stamps: E("s_load_dwordx2 s[58:59], s[0:1], 56")
    E("v_lshrrev_b32 v1, 6, v0")
    E("v_and_b32 v2, 63, v0")
    E("v_readfirstlane_b32 s28, v1")
    if cfg.xcd=="8x4":
        E("s_bfe_u32 s29, s2, 0x30003")
        E("s_and_b32 s30, s2, 7"); E("s_lshl_b32 s30, s30, 2"); E("s_lshr_b32 s31, s2, 6"); E("s_add_u32 s30, s30, s31")
    elif cfg.xcd=="4x8":
        E("s_bfe_u32 s29, s2, 0x20003"); E("s_and_b32 s31, s2, 1"); E("s_lshl_b32 s31, s31, 2"); E("s_add_u32 s29, s29, s31")
        E("s_lshr_b32 s30, s2, 5"); E("s_bfe_u32 s31, s2, 0x20001"); E("s_lshl_b32 s31, s31, 3"); E("s_add_u32 s30, s30, s31")
    E("v_and_b32 v3, 15, v0")
    E("v_bfe_u32 v1, v0, 4, 2")
    E("s_lshl_b32 s32, s29, 19")
    E("s_mul_i32 s33, s30, 448")
    E(f"s_mul_i32 s34, s29, {256*OROW}")
    E("s_mul_i32 s35, s30, 224")
    E("s_add_u32 s34, s34, s35")
    E("s_cmp_ge_u32 s28, 4")
    E("s_cbranch_scc0 L_consumer")

def build_srd(E, base, ptr, off, size):
    E(f"s_add_u32 s{base}, s{ptr}, s{off}"); E(f"s_addc_u32 s{base+1}, s{ptr+1}, 0")
    E(f"s_sub_u32 s{base+2}, {size}, s{off}"); E(f"s_mov_b32 s{base+3}, 0x20000")

def producer(E, cfg, h):
    nc = 4 if h==0 else 3
    setsz = 8*nc
    RAW0 = 64
    OUT, AV, SV, ZV = 32, 48, 16, 20
    vq, vxe, vxo, vw0, vw1, va = 4,5,6,7,8,9
    ndma = cfg.ndma0 if h==0 else 16-cfg.ndma0
    def raw(st,e,j): return RAW0 + (st%cfg.RW)*setsz + e*nc + j
    E("s_bfe_u32 s31, s28, 0x10001")
    E("s_lshl_b32 s36, s31, 5")
    E("v_lshl_add_u32 v10, v1, 3, s36")
    E(f"v_mul_u32_u24 v10, {QROW}, v10")
    if h==0: E("v_lshl_add_u32 v4, v3, 4, v10")
    else:
        E("v_lshl_add_u32 v4, v3, 2, v10"); E("v_add_u32 v4, 256, v4")
    E("v_lshrrev_b32 v10, 3, v2"); E("v_and_b32 v11, 7, v2"); E("v_xor_b32 v11, v11, v1")
    E("v_lshlrev_b32 v11, 4, v11"); E("v_lshl_add_u32 v5, v10, 11, v11"); E("v_xor_b32 v6, 64, v5")
    E("s_mul_i32 s37, s30, 224")
    if h==0: E("v_lshl_add_u32 v10, v3, 3, s37")
    else:
        E("v_lshl_add_u32 v10, v3, 1, s37"); E("v_add_u32 v10, 128, v10")
    q0 = (0 if h==0 else cfg.ndma0)
    E("s_lshl_b32 s39, s31, 14"); E(f"s_add_u32 s39, s39, {q0*1024}")
    E("s_lshl_b32 s41, s31, 18"); E(f"s_add_u32 s41, s41, {q0*16384}")
    E("s_mov_b32 s36, 0")
    E("s_waitcnt lgkmcnt(0)")
    build_srd(E,20,6,33,K*QROW)
    build_srd(E,16,4,32,M*K*2)
    def wload(st,e):
        if h==0:
            r=raw(st,e,0); E.vmem(f"buffer_load_dwordx4 v[{r}:{r+3}], v{vq}, s[20:23], s36 offen", ("W",st))
        else:
            for j in range(3):
                E.vmem(f"buffer_load_dword v{raw(st,e,j)}, v{vq}, s[20:23], s36 offen offset:{64*j}", ("W",st))
        E(f"s_add_u32 s36, s36, {QROW if e<7 else QROW*57}")
    def xdma(st,i):
        if i%4==0:
            if i==0:
                E(f"s_add_u32 s40, s41, {st*128}") if not cfg_inloop[0] else E("s_mov_b32 s40, s41")
            E(f"s_add_u32 m0, s39, {(st%cfg.NX)*XSLOT + i*1024}")
            E("s_nop 0")
        q=q0+i
        v = vxe if q%2==0 else vxo
        E.vmem(f"buffer_load_dwordx4 v{v}, s[16:19], s40 offen offset:{(i%4)*1024} lds", ("X",st))
        if i<ndma-1:
            E(f"s_add_u32 s40, s40, {16384-1024 if i%4<3 else 16384+3072}")
    cfg_inloop=[False]
    for e in range(8): wload(0,e)
    if h==0:
        E.vmem("global_load_dwordx2 v[24:25], v10, s[8:9]", "SZ")
        E.vmem("global_load_dwordx2 v[26:27], v10, s[10:11]", "SZ")
    else:
        for j in range(3): E.vmem(f"global_load_ushort v{24+j}, v10, s[8:9] offset:{32*j}", "SZ")
        for j in range(3): E.vmem(f"global_load_ushort v{28+j}, v10, s[10:11] offset:{32*j}", "SZ")
    for st in range(max(cfg.RW, cfg.NX-1)):
        if st<cfg.NX-1:
            for i in range(ndma): xdma(st,i)
        if st+1<cfg.RW:
            for e in range(8): wload(st+1,e)
    E("s_mul_i32 s42, s31, 7168"); E(f"s_add_u32 s42, s42, {cfg.WBASE}")
    E("v_lshl_add_u32 v7, v2, 4, s42")
    if h==1:
        E("v_and_b32 v11, 1, v3"); E("v_lshrrev_b32 v12, 1, v3"); E("v_lshl_add_u32 v12, v1, 4, v12")
        E("v_lshlrev_b32 v13, 2, v11"); E("v_xor_b32 v12, v12, v13"); E("v_lshlrev_b32 v12, 4, v12")
        E("v_lshl_add_u32 v12, v11, 10, v12"); E("v_add_u32 v8, s42, v12")
    E("s_lshl_b32 s43, s31, 7"); E(f"s_add_u32 s43, s43, {cfg.ABASE}")
    E("v_lshl_add_u32 v9, v1, 5, s43")
    stamp(E,cfg,1)
    E.waitvm("SZ")
    if h==0:
        for j in range(4):
            for (src,dst) in ((24,SV),(26,ZV)):
                if j%2==0: E(f"v_lshlrev_b32 v{dst+j}, 16, v{src+j//2}")
                else: E(f"v_and_b32 v{dst+j}, 0xffff0000, v{src+j//2}")
    else:
        for j in range(3):
            E(f"v_lshlrev_b32 v{SV+j}, 16, v{24+j}"); E(f"v_lshlrev_b32 v{ZV+j}, 16, v{28+j}")
    for j in range(nc):
        E(f"v_mul_f32 v{ZV+j}, v{ZV+j}, v{SV+j}")
        E(f"v_mul_f32 v{SV+j}, 0x71800000, v{SV+j}")
        E(f"v_mul_f32 v{ZV+j}, 0x27000000, v{ZV+j}")
    E("s_barrier")
    def phase(j, dyn):
        st=j+1
        do_x = (j>=0) and (j+cfg.NX-1 < NST)
        do_w = (st+cfg.RW < NST)
        xs = j+cfg.NX-1
        E(f"ds_read_b128 v[{AV}:{AV+3}], v{va} offset:{0 if dyn else st*256}")
        E(f"ds_read_b128 v[{AV+4}:{AV+7}], v{va} offset:{16 if dyn else st*256+16}")
        if dyn: E(f"v_add_u32 v{va}, 256, v{va}")
        dq = list(range(ndma)) if do_x else []
        per = (len(dq)+4)//5
        def dm(n):
            for _ in range(n):
                if dq: xdma(xs,dq.pop(0))
        dm(per)
        E.waitvm(("W",st), " lgkmcnt(0)")
        for p in range(4):
            e0,e1=2*p,2*p+1
            for jj in range(nc):
                for e in (e0,e1):
                    r=raw(st,e,jj); E(f"v_fma_f32 v{r}, v{r}, v{SV+jj}, -v{ZV+jj}")
            for jj in range(nc):
                for e in (e0,e1):
                    r=raw(st,e,jj); E(f"v_mul_f32 v{r}, v{r}, v{AV+e}")
            for jj in range(nc):
                E(f"v_cvt_pk_bf16_f32 v{OUT+4*jj+p}, v{raw(st,e0,jj)}, v{raw(st,e1,jj)}")
            if do_w:
                wload(st+cfg.RW,e0); wload(st+cfg.RW,e1)
            dm(per)
        dm(len(dq))
        sl=(st%2)*WSLOT
        if h==0:
            for jj in range(4): E(f"ds_write_b128 v{vw0}, v[{OUT+4*jj}:{OUT+4*jj+3}] offset:{sl+jj*1024}")
        else:
            E(f"ds_write_b128 v{vw1}, v[{OUT}:{OUT+3}] offset:{sl+4096}")
            E(f"ds_write_b128 v{vw1}, v[{OUT+4}:{OUT+7}] offset:{sl+4096+128}")
            E(f"ds_write_b128 v{vw0}, v[{OUT+8}:{OUT+11}] offset:{sl+6144}")
        if dyn and do_x: E("s_add_u32 s41, s41, 128")
        E.waitvm(("X",st), " lgkmcnt(0)")
        E("s_barrier")
    U = 4
    last_full = NST - max(cfg.NX-1, cfg.RW+1) - 1
    if cfg.loop:
        phase(-1,False)
        j0=0
        n=(last_full - j0 + 1)//U
        if n>=2:
            E(f"s_add_u32 s41, s41, {(j0+cfg.NX-1)*128}")
            E(f"v_add_u32 v{va}, {(j0+1)*256}, v{va}")
            E(f"s_mov_b32 s44, {n}")
            lab=f"L_p{h}_loop"
            cfg_inloop[0]=True
            start=len(E.L); vm0=list(E.vm)
            for j in range(j0,j0+U): phase(j,True)
            body1=E.L[start:];
            for it in range(1,n):
                mark=len(E.L)
                for j in range(j0+it*U,j0+(it+1)*U): phase(j,True)
                body=E.L[mark:]; del E.L[mark:]
                if it==1: body2=body
                assert body==body2, "loop bodies differ"
            merged=[]
            assert len(body1)==len(body2)
            for a,b in zip(body1,body2):
                if a!=b:
                    assert a.startswith("s_waitcnt vmcnt") and b.startswith("s_waitcnt vmcnt"), (a,b)
                    na=int(a.split("(")[1].split(")")[0]); nb=int(b.split("(")[1].split(")")[0])
                    merged.append(a if na<nb else b)
                else: merged.append(a)
            del E.L[start:]
            E(".p2align 6"); E(lab+":")
            E.L.extend(merged)
            E("s_sub_u32 s44, s44, 1"); E("s_cmp_lg_u32 s44, 0"); E(f"s_cbranch_scc1 {lab}")
            cfg_inloop[0]=False
            jn=j0+n*U
            E(f"s_sub_u32 s41, s41, {(jn+cfg.NX-1)*128}")
            E(f"v_subrev_u32 v{va}, {(jn+1)*256}, v{va}")
        else: jn=0
        for j in range(jn,NST-1): phase(j,False)
    else:
        for j in range(-1,NST-1): phase(j,False)
    finish(E,cfg)

def finish(E,cfg):
    if cfg.stamps:
        stamp(E,cfg,5)
        E("s_memrealtime s[78:79]")
        E("s_waitcnt lgkmcnt(0)")
        E("s_mov_b32 s48, s58"); E("s_mov_b32 s49, s59"); E("s_mov_b32 s50, 0x1000000"); E("s_mov_b32 s51, 0x20000")
        E("s_lshl_b32 s52, s2, 3"); E("s_add_u32 s52, s52, s28"); E("s_lshl_b32 s52, s52, 5")
        E("v_mov_b32 v10, s76"); E("v_mov_b32 v11, s78")
        for i,r in enumerate((62,64,66,68,70)):
            E(f"s_sub_u32 s{r}, s{r}, s60"); E(f"v_mov_b32 v{12+i}, s{r}")
        E("s_getreg_b32 s53, hwreg(HW_REG_HW_ID)"); E("v_mov_b32 v17, s53")
        E("v_mov_b32 v9, s52")
        E("s_mov_b64 exec, 1")
        E("buffer_store_dwordx4 v[10:13], v9, s[48:51], 0 offen")
        E("buffer_store_dwordx4 v[14:17], v9, s[48:51], 0 offen offset:16")
    E("s_endpgm")

def consumer(E,cfg):
    ACC=16; XF=(128,144); WF=(160,188)
    vx0,vx1,vw,vw5=4,5,6,7
    def acc(b,j): return ACC+(b*7+j)*4
    E("L_consumer:")
    E("v_lshlrev_b32 v10, 3, v0")
    E("s_waitcnt lgkmcnt(0)")
    E.vmem("global_load_dwordx2 v[12:13], v10, s[12:13]","A")
    if cfg.codepf:
        E("s_getpc_b64 s[44:45]"); E("L_pc:")
        E(f"s_sub_u32 s44, s44, L_pc-{KN}"); E("s_subb_u32 s45, s45, 0")
        E(f"s_mov_b32 s46, L_codeend-{KN}"); E("s_mov_b32 s47, 0x20000")
        E("v_lshlrev_b32 v11, 6, v0")
        E.vmem("buffer_load_dword v14, v11, s[44:47], 0 offen","PF")
        E("s_movk_i32 s43, 0x4000")
        E.vmem("buffer_load_dword v15, v11, s[44:47], s43 offen","PF")
    build_srd(E,24,14,34,M*OROW)
    E("v_lshrrev_b32 v11, 1, v3"); E("v_xor_b32 v11, v11, v1"); E("v_lshlrev_b32 v11, 4, v11")
    E("s_lshl_b32 s36, s28, 13")
    E("v_lshl_add_u32 v11, v3, 7, v11"); E("v_add_u32 v4, s36, v11"); E("v_xor_b32 v5, 64, v4")
    E(f"v_lshlrev_b32 v6, 4, v2"); E(f"v_add_u32 v6, {cfg.WBASE}, v6"); E("v_xor_b32 v7, 64, v6")
    E(f"v_lshlrev_b32 v10, 4, v0"); E(f"v_add_u32 v10, {cfg.ABASE}, v10")
    E.waitvm("A")
    E("v_lshlrev_b32 v16, 16, v12"); E("v_and_b32 v17, 0xffff0000, v12"); E("v_lshlrev_b32 v18, 16, v13"); E("v_and_b32 v19, 0xffff0000, v13")
    for i in range(4): E(f"v_mul_f32 v{16+i}, 0x58000000, v{16+i}")
    E("ds_write_b128 v10, v[16:19]")
    E("s_lshl_b32 s36, s28, 6"); E("v_lshl_add_u32 v11, v1, 2, s36"); E(f"v_mul_u32_u24 v11, {OROW}, v11")
    E("v_lshl_add_u32 v8, v3, 3, v11"); E("v_lshl_add_u32 v9, v3, 2, v11"); E("v_lshl_add_u32 v10, v3, 1, v11")
    if cfg.prio: E(f"s_setprio {cfg.prio}")
    stamp(E,cfg,1)
    E("s_waitcnt lgkmcnt(0)")
    E("s_barrier")
    E("s_barrier")
    stamp(E,cfg,2)
    def reads(j,t,dyn):
        s=t
        xo = 0 if dyn else None
        R=[]
        va = vx0 if t==0 else vx1
        xr=lambda b: f"ds_read_b128 v[{XF[s]+4*b}:{XF[s]+4*b+3}], v{va} offset:{b*2048}"
        wr=lambda jj: f"ds_read_b128 v[{WF[s]+4*jj}:{WF[s]+4*jj+3}], v{vw5 if jj==5 else vw} offset:{(j%2)*WSLOT+(t*7+jj)*1024}"
        R.append(xr(0))
        for jj in range(7): R.append(wr(jj))
        for b in range(1,4): R.append(xr(b))
        return R
    def mfmas(s,first,inter):
        inter=list(inter); i=0
        for b in range(4):
            for jj in range(7):
                a=acc(b,jj); c = "0" if first else f"v[{a}:{a+3}]"
                E(f"v_mfma_f32_16x16x32_bf16 v[{a}:{a+3}], v[{XF[s]+4*b}:{XF[s]+4*b+3}], v[{WF[s]+4*jj}:{WF[s]+4*jj+3}], {c}")
                if inter: E(inter.pop(0))
        assert not inter
    def bump():
        if cfg.NX in (2,4):
            m=cfg.NX*XSLOT-1
            return [f"v_add_u32 v{vx0}, {XSLOT}, v{vx0}", f"v_and_b32 v{vx0}, {m}, v{vx0}", f"v_xor_b32 v{vx1}, 64, v{vx0}"]
        raise NotImplementedError
    def phase(j):
        if j==0:
            for r in reads(0,0,True): E(r)
        else:
            mfmas(1,False,reads(j,0,True))
        E("s_waitcnt lgkmcnt(0)")
        mfmas(0,j==0,reads(j,1,True)+bump())
        E("s_waitcnt lgkmcnt(0)")
        if j<NST-1: E("s_barrier")
    phase(0)
    if cfg.loop:
        E("s_mov_b32 s44, 7")
        E(".p2align 6"); E("L_c_loop:")
        phase(1); phase(2)
        E("s_sub_u32 s44, s44, 1"); E("s_cmp_lg_u32 s44, 0"); E("s_cbranch_scc1 L_c_loop")
        phase(15)
    else:
        for j in range(1,NST): phase(j)
    mfmas(1,False,[])
    stamp(E,cfg,3)
    E("s_nop 7")
    T=216; ti=0
    E("s_mov_b32 s36, 0")
    for b in range(4):
        for r in range(4):
            t=T+(ti%8)*4; ti+=1
            E(f"v_cvt_pk_bf16_f32 v{t}, v{acc(b,0)+r}, v{acc(b,1)+r}")
            E(f"v_cvt_pk_bf16_f32 v{t+1}, v{acc(b,2)+r}, v{acc(b,3)+r}")
            E(f"v_cvt_pk_bf16_f32 v{t+2}, v{acc(b,4)+r}, v{acc(b,5)+r}")
            E(f"v_cvt_pk_bf16_f32 v{t+3}, v{acc(b,6)+r}, v{acc(b,6)+r}")
            E(f"buffer_store_dwordx2 v[{t}:{t+1}], v8, s[24:27], s36 offen")
            E(f"buffer_store_dword v{t+2}, v9, s[24:27], s36 offen offset:128")
            E(f"buffer_store_short v{t+3}, v10, s[24:27], s36 offen offset:192")
            if not (b==3 and r==3): E(f"s_add_u32 s36, s36, {OROW if r<3 else OROW*13}")
    if cfg.stamps:
        stamp(E,cfg,4); E("s_waitcnt vmcnt(0)")
    finish(E,cfg)

def generate(cfg):
    out=[header(cfg)]
    E=Emit(); common_prologue(E,cfg)
    E("s_bitcmp1_b32 s28, 0"); E("s_cbranch_scc1 L_prod1")
    out+=E.L
    E=Emit(); producer(E,cfg,0); out+=E.L
    E=Emit(); E("L_prod1:"); producer(E,cfg,1); out+=E.L
    E=Emit(); consumer(E,cfg); out+=E.L
    out.append("L_exit:"); out.append("s_endpgm"); out.append("L_codeend:")
    return "\n".join(out)+footer(cfg)

if __name__=="__main__":
    kw={}
    for a in sys.argv[2:]:
        k,v=a.split("="); kw[k]=v if k=="xcd" else int(v)
    open(sys.argv[1],"w").write(generate(Cfg(**kw)))
```

```python
import sys, argparse
KN = "standalone__weight_only_int_omniquant__prompt_kernel"
M, K, N = 2048, 1024, 3584
QROW = N*4
OROW = N*2
NST = 16
XSLOT = 32768
WSLOT = 14336

class Cfg:
    def __init__(s, **kw):
        s.NX = 4
        s.RW = 2
        s.ndma0 = 16
        s.stamps = False
        s.xcd = "8x4"
        s.prio = 1
        s.pprio = 0
        s.codepf = True
        s.loop = True
        s.spin = 0
        s.__dict__.update(kw)
        s.WBASE = s.NX*XSLOT
        s.ABASE = s.WBASE + 2*WSLOT
        s.LDS = s.ABASE + 4096

class Emit:
    def __init__(s): s.L=[]; s.vm=[]
    def __call__(s, x): s.L.append(x)
    def vmem(s, x, tag): s.L.append(x); s.vm.append(tag)
    def waitvm(s, tag, extra=""):
        idx=[i for i,t in enumerate(s.vm) if t==tag]
        n=(len(s.vm)-1-idx[-1]) if idx else 63
        n=min(n,63)
        s.L.append(f"s_waitcnt vmcnt({n}){extra}")
        return n

def stamp(E, cfg, i):
    if cfg.stamps: E(f"s_memtime s[{60+2*i}:{61+2*i}]")

def header(cfg):
    return f"""; Fused weight-only-int4 dequant + bf16 GEMM, out[2048,3584] = (x*act) @ ((qw-z)*s), one 256x112 tile per workgroup.
; @launch grid=(256,1,1) block=(512,1,1) lds={cfg.LDS}
.amdgcn_target "amdgcn-amd-amdhsa--gfx950"
.text
.globl {KN}
.p2align 8
.type {KN},@function
{KN}:
"""
def footer(cfg):
    return f"""
.section .rodata,"a"
.p2align 6
.amdhsa_kernel {KN}
  .amdhsa_next_free_vgpr 256
  .amdhsa_next_free_sgpr 96
  .amdhsa_accum_offset 256
  .amdhsa_group_segment_fixed_size 0
  .amdhsa_kernarg_size 64
  .amdhsa_user_sgpr_count 2
  .amdhsa_user_sgpr_kernarg_segment_ptr 1
  .amdhsa_system_sgpr_workgroup_id_x 1
  .amdhsa_float_denorm_mode_32 3
.end_amdhsa_kernel
"""

def common_prologue(E, cfg):
    if cfg.spin: E("s_memrealtime s[80:81]")
    if cfg.stamps:
        E("s_memrealtime s[76:77]")
    stamp(E,cfg,0)
    E("s_cmp_ge_u32 s2, 256"); E("s_cbranch_scc1 L_exit")
    E("s_load_dwordx4 s[4:7], s[0:1], 0")
    E("s_load_dwordx4 s[8:11], s[0:1], 16")
    E("s_load_dwordx4 s[12:15], s[0:1], 32")
    if cfg.stamps: E("s_load_dwordx2 s[58:59], s[0:1], 56")
    E("v_lshrrev_b32 v1, 6, v0")
    E("v_and_b32 v2, 63, v0")
    E("v_readfirstlane_b32 s28, v1")
    if cfg.xcd=="8x4":
        E("s_bfe_u32 s29, s2, 0x30003")
        E("s_and_b32 s30, s2, 7"); E("s_lshl_b32 s30, s30, 2"); E("s_lshr_b32 s31, s2, 6"); E("s_add_u32 s30, s30, s31")
    elif cfg.xcd=="4x8":
        E("s_bfe_u32 s29, s2, 0x20003"); E("s_and_b32 s31, s2, 1"); E("s_lshl_b32 s31, s31, 2"); E("s_add_u32 s29, s29, s31")
        E("s_lshr_b32 s30, s2, 5"); E("s_bfe_u32 s31, s2, 0x20001"); E("s_lshl_b32 s31, s31, 3"); E("s_add_u32 s30, s30, s31")
    E("v_and_b32 v3, 15, v0")
    E("v_bfe_u32 v1, v0, 4, 2")
    E("s_lshl_b32 s32, s29, 19")
    E("s_mul_i32 s33, s30, 448")
    E(f"s_mul_i32 s34, s29, {256*OROW}")
    E("s_mul_i32 s35, s30, 224")
    E("s_add_u32 s34, s34, s35")
    E("s_cmp_ge_u32 s28, 4")
    E("s_cbranch_scc0 L_consumer")

def build_srd(E, base, ptr, off, size):
    E(f"s_add_u32 s{base}, s{ptr}, s{off}"); E(f"s_addc_u32 s{base+1}, s{ptr+1}, 0")
    E(f"s_sub_u32 s{base+2}, {size}, s{off}"); E(f"s_mov_b32 s{base+3}, 0x20000")

def producer(E, cfg, h):
    nc = 4 if h==0 else 3
    setsz = 8*nc
    RAW0 = 64
    OUT, AV, SV, ZV = 32, 48, 16, 20
    vq, vxe, vxo, vw0, vw1, va = 4,5,6,7,8,9
    ndma = cfg.ndma0 if h==0 else 16-cfg.ndma0
    def raw(st,e,j): return RAW0 + (st%cfg.RW)*setsz + e*nc + j
    E("s_bfe_u32 s31, s28, 0x10001")
    E("s_lshl_b32 s36, s31, 5")
    E("v_lshl_add_u32 v10, v1, 3, s36")
    E(f"v_mul_u32_u24 v10, {QROW}, v10")
    if h==0: E("v_lshl_add_u32 v4, v3, 4, v10")
    else:
        E("v_lshl_add_u32 v4, v3, 2, v10"); E("v_add_u32 v4, 256, v4")
    E("v_lshrrev_b32 v10, 3, v2"); E("v_and_b32 v11, 7, v2"); E("v_xor_b32 v11, v11, v1")
    E("v_lshlrev_b32 v11, 4, v11"); E("v_lshl_add_u32 v5, v10, 11, v11"); E("v_xor_b32 v6, 64, v5")
    E("s_mul_i32 s37, s30, 224")
    if h==0: E("v_lshl_add_u32 v10, v3, 3, s37")
    else:
        E("v_lshl_add_u32 v10, v3, 1, s37"); E("v_add_u32 v10, 128, v10")
    q0 = (0 if h==0 else cfg.ndma0)
    E("s_lshl_b32 s39, s31, 14"); E(f"s_add_u32 s39, s39, {q0*1024}")
    E("s_lshl_b32 s41, s31, 18"); E(f"s_add_u32 s41, s41, {q0*16384}")
    E("s_mov_b32 s36, 0")
    E("s_waitcnt lgkmcnt(0)")
    build_srd(E,20,6,33,K*QROW)
    build_srd(E,16,4,32,M*K*2)
    def wload(st,e):
        if h==0:
            r=raw(st,e,0); E.vmem(f"buffer_load_dwordx4 v[{r}:{r+3}], v{vq}, s[20:23], s36 offen", ("W",st))
        else:
            for j in range(3):
                E.vmem(f"buffer_load_dword v{raw(st,e,j)}, v{vq}, s[20:23], s36 offen offset:{64*j}", ("W",st))
        E(f"s_add_u32 s36, s36, {QROW if e<7 else QROW*57}")
    def xdma(st,i):
        if i%4==0:
            if i==0:
                E(f"s_add_u32 s40, s41, {st*128}") if not cfg_inloop[0] else E("s_mov_b32 s40, s41")
            E(f"s_add_u32 m0, s39, {(st%cfg.NX)*XSLOT + i*1024}")
            E("s_nop 0")
        q=q0+i
        v = vxe if q%2==0 else vxo
        E.vmem(f"buffer_load_dwordx4 v{v}, s[16:19], s40 offen offset:{(i%4)*1024} lds", ("X",st))
        if i<ndma-1:
            E(f"s_add_u32 s40, s40, {16384-1024 if i%4<3 else 16384+3072}")
    cfg_inloop=[False]
    for e in range(8): wload(0,e)
    if h==0:
        E.vmem("global_load_dwordx2 v[24:25], v10, s[8:9]", "SZ")
        E.vmem("global_load_dwordx2 v[26:27], v10, s[10:11]", "SZ")
    else:
        for j in range(3): E.vmem(f"global_load_ushort v{24+j}, v10, s[8:9] offset:{32*j}", "SZ")
        for j in range(3): E.vmem(f"global_load_ushort v{28+j}, v10, s[10:11] offset:{32*j}", "SZ")
    for st in range(max(cfg.RW, cfg.NX-1)):
        if st<cfg.NX-1:
            for i in range(ndma): xdma(st,i)
        if st+1<cfg.RW:
            for e in range(8): wload(st+1,e)
    E("s_mul_i32 s42, s31, 7168"); E(f"s_add_u32 s42, s42, {cfg.WBASE}")
    E("v_lshl_add_u32 v7, v2, 4, s42")
    if h==1:
        E("v_and_b32 v11, 1, v3"); E("v_lshrrev_b32 v12, 1, v3"); E("v_lshl_add_u32 v12, v1, 4, v12")
        E("v_lshlrev_b32 v13, 2, v11"); E("v_xor_b32 v12, v12, v13"); E("v_lshlrev_b32 v12, 4, v12")
        E("v_lshl_add_u32 v12, v11, 10, v12"); E("v_add_u32 v8, s42, v12")
    E("s_lshl_b32 s43, s31, 7"); E(f"s_add_u32 s43, s43, {cfg.ABASE}")
    E("v_lshl_add_u32 v9, v1, 5, s43")
    stamp(E,cfg,1)
    E.waitvm("SZ")
    if h==0:
        for j in range(4):
            for (src,dst) in ((24,SV),(26,ZV)):
                if j%2==0: E(f"v_lshlrev_b32 v{dst+j}, 16, v{src+j//2}")
                else: E(f"v_and_b32 v{dst+j}, 0xffff0000, v{src+j//2}")
    else:
        for j in range(3):
            E(f"v_lshlrev_b32 v{SV+j}, 16, v{24+j}"); E(f"v_lshlrev_b32 v{ZV+j}, 16, v{28+j}")
    for j in range(nc):
        E(f"v_mul_f32 v{ZV+j}, v{ZV+j}, v{SV+j}")
        E(f"v_mul_f32 v{SV+j}, 0x71800000, v{SV+j}")
        E(f"v_mul_f32 v{ZV+j}, 0x27000000, v{ZV+j}")
    E("s_barrier")
    def phase(j, dyn):
        st=j+1
        do_x = (j>=0) and (j+cfg.NX-1 < NST)
        do_w = (st+cfg.RW < NST)
        xs = j+cfg.NX-1
        E(f"ds_read_b128 v[{AV}:{AV+3}], v{va} offset:{0 if dyn else st*256}")
        E(f"ds_read_b128 v[{AV+4}:{AV+7}], v{va} offset:{16 if dyn else st*256+16}")
        if dyn: E(f"v_add_u32 v{va}, 256, v{va}")
        dq = list(range(ndma)) if do_x else []
        per = (len(dq)+4)//5
        def dm(n):
            for _ in range(n):
                if dq: xdma(xs,dq.pop(0))
        dm(per)
        E.waitvm(("W",st), " lgkmcnt(0)")
        for p in range(4):
            e0,e1=2*p,2*p+1
            for jj in range(nc):
                for e in (e0,e1):
                    r=raw(st,e,jj); E(f"v_fma_f32 v{r}, v{r}, v{SV+jj}, -v{ZV+jj}")
            for jj in range(nc):
                for e in (e0,e1):
                    r=raw(st,e,jj); E(f"v_mul_f32 v{r}, v{r}, v{AV+e}")
            for jj in range(nc):
                E(f"v_cvt_pk_bf16_f32 v{OUT+4*jj+p}, v{raw(st,e0,jj)}, v{raw(st,e1,jj)}")
            if do_w:
                wload(st+cfg.RW,e0); wload(st+cfg.RW,e1)
            dm(per)
        dm(len(dq))
        sl=(st%2)*WSLOT
        if h==0:
            for jj in range(4): E(f"ds_write_b128 v{vw0}, v[{OUT+4*jj}:{OUT+4*jj+3}] offset:{sl+jj*1024}")
        else:
            E(f"ds_write_b128 v{vw1}, v[{OUT}:{OUT+3}] offset:{sl+4096}")
            E(f"ds_write_b128 v{vw1}, v[{OUT+4}:{OUT+7}] offset:{sl+4096+128}")
            E(f"ds_write_b128 v{vw0}, v[{OUT+8}:{OUT+11}] offset:{sl+6144}")
        if dyn and do_x: E("s_add_u32 s41, s41, 128")
        E.waitvm(("X",st), " lgkmcnt(0)")
        E("s_barrier")
    U = 4
    last_full = NST - max(cfg.NX-1, cfg.RW+1) - 1
    if cfg.loop:
        phase(-1,False)
        j0=0
        n=(last_full - j0 + 1)//U
        if n>=2:
            E(f"s_add_u32 s41, s41, {(j0+cfg.NX-1)*128}")
            E(f"v_add_u32 v{va}, {(j0+1)*256}, v{va}")
            E(f"s_mov_b32 s44, {n}")
            lab=f"L_p{h}_loop"
            cfg_inloop[0]=True
            start=len(E.L); vm0=list(E.vm)
            for j in range(j0,j0+U): phase(j,True)
            body1=E.L[start:];
            for it in range(1,n):
                mark=len(E.L)
                for j in range(j0+it*U,j0+(it+1)*U): phase(j,True)
                body=E.L[mark:]; del E.L[mark:]
                if it==1: body2=body
                assert body==body2, "loop bodies differ"
            merged=[]
            assert len(body1)==len(body2)
            for a,b in zip(body1,body2):
                if a!=b:
                    assert a.startswith("s_waitcnt vmcnt") and b.startswith("s_waitcnt vmcnt"), (a,b)
                    na=int(a.split("(")[1].split(")")[0]); nb=int(b.split("(")[1].split(")")[0])
                    merged.append(a if na<nb else b)
                else: merged.append(a)
            del E.L[start:]
            E(".p2align 6"); E(lab+":")
            E.L.extend(merged)
            E("s_sub_u32 s44, s44, 1"); E("s_cmp_lg_u32 s44, 0"); E(f"s_cbranch_scc1 {lab}")
            cfg_inloop[0]=False
            jn=j0+n*U
            E(f"s_sub_u32 s41, s41, {(jn+cfg.NX-1)*128}")
            E(f"v_subrev_u32 v{va}, {(jn+1)*256}, v{va}")
        else: jn=0
        for j in range(jn,NST-1): phase(j,False)
    else:
        for j in range(-1,NST-1): phase(j,False)
    finish(E,cfg)

def finish(E,cfg):
    if cfg.spin:
        lab=f"L_spin{len(E.L)}"
        E("s_waitcnt vmcnt(0)")
        E(lab+":"); E("s_memrealtime s[82:83]"); E("s_waitcnt lgkmcnt(0)"); E("s_sub_u32 s82, s82, s80")
        E(f"s_cmp_lt_u32 s82, {cfg.spin}"); E(f"s_cbranch_scc1 {lab}")
    if cfg.stamps:
        stamp(E,cfg,5)
        E("s_memrealtime s[78:79]")
        E("s_waitcnt lgkmcnt(0)")
        E("s_mov_b32 s48, s58"); E("s_mov_b32 s49, s59"); E("s_mov_b32 s50, 0x1000000"); E("s_mov_b32 s51, 0x20000")
        E("s_lshl_b32 s52, s2, 3"); E("s_add_u32 s52, s52, s28"); E("s_lshl_b32 s52, s52, 5")
        E("v_mov_b32 v10, s76"); E("v_mov_b32 v11, s78")
        for i,r in enumerate((62,64,66,68,70)):
            E(f"s_sub_u32 s{r}, s{r}, s60"); E(f"v_mov_b32 v{12+i}, s{r}")
        E("s_getreg_b32 s53, hwreg(HW_REG_HW_ID)"); E("v_mov_b32 v17, s53")
        E("v_mov_b32 v9, s52")
        E("s_mov_b64 exec, 1")
        E("buffer_store_dwordx4 v[10:13], v9, s[48:51], 0 offen")
        E("buffer_store_dwordx4 v[14:17], v9, s[48:51], 0 offen offset:16")
    E("s_endpgm")

def consumer(E,cfg):
    ACC=16; XF=(128,144); WF=(160,188)
    vx0,vx1,vw,vw5=4,5,6,7
    def acc(b,j): return ACC+(b*7+j)*4
    E("L_consumer:")
    E("v_lshlrev_b32 v10, 3, v0")
    E("s_waitcnt lgkmcnt(0)")
    E.vmem("global_load_dwordx2 v[12:13], v10, s[12:13]","A")
    if cfg.codepf:
        E("s_getpc_b64 s[44:45]"); E("L_pc:")
        E(f"s_sub_u32 s44, s44, L_pc-{KN}"); E("s_subb_u32 s45, s45, 0")
        E(f"s_mov_b32 s46, L_codeend-{KN}"); E("s_mov_b32 s47, 0x20000")
        E("v_lshlrev_b32 v11, 6, v0")
        E.vmem("buffer_load_dword v14, v11, s[44:47], 0 offen","PF")
        E("s_movk_i32 s43, 0x4000")
        E.vmem("buffer_load_dword v15, v11, s[44:47], s43 offen","PF")
    build_srd(E,24,14,34,M*OROW)
    E("v_lshrrev_b32 v11, 1, v3"); E("v_xor_b32 v11, v11, v1"); E("v_lshlrev_b32 v11, 4, v11")
    E("s_lshl_b32 s36, s28, 13")
    E("v_lshl_add_u32 v11, v3, 7, v11"); E("v_add_u32 v4, s36, v11"); E("v_xor_b32 v5, 64, v4")
    E(f"v_lshlrev_b32 v6, 4, v2"); E(f"v_add_u32 v6, {cfg.WBASE}, v6"); E("v_xor_b32 v7, 64, v6")
    E(f"v_lshlrev_b32 v10, 4, v0"); E(f"v_add_u32 v10, {cfg.ABASE}, v10")
    E.waitvm("A")
    E("v_lshlrev_b32 v16, 16, v12"); E("v_and_b32 v17, 0xffff0000, v12"); E("v_lshlrev_b32 v18, 16, v13"); E("v_and_b32 v19, 0xffff0000, v13")
    for i in range(4): E(f"v_mul_f32 v{16+i}, 0x58000000, v{16+i}")
    E("ds_write_b128 v10, v[16:19]")
    E("s_lshl_b32 s36, s28, 6"); E("v_lshl_add_u32 v11, v1, 2, s36"); E(f"v_mul_u32_u24 v11, {OROW}, v11")
    E("v_lshl_add_u32 v8, v3, 3, v11"); E("v_lshl_add_u32 v9, v3, 2, v11"); E("v_lshl_add_u32 v10, v3, 1, v11")
    if cfg.prio: E(f"s_setprio {cfg.prio}")
    stamp(E,cfg,1)
    E("s_waitcnt lgkmcnt(0)")
    E("s_barrier")
    E("s_barrier")
    stamp(E,cfg,2)
    def reads(j,t,dyn):
        s=t
        xo = 0 if dyn else None
        R=[]
        va = vx0 if t==0 else vx1
        xr=lambda b: f"ds_read_b128 v[{XF[s]+4*b}:{XF[s]+4*b+3}], v{va} offset:{b*2048}"
        wr=lambda jj: f"ds_read_b128 v[{WF[s]+4*jj}:{WF[s]+4*jj+3}], v{vw5 if jj==5 else vw} offset:{(j%2)*WSLOT+(t*7+jj)*1024}"
        R.append(xr(0))
        for jj in range(7): R.append(wr(jj))
        for b in range(1,4): R.append(xr(b))
        return R
    def mfmas(s,first,inter):
        inter=list(inter); i=0
        for b in range(4):
            for jj in range(7):
                a=acc(b,jj); c = "0" if first else f"v[{a}:{a+3}]"
                E(f"v_mfma_f32_16x16x32_bf16 v[{a}:{a+3}], v[{XF[s]+4*b}:{XF[s]+4*b+3}], v[{WF[s]+4*jj}:{WF[s]+4*jj+3}], {c}")
                if inter: E(inter.pop(0))
        assert not inter
    def bump():
        if cfg.NX in (2,4):
            m=cfg.NX*XSLOT-1
            return [f"v_add_u32 v{vx0}, {XSLOT}, v{vx0}", f"v_and_b32 v{vx0}, {m}, v{vx0}", f"v_xor_b32 v{vx1}, 64, v{vx0}"]
        raise NotImplementedError
    def phase(j):
        if j==0:
            for r in reads(0,0,True): E(r)
        else:
            mfmas(1,False,reads(j,0,True))
        E("s_waitcnt lgkmcnt(0)")
        mfmas(0,j==0,reads(j,1,True)+bump())
        E("s_waitcnt lgkmcnt(0)")
        if j<NST-1: E("s_barrier")
    phase(0)
    if cfg.loop:
        E("s_mov_b32 s44, 7")
        E(".p2align 6"); E("L_c_loop:")
        phase(1); phase(2)
        E("s_sub_u32 s44, s44, 1"); E("s_cmp_lg_u32 s44, 0"); E("s_cbranch_scc1 L_c_loop")
        phase(15)
    else:
        for j in range(1,NST): phase(j)
    mfmas(1,False,[])
    stamp(E,cfg,3)
    E("s_nop 7")
    T=216; ti=0
    E("s_mov_b32 s36, 0")
    for b in range(4):
        for r in range(4):
            t=T+(ti%8)*4; ti+=1
            E(f"v_cvt_pk_bf16_f32 v{t}, v{acc(b,0)+r}, v{acc(b,1)+r}")
            E(f"v_cvt_pk_bf16_f32 v{t+1}, v{acc(b,2)+r}, v{acc(b,3)+r}")
            E(f"v_cvt_pk_bf16_f32 v{t+2}, v{acc(b,4)+r}, v{acc(b,5)+r}")
            E(f"v_cvt_pk_bf16_f32 v{t+3}, v{acc(b,6)+r}, v{acc(b,6)+r}")
            E(f"buffer_store_dwordx2 v[{t}:{t+1}], v8, s[24:27], s36 offen")
            E(f"buffer_store_dword v{t+2}, v9, s[24:27], s36 offen offset:128")
            E(f"buffer_store_short v{t+3}, v10, s[24:27], s36 offen offset:192")
            if not (b==3 and r==3): E(f"s_add_u32 s36, s36, {OROW if r<3 else OROW*13}")
    if cfg.stamps:
        stamp(E,cfg,4); E("s_waitcnt vmcnt(0)")
    finish(E,cfg)

def generate(cfg):
    out=[header(cfg)]
    E=Emit(); common_prologue(E,cfg)
    E("s_bitcmp1_b32 s28, 0"); E("s_cbranch_scc1 L_prod1")
    out+=E.L
    E=Emit(); producer(E,cfg,0); out+=E.L
    E=Emit(); E("L_prod1:"); producer(E,cfg,1); out+=E.L
    E=Emit(); consumer(E,cfg); out+=E.L
    out.append("L_exit:"); out.append("s_endpgm"); out.append("L_codeend:")
    return "\n".join(out)+footer(cfg)

if __name__=="__main__":
    kw={}
    for a in sys.argv[2:]:
        k,v=a.split("="); kw[k]=v if k=="xcd" else int(v)
    open(sys.argv[1],"w").write(generate(Cfg(**kw)))
```

```python
import sys, argparse
KN = "standalone__weight_only_int_omniquant__prompt_kernel"
M, K, N = 2048, 1024, 3584
QROW = N*4
OROW = N*2
NST = 16
XSLOT = 32768
WSLOT = 14336

class Cfg:
    def __init__(s, **kw):
        s.NX = 4
        s.RW = 2
        s.ndma0 = 16
        s.stamps = False
        s.xcd = "8x4"
        s.prio = 1
        s.pprio = 0
        s.codepf = True
        s.loop = True
        s.spin = 0
        s.wb = 0
        s.stpol = ''
        s.__dict__.update(kw)
        s.WBASE = s.NX*XSLOT
        s.ABASE = s.WBASE + 2*WSLOT
        s.LDS = s.ABASE + 4096

class Emit:
    def __init__(s): s.L=[]; s.vm=[]
    def __call__(s, x): s.L.append(x)
    def vmem(s, x, tag): s.L.append(x); s.vm.append(tag)
    def waitvm(s, tag, extra=""):
        idx=[i for i,t in enumerate(s.vm) if t==tag]
        n=(len(s.vm)-1-idx[-1]) if idx else 63
        n=min(n,63)
        s.L.append(f"s_waitcnt vmcnt({n}){extra}")
        return n

def stamp(E, cfg, i):
    if cfg.stamps: E(f"s_memtime s[{60+2*i}:{61+2*i}]")

def header(cfg):
    return f"""; Fused weight-only-int4 dequant + bf16 GEMM, out[2048,3584] = (x*act) @ ((qw-z)*s), one 256x112 tile per workgroup.
; @launch grid=(256,1,1) block=(512,1,1) lds={cfg.LDS}
.amdgcn_target "amdgcn-amd-amdhsa--gfx950"
.text
.globl {KN}
.p2align 8
.type {KN},@function
{KN}:
"""
def footer(cfg):
    return f"""
.section .rodata,"a"
.p2align 6
.amdhsa_kernel {KN}
  .amdhsa_next_free_vgpr 256
  .amdhsa_next_free_sgpr 96
  .amdhsa_accum_offset 256
  .amdhsa_group_segment_fixed_size 0
  .amdhsa_kernarg_size 64
  .amdhsa_user_sgpr_count 2
  .amdhsa_user_sgpr_kernarg_segment_ptr 1
  .amdhsa_system_sgpr_workgroup_id_x 1
  .amdhsa_float_denorm_mode_32 3
.end_amdhsa_kernel
"""

def common_prologue(E, cfg):
    if cfg.spin: E("s_memrealtime s[80:81]")
    if cfg.stamps:
        E("s_memrealtime s[76:77]")
    stamp(E,cfg,0)
    E("s_cmp_ge_u32 s2, 256"); E("s_cbranch_scc1 L_exit")
    E("s_load_dwordx4 s[4:7], s[0:1], 0")
    E("s_load_dwordx4 s[8:11], s[0:1], 16")
    E("s_load_dwordx4 s[12:15], s[0:1], 32")
    if cfg.stamps: E("s_load_dwordx2 s[58:59], s[0:1], 56")
    E("v_lshrrev_b32 v1, 6, v0")
    E("v_and_b32 v2, 63, v0")
    E("v_readfirstlane_b32 s28, v1")
    if cfg.xcd=="8x4":
        E("s_bfe_u32 s29, s2, 0x30003")
        E("s_and_b32 s30, s2, 7"); E("s_lshl_b32 s30, s30, 2"); E("s_lshr_b32 s31, s2, 6"); E("s_add_u32 s30, s30, s31")
    elif cfg.xcd=="4x8":
        E("s_bfe_u32 s29, s2, 0x20003"); E("s_and_b32 s31, s2, 1"); E("s_lshl_b32 s31, s31, 2"); E("s_add_u32 s29, s29, s31")
        E("s_lshr_b32 s30, s2, 5"); E("s_bfe_u32 s31, s2, 0x20001"); E("s_lshl_b32 s31, s31, 3"); E("s_add_u32 s30, s30, s31")
    E("v_and_b32 v3, 15, v0")
    E("v_bfe_u32 v1, v0, 4, 2")
    E("s_lshl_b32 s32, s29, 19")
    E("s_mul_i32 s33, s30, 448")
    E(f"s_mul_i32 s34, s29, {256*OROW}")
    E("s_mul_i32 s35, s30, 224")
    E("s_add_u32 s34, s34, s35")
    E("s_cmp_ge_u32 s28, 4")
    E("s_cbranch_scc0 L_consumer")

def build_srd(E, base, ptr, off, size):
    E(f"s_add_u32 s{base}, s{ptr}, s{off}"); E(f"s_addc_u32 s{base+1}, s{ptr+1}, 0")
    E(f"s_sub_u32 s{base+2}, {size}, s{off}"); E(f"s_mov_b32 s{base+3}, 0x20000")

def producer(E, cfg, h):
    nc = 4 if h==0 else 3
    setsz = 8*nc
    RAW0 = 64
    OUT, AV, SV, ZV = 32, 48, 16, 20
    vq, vxe, vxo, vw0, vw1, va = 4,5,6,7,8,9
    ndma = cfg.ndma0 if h==0 else 16-cfg.ndma0
    def raw(st,e,j): return RAW0 + (st%cfg.RW)*setsz + e*nc + j
    E("s_bfe_u32 s31, s28, 0x10001")
    E("s_lshl_b32 s36, s31, 5")
    E("v_lshl_add_u32 v10, v1, 3, s36")
    E(f"v_mul_u32_u24 v10, {QROW}, v10")
    if h==0: E("v_lshl_add_u32 v4, v3, 4, v10")
    else:
        E("v_lshl_add_u32 v4, v3, 2, v10"); E("v_add_u32 v4, 256, v4")
    E("v_lshrrev_b32 v10, 3, v2"); E("v_and_b32 v11, 7, v2"); E("v_xor_b32 v11, v11, v1")
    E("v_lshlrev_b32 v11, 4, v11"); E("v_lshl_add_u32 v5, v10, 11, v11"); E("v_xor_b32 v6, 64, v5")
    E("s_mul_i32 s37, s30, 224")
    if h==0: E("v_lshl_add_u32 v10, v3, 3, s37")
    else:
        E("v_lshl_add_u32 v10, v3, 1, s37"); E("v_add_u32 v10, 128, v10")
    q0 = (0 if h==0 else cfg.ndma0)
    E("s_lshl_b32 s39, s31, 14"); E(f"s_add_u32 s39, s39, {q0*1024}")
    E("s_lshl_b32 s41, s31, 18"); E(f"s_add_u32 s41, s41, {q0*16384}")
    E("s_mov_b32 s36, 0")
    E("s_waitcnt lgkmcnt(0)")
    build_srd(E,20,6,33,K*QROW)
    build_srd(E,16,4,32,M*K*2)
    def wload(st,e):
        if h==0:
            r=raw(st,e,0); E.vmem(f"buffer_load_dwordx4 v[{r}:{r+3}], v{vq}, s[20:23], s36 offen", ("W",st))
        else:
            for j in range(3):
                E.vmem(f"buffer_load_dword v{raw(st,e,j)}, v{vq}, s[20:23], s36 offen offset:{64*j}", ("W",st))
        E(f"s_add_u32 s36, s36, {QROW if e<7 else QROW*57}")
    def xdma(st,i):
        if i%4==0:
            if i==0:
                E(f"s_add_u32 s40, s41, {st*128}") if not cfg_inloop[0] else E("s_mov_b32 s40, s41")
            E(f"s_add_u32 m0, s39, {(st%cfg.NX)*XSLOT + i*1024}")
            E("s_nop 0")
        q=q0+i
        v = vxe if q%2==0 else vxo
        E.vmem(f"buffer_load_dwordx4 v{v}, s[16:19], s40 offen offset:{(i%4)*1024} lds", ("X",st))
        if i<ndma-1:
            E(f"s_add_u32 s40, s40, {16384-1024 if i%4<3 else 16384+3072}")
    cfg_inloop=[False]
    for e in range(8): wload(0,e)
    if h==0:
        E.vmem("global_load_dwordx2 v[24:25], v10, s[8:9]", "SZ")
        E.vmem("global_load_dwordx2 v[26:27], v10, s[10:11]", "SZ")
    else:
        for j in range(3): E.vmem(f"global_load_ushort v{24+j}, v10, s[8:9] offset:{32*j}", "SZ")
        for j in range(3): E.vmem(f"global_load_ushort v{28+j}, v10, s[10:11] offset:{32*j}", "SZ")
    for st in range(max(cfg.RW, cfg.NX-1)):
        if st<cfg.NX-1:
            for i in range(ndma): xdma(st,i)
        if st+1<cfg.RW:
            for e in range(8): wload(st+1,e)
    E("s_mul_i32 s42, s31, 7168"); E(f"s_add_u32 s42, s42, {cfg.WBASE}")
    E("v_lshl_add_u32 v7, v2, 4, s42")
    if h==1:
        E("v_and_b32 v11, 1, v3"); E("v_lshrrev_b32 v12, 1, v3"); E("v_lshl_add_u32 v12, v1, 4, v12")
        E("v_lshlrev_b32 v13, 2, v11"); E("v_xor_b32 v12, v12, v13"); E("v_lshlrev_b32 v12, 4, v12")
        E("v_lshl_add_u32 v12, v11, 10, v12"); E("v_add_u32 v8, s42, v12")
    E("s_lshl_b32 s43, s31, 7"); E(f"s_add_u32 s43, s43, {cfg.ABASE}")
    E("v_lshl_add_u32 v9, v1, 5, s43")
    stamp(E,cfg,1)
    E.waitvm("SZ")
    if h==0:
        for j in range(4):
            for (src,dst) in ((24,SV),(26,ZV)):
                if j%2==0: E(f"v_lshlrev_b32 v{dst+j}, 16, v{src+j//2}")
                else: E(f"v_and_b32 v{dst+j}, 0xffff0000, v{src+j//2}")
    else:
        for j in range(3):
            E(f"v_lshlrev_b32 v{SV+j}, 16, v{24+j}"); E(f"v_lshlrev_b32 v{ZV+j}, 16, v{28+j}")
    for j in range(nc):
        E(f"v_mul_f32 v{ZV+j}, v{ZV+j}, v{SV+j}")
        E(f"v_mul_f32 v{SV+j}, 0x71800000, v{SV+j}")
        E(f"v_mul_f32 v{ZV+j}, 0x27000000, v{ZV+j}")
    E("s_barrier")
    def phase(j, dyn):
        st=j+1
        do_x = (j>=0) and (j+cfg.NX-1 < NST)
        do_w = (st+cfg.RW < NST)
        xs = j+cfg.NX-1
        E(f"ds_read_b128 v[{AV}:{AV+3}], v{va} offset:{0 if dyn else st*256}")
        E(f"ds_read_b128 v[{AV+4}:{AV+7}], v{va} offset:{16 if dyn else st*256+16}")
        if dyn: E(f"v_add_u32 v{va}, 256, v{va}")
        dq = list(range(ndma)) if do_x else []
        per = (len(dq)+4)//5
        def dm(n):
            for _ in range(n):
                if dq: xdma(xs,dq.pop(0))
        dm(per)
        E.waitvm(("W",st), " lgkmcnt(0)")
        for p in range(4):
            e0,e1=2*p,2*p+1
            for jj in range(nc):
                for e in (e0,e1):
                    r=raw(st,e,jj); E(f"v_fma_f32 v{r}, v{r}, v{SV+jj}, -v{ZV+jj}")
            for jj in range(nc):
                for e in (e0,e1):
                    r=raw(st,e,jj); E(f"v_mul_f32 v{r}, v{r}, v{AV+e}")
            for jj in range(nc):
                E(f"v_cvt_pk_bf16_f32 v{OUT+4*jj+p}, v{raw(st,e0,jj)}, v{raw(st,e1,jj)}")
            if do_w:
                wload(st+cfg.RW,e0); wload(st+cfg.RW,e1)
            dm(per)
        dm(len(dq))
        sl=(st%2)*WSLOT
        if h==0:
            for jj in range(4): E(f"ds_write_b128 v{vw0}, v[{OUT+4*jj}:{OUT+4*jj+3}] offset:{sl+jj*1024}")
        else:
            E(f"ds_write_b128 v{vw1}, v[{OUT}:{OUT+3}] offset:{sl+4096}")
            E(f"ds_write_b128 v{vw1}, v[{OUT+4}:{OUT+7}] offset:{sl+4096+128}")
            E(f"ds_write_b128 v{vw0}, v[{OUT+8}:{OUT+11}] offset:{sl+6144}")
        if dyn and do_x: E("s_add_u32 s41, s41, 128")
        E.waitvm(("X",st), " lgkmcnt(0)")
        E("s_barrier")
    U = 4
    last_full = NST - max(cfg.NX-1, cfg.RW+1) - 1
    if cfg.loop:
        phase(-1,False)
        j0=0
        n=(last_full - j0 + 1)//U
        if n>=2:
            E(f"s_add_u32 s41, s41, {(j0+cfg.NX-1)*128}")
            E(f"v_add_u32 v{va}, {(j0+1)*256}, v{va}")
            E(f"s_mov_b32 s44, {n}")
            lab=f"L_p{h}_loop"
            cfg_inloop[0]=True
            start=len(E.L); vm0=list(E.vm)
            for j in range(j0,j0+U): phase(j,True)
            body1=E.L[start:];
            for it in range(1,n):
                mark=len(E.L)
                for j in range(j0+it*U,j0+(it+1)*U): phase(j,True)
                body=E.L[mark:]; del E.L[mark:]
                if it==1: body2=body
                assert body==body2, "loop bodies differ"
            merged=[]
            assert len(body1)==len(body2)
            for a,b in zip(body1,body2):
                if a!=b:
                    assert a.startswith("s_waitcnt vmcnt") and b.startswith("s_waitcnt vmcnt"), (a,b)
                    na=int(a.split("(")[1].split(")")[0]); nb=int(b.split("(")[1].split(")")[0])
                    merged.append(a if na<nb else b)
                else: merged.append(a)
            del E.L[start:]
            E(".p2align 6"); E(lab+":")
            E.L.extend(merged)
            E("s_sub_u32 s44, s44, 1"); E("s_cmp_lg_u32 s44, 0"); E(f"s_cbranch_scc1 {lab}")
            cfg_inloop[0]=False
            jn=j0+n*U
            E(f"s_sub_u32 s41, s41, {(jn+cfg.NX-1)*128}")
            E(f"v_subrev_u32 v{va}, {(jn+1)*256}, v{va}")
        else: jn=0
        for j in range(jn,NST-1): phase(j,False)
    else:
        for j in range(-1,NST-1): phase(j,False)
    finish(E,cfg)

def finish(E,cfg):
    if cfg.spin:
        lab=f"L_spin{len(E.L)}"
        E("s_waitcnt vmcnt(0)")
        if cfg.wb: E("buffer_wbl2 sc1"); E("s_waitcnt vmcnt(0)")
        E(lab+":"); E("s_memrealtime s[82:83]"); E("s_waitcnt lgkmcnt(0)"); E("s_sub_u32 s82, s82, s80")
        E(f"s_cmp_lt_u32 s82, {cfg.spin}"); E(f"s_cbranch_scc1 {lab}")
    if cfg.stamps:
        stamp(E,cfg,5)
        E("s_memrealtime s[78:79]")
        E("s_waitcnt lgkmcnt(0)")
        E("s_mov_b32 s48, s58"); E("s_mov_b32 s49, s59"); E("s_mov_b32 s50, 0x1000000"); E("s_mov_b32 s51, 0x20000")
        E("s_lshl_b32 s52, s2, 3"); E("s_add_u32 s52, s52, s28"); E("s_lshl_b32 s52, s52, 5")
        E("v_mov_b32 v10, s76"); E("v_mov_b32 v11, s78")
        for i,r in enumerate((62,64,66,68,70)):
            E(f"s_sub_u32 s{r}, s{r}, s60"); E(f"v_mov_b32 v{12+i}, s{r}")
        E("s_getreg_b32 s53, hwreg(HW_REG_HW_ID)"); E("v_mov_b32 v17, s53")
        E("v_mov_b32 v9, s52")
        E("s_mov_b64 exec, 1")
        E("buffer_store_dwordx4 v[10:13], v9, s[48:51], 0 offen")
        E("buffer_store_dwordx4 v[14:17], v9, s[48:51], 0 offen offset:16")
    E("s_endpgm")

def consumer(E,cfg):
    ACC=16; XF=(128,144); WF=(160,188)
    vx0,vx1,vw,vw5=4,5,6,7
    def acc(b,j): return ACC+(b*7+j)*4
    E("L_consumer:")
    E("v_lshlrev_b32 v10, 3, v0")
    E("s_waitcnt lgkmcnt(0)")
    E.vmem("global_load_dwordx2 v[12:13], v10, s[12:13]","A")
    if cfg.codepf:
        E("s_getpc_b64 s[44:45]"); E("L_pc:")
        E(f"s_sub_u32 s44, s44, L_pc-{KN}"); E("s_subb_u32 s45, s45, 0")
        E(f"s_mov_b32 s46, L_codeend-{KN}"); E("s_mov_b32 s47, 0x20000")
        E("v_lshlrev_b32 v11, 6, v0")
        E.vmem("buffer_load_dword v14, v11, s[44:47], 0 offen","PF")
        E("s_movk_i32 s43, 0x4000")
        E.vmem("buffer_load_dword v15, v11, s[44:47], s43 offen","PF")
    build_srd(E,24,14,34,M*OROW)
    E("v_lshrrev_b32 v11, 1, v3"); E("v_xor_b32 v11, v11, v1"); E("v_lshlrev_b32 v11, 4, v11")
    E("s_lshl_b32 s36, s28, 13")
    E("v_lshl_add_u32 v11, v3, 7, v11"); E("v_add_u32 v4, s36, v11"); E("v_xor_b32 v5, 64, v4")
    E(f"v_lshlrev_b32 v6, 4, v2"); E(f"v_add_u32 v6, {cfg.WBASE}, v6"); E("v_xor_b32 v7, 64, v6")
    E(f"v_lshlrev_b32 v10, 4, v0"); E(f"v_add_u32 v10, {cfg.ABASE}, v10")
    E.waitvm("A")
    E("v_lshlrev_b32 v16, 16, v12"); E("v_and_b32 v17, 0xffff0000, v12"); E("v_lshlrev_b32 v18, 16, v13"); E("v_and_b32 v19, 0xffff0000, v13")
    for i in range(4): E(f"v_mul_f32 v{16+i}, 0x58000000, v{16+i}")
    E("ds_write_b128 v10, v[16:19]")
    E("s_lshl_b32 s36, s28, 6"); E("v_lshl_add_u32 v11, v1, 2, s36"); E(f"v_mul_u32_u24 v11, {OROW}, v11")
    E("v_lshl_add_u32 v8, v3, 3, v11"); E("v_lshl_add_u32 v9, v3, 2, v11"); E("v_lshl_add_u32 v10, v3, 1, v11")
    if cfg.prio: E(f"s_setprio {cfg.prio}")
    stamp(E,cfg,1)
    E("s_waitcnt lgkmcnt(0)")
    E("s_barrier")
    E("s_barrier")
    stamp(E,cfg,2)
    def reads(j,t,dyn):
        s=t
        xo = 0 if dyn else None
        R=[]
        va = vx0 if t==0 else vx1
        xr=lambda b: f"ds_read_b128 v[{XF[s]+4*b}:{XF[s]+4*b+3}], v{va} offset:{b*2048}"
        wr=lambda jj: f"ds_read_b128 v[{WF[s]+4*jj}:{WF[s]+4*jj+3}], v{vw5 if jj==5 else vw} offset:{(j%2)*WSLOT+(t*7+jj)*1024}"
        R.append(xr(0))
        for jj in range(7): R.append(wr(jj))
        for b in range(1,4): R.append(xr(b))
        return R
    def mfmas(s,first,inter):
        inter=list(inter); i=0
        for b in range(4):
            for jj in range(7):
                a=acc(b,jj); c = "0" if first else f"v[{a}:{a+3}]"
                E(f"v_mfma_f32_16x16x32_bf16 v[{a}:{a+3}], v[{XF[s]+4*b}:{XF[s]+4*b+3}], v[{WF[s]+4*jj}:{WF[s]+4*jj+3}], {c}")
                if inter: E(inter.pop(0))
        assert not inter
    def bump():
        if cfg.NX in (2,4):
            m=cfg.NX*XSLOT-1
            return [f"v_add_u32 v{vx0}, {XSLOT}, v{vx0}", f"v_and_b32 v{vx0}, {m}, v{vx0}", f"v_xor_b32 v{vx1}, 64, v{vx0}"]
        raise NotImplementedError
    def phase(j):
        if j==0:
            for r in reads(0,0,True): E(r)
        else:
            mfmas(1,False,reads(j,0,True))
        E("s_waitcnt lgkmcnt(0)")
        mfmas(0,j==0,reads(j,1,True)+bump())
        E("s_waitcnt lgkmcnt(0)")
        if j<NST-1: E("s_barrier")
    phase(0)
    if cfg.loop:
        E("s_mov_b32 s44, 7")
        E(".p2align 6"); E("L_c_loop:")
        phase(1); phase(2)
        E("s_sub_u32 s44, s44, 1"); E("s_cmp_lg_u32 s44, 0"); E("s_cbranch_scc1 L_c_loop")
        phase(15)
    else:
        for j in range(1,NST): phase(j)
    mfmas(1,False,[])
    stamp(E,cfg,3)
    E("s_nop 7")
    T=216; ti=0
    E("s_mov_b32 s36, 0")
    for b in range(4):
        for r in range(4):
            t=T+(ti%8)*4; ti+=1
            E(f"v_cvt_pk_bf16_f32 v{t}, v{acc(b,0)+r}, v{acc(b,1)+r}")
            E(f"v_cvt_pk_bf16_f32 v{t+1}, v{acc(b,2)+r}, v{acc(b,3)+r}")
            E(f"v_cvt_pk_bf16_f32 v{t+2}, v{acc(b,4)+r}, v{acc(b,5)+r}")
            E(f"v_cvt_pk_bf16_f32 v{t+3}, v{acc(b,6)+r}, v{acc(b,6)+r}")
            E(f"buffer_store_dwordx2 v[{t}:{t+1}], v8, s[24:27], s36 offen {cfg.stpol}")
            E(f"buffer_store_dword v{t+2}, v9, s[24:27], s36 offen offset:128 {cfg.stpol}")
            E(f"buffer_store_short v{t+3}, v10, s[24:27], s36 offen offset:192 {cfg.stpol}")
            if not (b==3 and r==3): E(f"s_add_u32 s36, s36, {OROW if r<3 else OROW*13}")
    if cfg.stamps:
        stamp(E,cfg,4); E("s_waitcnt vmcnt(0)")
    finish(E,cfg)

def generate(cfg):
    out=[header(cfg)]
    E=Emit(); common_prologue(E,cfg)
    E("s_bitcmp1_b32 s28, 0"); E("s_cbranch_scc1 L_prod1")
    out+=E.L
    E=Emit(); producer(E,cfg,0); out+=E.L
    E=Emit(); E("L_prod1:"); producer(E,cfg,1); out+=E.L
    E=Emit(); consumer(E,cfg); out+=E.L
    out.append("L_exit:"); out.append("s_endpgm"); out.append("L_codeend:")
    return "\n".join(out)+footer(cfg)

if __name__=="__main__":
    kw={}
    for a in sys.argv[2:]:
        k,v=a.split("="); kw[k]=v.replace("_"," ") if k in ("xcd","stpol") else int(v)
    open(sys.argv[1],"w").write(generate(Cfg(**kw)))
```

```python
import sys
KN = "standalone__weight_only_int_omniquant__prompt_kernel"
M, K, N = 2048, 1024, 3584
QROW = N*4
OROW = N*2
NST = 16
XSLOT = 32768
WSLOT = 14336

class Cfg:
    def __init__(s, **kw):
        s.NX = 4; s.XL = 2
        s.RW = 2
        s.stamps = 0; s.xcd = "8x4"; s.prio = 1; s.pprio = 0; s.codepf = 1; s.loop = 1
        s.spin = 0; s.stpol = ''; s.abl = ''
        s.g = 2; s.start = 4; s.xrot = 0; s.swap = 1; s.dfirst = 2
        s.enc = ''
        s.__dict__.update(kw)
        if s.stamps==2: s.loop=0
        s.WBASE = s.NX*XSLOT
        s.ABASE = s.WBASE + 2*WSLOT
        s.LDS = s.ABASE + 4096

def order(o, g, start):
    if g==0: return list(range(NST))
    key=lambda s: (s-g-0.5) if (s%4==o and s>=start) else s
    return sorted(range(NST), key=key)
def table(o,cfg):
    v=0
    for i,s in enumerate(order(o,cfg.g,cfg.start)): v|=s<<(4*i)
    return v

class Emit:
    def __init__(s): s.L=[]; s.vm=[]
    def __call__(s, x): s.L.append(x)
    def vmem(s, x, tag): s.L.append(x); s.vm.append(tag)
    def waitvm(s, tag, extra=""):
        idx=[i for i,t in enumerate(s.vm) if t==tag]
        n=(len(s.vm)-1-idx[-1]) if idx else 63
        n=min(n,63)
        s.L.append(f"s_waitcnt vmcnt({n}){extra}")
        return n

def stamp(E, cfg, i):
    if cfg.stamps or cfg.enc: E(f"s_memtime s[{60+2*i}:{61+2*i}]")

def header(cfg):
    return f"""; Fused int4-weight dequant + bf16 GEMM: out[2048,3584] = (x*act) @ ((qw-z)*s); one 256x112 tile per workgroup.
; @launch grid=(256,1,1) block=(512,1,1) lds={cfg.LDS}
.amdgcn_target "amdgcn-amd-amdhsa--gfx950"
.text
.globl {KN}
.p2align 8
.type {KN},@function
{KN}:
"""
def footer(cfg):
    return f"""
.section .rodata,"a"
.p2align 6
.amdhsa_kernel {KN}
  .amdhsa_next_free_vgpr 256
  .amdhsa_next_free_sgpr 96
  .amdhsa_accum_offset 256
  .amdhsa_group_segment_fixed_size 0
  .amdhsa_kernarg_size 64
  .amdhsa_user_sgpr_count 2
  .amdhsa_user_sgpr_kernarg_segment_ptr 1
  .amdhsa_system_sgpr_workgroup_id_x 1
  .amdhsa_float_denorm_mode_32 3
.end_amdhsa_kernel
"""
def common_prologue(E, cfg):
    if cfg.spin or cfg.enc: E("s_memrealtime s[80:81]")
    if cfg.stamps: E("s_memrealtime s[76:77]")
    stamp(E,cfg,0)
    E("s_cmp_ge_u32 s2, 256"); E("s_cbranch_scc1 L_exit")
    E("s_load_dwordx4 s[4:7], s[0:1], 0")
    E("s_load_dwordx4 s[8:11], s[0:1], 16")
    E("s_load_dwordx4 s[12:15], s[0:1], 32")
    if cfg.stamps: E("s_load_dwordx2 s[58:59], s[0:1], 56")
    E("v_lshrrev_b32 v1, 6, v0")
    E("v_and_b32 v2, 63, v0")
    E("v_readfirstlane_b32 s28, v1")
    if cfg.xcd=="8x4":
        E("s_bfe_u32 s29, s2, 0x30003")
        E("s_and_b32 s45, s2, 7"); E("s_lshl_b32 s30, s45, 2"); E("s_lshr_b32 s31, s2, 6"); E("s_add_u32 s30, s30, s31")
        E("s_add_u32 s46, s29, s31")
    elif cfg.xcd=="4x8":
        E("s_and_b32 s45, s2, 7")
        E("s_bfe_u32 s29, s2, 0x20003"); E("s_lshr_b32 s30, s2, 5"); E("s_add_u32 s46, s29, s30")
        E("s_and_b32 s31, s2, 1"); E("s_lshl_b32 s31, s31, 2"); E("s_add_u32 s29, s29, s31")
        E("s_bfe_u32 s31, s2, 0x20001"); E("s_lshl_b32 s31, s31, 3"); E("s_add_u32 s30, s30, s31")
    E("v_and_b32 v3, 15, v0")
    E("v_bfe_u32 v1, v0, 4, 2")
    E("s_lshl_b32 s32, s29, 19")
    E("s_mul_i32 s33, s30, 448")
    E(f"s_mul_i32 s34, s29, {256*OROW}")
    E("s_mul_i32 s35, s30, 224")
    E("s_add_u32 s34, s34, s35")
    if cfg.swap:
        E("s_bitcmp1_b32 s30, 0"); E("s_cselect_b32 s37, 48, 0"); E("s_cselect_b32 s38, 0, 64")
    else:
        E("s_mov_b32 s37, 0"); E("s_mov_b32 s38, 64")
    E("s_cmp_ge_u32 s28, 4")
    E("s_cbranch_scc0 L_consumer")

def build_srd(E, base, ptr, off, size):
    E(f"s_add_u32 s{base}, s{ptr}, s{off}"); E(f"s_addc_u32 s{base+1}, s{ptr+1}, 0")
    E(f"s_sub_u32 s{base+2}, {size}, s{off}"); E(f"s_mov_b32 s{base+3}, 0x20000")

def nextstage(E, cfg, pair, dst):
    if cfg.xrot:
        E(f"s_add_u32 s{dst}, s{pair}, s45"); E(f"s_and_b32 s{dst}, s{dst}, 15")
    else: E(f"s_and_b32 s{dst}, s{pair}, 15")
    E(f"s_lshr_b64 s[{pair}:{pair+1}], s[{pair}:{pair+1}], 4")

def producer(E, cfg, h):
    nc = 4 if h==0 else 3
    setsz = 8*4
    RAW0 = 64
    OUT, AV, SV, ZV = 32, (48,56), 16, 20
    vq, vxe, vxo, va = 4,5,6,9
    vw = (7,) if h==0 else (7,8,11)
    ndma = 8
    def raw(st,e,j): return RAW0 + (st%cfg.RW)*setsz + e*4 + j
    E("s_bfe_u32 s31, s28, 0x10001")
    E("s_and_b32 s46, s46, 3")
    tabs=[table(o,cfg) for o in range(4)]
    E(f"s_mov_b32 s52, {tabs[0]&0xffffffff:#x}"); E(f"s_mov_b32 s53, {tabs[0]>>32:#x}")
    if cfg.g:
        for o in range(1,4):
            E(f"s_cmp_eq_u32 s46, {o}"); E(f"s_cselect_b32 s52, {tabs[o]&0xffffffff:#x}, s52"); E(f"s_cselect_b32 s53, {tabs[o]>>32:#x}, s53")
    E("s_mov_b64 s[54:55], s[52:53]"); E("s_mov_b64 s[56:57], s[52:53]")
    if cfg.xrot: E(f"s_mul_i32 s45, s45, {cfg.xrot}")
    E("s_lshl_b32 s36, s31, 5")
    E("v_lshl_add_u32 v10, v1, 3, s36")
    E(f"v_mul_u32_u24 v10, {QROW}, v10")
    E(f"s_lshl_b32 s42, s{37+h}, 2")
    if h==0: E("v_lshl_add_u32 v4, v3, 4, v10")
    else:
        E("v_mul_u32_u24 v4, 12, v3"); E("v_add_u32 v4, v4, v10")
    E("v_add_u32 v4, s42, v4")
    E("v_lshrrev_b32 v10, 3, v2"); E("v_and_b32 v12, 7, v2"); E("v_xor_b32 v12, v12, v1")
    E("v_lshlrev_b32 v12, 4, v12"); E("v_lshl_add_u32 v5, v10, 11, v12"); E("v_xor_b32 v6, 64, v5")
    E(f"s_lshl_b32 s42, s{37+h}, 1"); E("s_add_u32 s42, s42, s35")
    if h==0: E("v_lshl_add_u32 v10, v3, 3, s42")
    else:
        E("v_mul_u32_u24 v10, 6, v3"); E("v_add_u32 v10, s42, v10")
    E("s_sub_u32 s42, s28, 4")
    E("s_lshl_b32 s39, s42, 13")
    E("s_lshl_b32 s41, s42, 17")
    E("s_waitcnt lgkmcnt(0)")
    build_srd(E,20,6,33,K*QROW)
    build_srd(E,16,4,32,M*K*2)
    def wstart():
        nextstage(E,cfg,52,36); E(f"s_mul_i32 s36, s36, {64*QROW}")
    def wload(st,e):
        r=raw(st,e,0)
        if h==0: E.vmem(f"buffer_load_dwordx4 v[{r}:{r+3}], v{vq}, s[20:23], s36 offen", ("W",st))
        else: E.vmem(f"buffer_load_dwordx3 v[{r}:{r+2}], v{vq}, s[20:23], s36 offen", ("W",st))
        if e<7: E(f"s_add_u32 s36, s36, {QROW}")
    def xstart():
        nextstage(E,cfg,54,40); E("s_lshl_b32 s40, s40, 7"); E("s_add_u32 s40, s40, s41")
    def xdma(st,i):
        if i%4==0:
            E(f"s_add_u32 m0, s39, {(st%cfg.NX)*XSLOT + i*1024}")
            E("s_nop 0")
        E.vmem(f"buffer_load_dwordx4 v{vxe if i%2==0 else vxo}, s[16:19], s40 offen offset:{(i%4)*1024} lds", ("X",st))
        if i<ndma-1: E(f"s_add_u32 s40, s40, {16384-1024 if i%4<3 else 16384+3072}")
    def aread(st):
        nextstage(E,cfg,56,42); E("s_lshl_b32 s42, s42, 8"); E(f"v_add_u32 v12, s42, v{va}")
        a=AV[st%2]
        E(f"ds_read_b128 v[{a}:{a+3}], v12"); E(f"ds_read_b128 v[{a+4}:{a+7}], v12 offset:16")
    wstart()
    for e in range(8): wload(0,e)
    if h==0:
        E.vmem("global_load_dwordx2 v[24:25], v10, s[8:9]", "SZ")
        E.vmem("global_load_dwordx2 v[26:27], v10, s[10:11]", "SZ")
    else:
        for j in range(3): E.vmem(f"global_load_ushort v{24+j}, v10, s[8:9] offset:{2*j}", "SZ")
        for j in range(3): E.vmem(f"global_load_ushort v{28+j}, v10, s[10:11] offset:{2*j}", "SZ")
    for st in range(max(cfg.RW, cfg.XL-1)):
        if st<cfg.XL-1:
            xstart()
            for i in range(ndma): xdma(st,i)
        if st+1<cfg.RW:
            wstart()
            for e in range(8): wload(st+1,e)
    E("s_mul_i32 s42, s31, 7168"); E(f"s_add_u32 s42, s42, {cfg.WBASE}")
    if h==0: E("v_lshl_add_u32 v7, v2, 4, s42")
    else:
        for j in range(3):
            E(f"v_mul_u32_u24 v12, 3, v3"); E(f"v_add_u32 v12, {j}, v12")
            E("v_and_b32 v13, 1, v12"); E("v_lshrrev_b32 v14, 1, v12"); E("v_lshlrev_b32 v15, 2, v13"); E("v_xor_b32 v14, v14, v15")
            E("v_lshlrev_b32 v14, 4, v14"); E("v_lshl_add_u32 v14, v13, 10, v14")
            E("v_subrev_u32 v15, 32, v12"); E("v_lshlrev_b32 v15, 4, v15"); E("v_add_u32 v15, 2048, v15")
            E("v_cmp_gt_u32 vcc, 32, v12"); E("s_nop 1"); E("v_cndmask_b32 v14, v15, v14, vcc")
            E("v_lshl_add_u32 v14, v1, 8, v14"); E("v_add_u32 v14, 4096, v14"); E(f"v_add_u32 v{vw[j]}, s42, v14")
    E("s_lshl_b32 s43, s31, 7"); E(f"s_add_u32 s43, s43, {cfg.ABASE}")
    E("v_lshl_add_u32 v9, v1, 5, s43")
    stamp(E,cfg,1)
    E("s_barrier")
    aread(0)
    E.waitvm("SZ")
    if h==0:
        for j in range(4):
            for (src,dst) in ((24,SV),(26,ZV)):
                if j%2==0: E(f"v_lshlrev_b32 v{dst+j}, 16, v{src+j//2}")
                else: E(f"v_and_b32 v{dst+j}, 0xffff0000, v{src+j//2}")
    else:
        for j in range(3):
            E(f"v_lshlrev_b32 v{SV+j}, 16, v{24+j}"); E(f"v_lshlrev_b32 v{ZV+j}, 16, v{28+j}")
    for j in range(nc):
        E(f"v_mul_f32 v{ZV+j}, v{ZV+j}, v{SV+j}")
        E(f"v_mul_f32 v{SV+j}, 0x71800000, v{SV+j}")
        E(f"v_mul_f32 v{ZV+j}, 0x27000000, v{ZV+j}")
    if cfg.pprio: E(f"s_setprio {cfg.pprio}")
    def phase(j):
        st=j+1
        xs=j+cfg.XL
        do_x = xs<NST
        do_w = st+cfg.RW<NST
        a=AV[st%2]
        dq=list(range(ndma)) if do_x else []
        if do_x: xstart()
        def dm(n):
            for _ in range(n):
                if dq: xdma(xs,dq.pop(0))
        dm(cfg.dfirst)
        E.waitvm(("W",st), " lgkmcnt(0)")
        if st+1<NST: aread(st+1)
        sl=(st%2)*WSLOT
        for jj in range(nc):
            for half in range(2):
                for e in range(4*half,4*half+4):
                    r=raw(st,e,jj); E(f"v_fma_f32 v{r}, v{r}, v{SV+jj}, -v{ZV+jj}")
                for e in range(4*half,4*half+4):
                    r=raw(st,e,jj); E(f"v_mul_f32 v{r}, v{r}, v{a+e}")
                for p in (2*half,2*half+1):
                    E(f"v_cvt_pk_bf16_f32 v{OUT+4*jj+p}, v{raw(st,2*p,jj)}, v{raw(st,2*p+1,jj)}")
                dm(1)
            if h==0: E(f"ds_write_b128 v{vw[0]}, v[{OUT+4*jj}:{OUT+4*jj+3}] offset:{sl+jj*1024}")
            else: E(f"ds_write_b128 v{vw[jj]}, v[{OUT+4*jj}:{OUT+4*jj+3}] offset:{sl}")
        dm(len(dq))
        if do_w:
            wstart()
            for e in range(8): wload(st+cfg.RW,e)
        E.waitvm(("X",st), " lgkmcnt(0)")
        E("s_barrier")
    U=4
    last_full = min(NST-1-cfg.XL, NST-2-cfg.RW)
    phase(-1)
    jn=0
    if cfg.loop:
        n=(last_full+1)//U
        if n>=2:
            E(f"s_mov_b32 s44, {n}")
            lab=f"L_p{h}_loop"
            start=len(E.L)
            bodies=[]
            for it in range(n):
                mark=len(E.L)
                for j in range(it*U,(it+1)*U): phase(j)
                bodies.append(E.L[mark:]); del E.L[mark:]
            merged=[]
            for tup in zip(*bodies):
                if len(set(tup))==1: merged.append(tup[0])
                else:
                    assert all(x.startswith("s_waitcnt vmcnt") for x in tup), tup
                    merged.append(min(tup,key=lambda x:int(x.split("(")[1].split(")")[0])))
            assert len(set(len(b) for b in bodies))==1
            E(".p2align 6"); E(lab+":")
            E.L.extend(merged)
            E("s_sub_u32 s44, s44, 1"); E("s_cmp_lg_u32 s44, 0"); E(f"s_cbranch_scc1 {lab}")
            jn=n*U
    for j in range(jn,NST-1): phase(j)
    finish(E,cfg,False)

def finish(E,cfg,cons):
    if cfg.enc and cons:
        a,b,amp=cfg.enc.split(":")
        E("s_waitcnt vmcnt(0)"); stamp(E,cfg,5); E("s_waitcnt lgkmcnt(0)")
        E(f"s_sub_u32 s84, s{60+2*int(b)}, s{60+2*int(a)}"); E(f"s_lshr_b32 s84, s84, {amp}"); E(f"s_add_u32 s84, s84, 5000")
    elif cfg.spin or cfg.enc: E(f"s_mov_b32 s84, {cfg.spin if cfg.spin else 100}")
    if cfg.spin or cfg.enc:
        lab=f"L_spin{len(E.L)}"
        E("s_waitcnt vmcnt(0)")
        E(lab+":"); E("s_memrealtime s[82:83]"); E("s_waitcnt lgkmcnt(0)"); E("s_sub_u32 s82, s82, s80")
        E(f"s_cmp_lt_u32 s82, s84"); E(f"s_cbranch_scc1 {lab}")
    if cfg.stamps:
        stamp(E,cfg,5)
        E("s_memrealtime s[78:79]")
        E("s_waitcnt lgkmcnt(0)")
        E("s_mov_b32 s48, s58"); E("s_mov_b32 s49, s59"); E("s_mov_b32 s50, 0x1000000"); E("s_mov_b32 s51, 0x20000")
        E("s_lshl_b32 s52, s2, 3"); E("s_add_u32 s52, s52, s28"); E("s_lshl_b32 s52, s52, 5")
        E("v_mov_b32 v10, s76"); E("v_mov_b32 v11, s78")
        for i,r in enumerate((62,64,66,68,70)):
            E(f"s_sub_u32 s{r}, s{r}, s60"); E(f"v_mov_b32 v{12+i}, s{r}")
        E("s_getreg_b32 s53, hwreg(HW_REG_HW_ID)"); E("v_mov_b32 v17, s53")
        E("v_mov_b32 v9, s52")
        E("s_mov_b64 exec, 1")
        E("buffer_store_dwordx4 v[10:13], v9, s[48:51], 0 offen")
        E("buffer_store_dwordx4 v[14:17], v9, s[48:51], 0 offen offset:16")
        if cfg.stamps==2 and cons:
            E("s_mov_b64 exec, 0xffff"); E("s_lshl_b32 s52, s2, 3"); E("s_add_u32 s52, s52, s28"); E("s_lshl_b32 s52, s52, 6"); E("s_add_u32 s52, s52, 0x10000")
            E("v_and_b32 v9, 63, v0"); E("v_lshlrev_b32 v9, 2, v9"); E("v_add_u32 v9, s52, v9")
            E("buffer_store_dword v250, v9, s[48:51], 0 offen")
    E("s_endpgm")

def consumer(E,cfg):
    ACC=16; XF=(128,144); WF=(160,188)
    vx0,vx1,vw,vw5=4,5,6,7
    def acc(b,j): return ACC+(b*7+j)*4
    E("L_consumer:")
    E("v_lshlrev_b32 v10, 3, v0")
    E("s_waitcnt lgkmcnt(0)")
    E.vmem("global_load_dwordx2 v[12:13], v10, s[12:13]","A")
    if cfg.codepf:
        E("s_getpc_b64 s[44:45]"); E("L_pc:")
        E(f"s_sub_u32 s44, s44, L_pc-{KN}"); E("s_subb_u32 s45, s45, 0")
        E(f"s_mov_b32 s46, L_codeend-{KN}"); E("s_mov_b32 s47, 0x20000")
        E("v_lshlrev_b32 v11, 6, v0")
        E.vmem("buffer_load_dword v14, v11, s[44:47], 0 offen","PF")
    build_srd(E,24,14,34,M*OROW)
    E("v_lshrrev_b32 v11, 1, v3"); E("v_xor_b32 v11, v11, v1"); E("v_lshlrev_b32 v11, 4, v11")
    E("s_lshl_b32 s36, s28, 13")
    E("v_lshl_add_u32 v11, v3, 7, v11"); E("v_add_u32 v4, s36, v11"); E("v_xor_b32 v5, 64, v4")
    E(f"v_lshlrev_b32 v6, 4, v2"); E(f"v_add_u32 v6, {cfg.WBASE}, v6"); E("v_xor_b32 v7, 64, v6")
    E(f"v_lshlrev_b32 v10, 4, v0"); E(f"v_add_u32 v10, {cfg.ABASE}, v10")
    E.waitvm("A")
    E("v_lshlrev_b32 v16, 16, v12"); E("v_and_b32 v17, 0xffff0000, v12"); E("v_lshlrev_b32 v18, 16, v13"); E("v_and_b32 v19, 0xffff0000, v13")
    for i in range(4): E(f"v_mul_f32 v{16+i}, 0x58000000, v{16+i}")
    E("ds_write_b128 v10, v[16:19]")
    E("s_lshl_b32 s36, s28, 6"); E("v_lshl_add_u32 v11, v1, 2, s36"); E(f"v_mul_u32_u24 v11, {OROW}, v11")
    E("s_lshl_b32 s37, s37, 1"); E("s_lshl_b32 s38, s38, 1")
    E("v_lshl_add_u32 v8, v3, 3, v11"); E("v_lshl_add_u32 v9, v3, 2, v11"); E("v_lshl_add_u32 v10, v3, 1, v11")
    E("v_add_u32 v8, s37, v8"); E("v_add_u32 v9, s38, v9"); E("v_add_u32 v10, s38, v10")
    if cfg.prio: E(f"s_setprio {cfg.prio}")
    stamp(E,cfg,1)
    E("s_waitcnt lgkmcnt(0)")
    E("s_barrier")
    E("s_barrier")
    stamp(E,cfg,2)
    def reads(j,t):
        s=t; va = vx0 if t==0 else vx1
        xr=lambda b: f"ds_read_b128 v[{XF[s]+4*b}:{XF[s]+4*b+3}], v{va} offset:{b*2048}"
        wr=lambda jj: f"ds_read_b128 v[{WF[s]+4*jj}:{WF[s]+4*jj+3}], v{vw5 if jj==5 else vw} offset:{(j%2)*WSLOT+(t*7+jj)*1024}"
        return [xr(0)]+[wr(jj) for jj in range(7)]+[xr(b) for b in range(1,4)]
    def mfmas(s,first,inter):
        inter=list(inter)
        for b in range(4):
            for jj in range(7):
                a=acc(b,jj); c = "0" if first else f"v[{a}:{a+3}]"
                E(f"v_mfma_f32_16x16x32_bf16 v[{a}:{a+3}], v[{XF[s]+4*b}:{XF[s]+4*b+3}], v[{WF[s]+4*jj}:{WF[s]+4*jj+3}], {c}")
                if inter: E(inter.pop(0))
        assert not inter
    def bump():
        if cfg.NX in (2,4):
            return [f"v_add_u32 v{vx0}, {XSLOT}, v{vx0}", f"v_and_b32 v{vx0}, {cfg.NX*XSLOT-1}, v{vx0}", f"v_xor_b32 v{vx1}, 64, v{vx0}"]
        raise NotImplementedError
    def phase(j):
        if cfg.stamps==2: E("s_memtime s[72:73]")
        if j==0:
            for r in reads(0,0): E(r)
        else: mfmas(1,False,reads(j,0))
        E("s_waitcnt lgkmcnt(0)")
        if cfg.stamps==2: E("s_sub_u32 s72, s72, s60"); E(f"v_writelane_b32 v250, s72, {j}")
        mfmas(0,j==0,reads(j,1)+bump())
        E("s_waitcnt lgkmcnt(0)")
        if j<NST-1: E("s_barrier")
    phase(0)
    if cfg.loop:
        E("s_mov_b32 s44, 7")
        E(".p2align 6"); E("L_c_loop:")
        phase(1); phase(2)
        E("s_sub_u32 s44, s44, 1"); E("s_cmp_lg_u32 s44, 0"); E("s_cbranch_scc1 L_c_loop")
        phase(15)
    else:
        for j in range(1,NST): phase(j)
    mfmas(1,False,[])
    stamp(E,cfg,3)
    E("s_nop 7")
    T=216; ti=0
    E("s_mov_b32 s36, 0")
    for b in range(4):
        for r in range(4):
            t=T+(ti%8)*4; ti+=1
            E(f"v_cvt_pk_bf16_f32 v{t}, v{acc(b,0)+r}, v{acc(b,1)+r}")
            E(f"v_cvt_pk_bf16_f32 v{t+1}, v{acc(b,2)+r}, v{acc(b,3)+r}")
            E(f"v_cvt_pk_bf16_f32 v{t+2}, v{acc(b,4)+r}, v{acc(b,5)+r}")
            E(f"v_cvt_pk_bf16_f32 v{t+3}, v{acc(b,6)+r}, v{acc(b,6)+r}")
            E(f"buffer_store_dwordx2 v[{t}:{t+1}], v8, s[24:27], s36 offen {cfg.stpol}")
            E(f"buffer_store_dword v{t+2}, v9, s[24:27], s36 offen {cfg.stpol}")
            E(f"buffer_store_short v{t+3}, v10, s[24:27], s36 offen offset:64 {cfg.stpol}")
            if not (b==3 and r==3): E(f"s_add_u32 s36, s36, {OROW if r<3 else OROW*13}")
    if cfg.stamps or cfg.enc: stamp(E,cfg,4); E("s_waitcnt vmcnt(0)")
    finish(E,cfg,True)

def ablate(L,cfg):
    R=[]
    for x in L:
        if 'V' in cfg.abl and (x.startswith("v_fma_f32") or (x.startswith("v_mul_f32") and "0x" not in x and int(x.split()[1][1:-1])>=64) or (x.startswith("v_cvt_pk") and int(x.split()[1][1:-1])<64)): continue
        if 'X' in cfg.abl and x.endswith(" lds"): continue
        if 'W' in cfg.abl and x.startswith("buffer_load") and "s[20:23]" in x: continue
        if 'M' in cfg.abl and x.startswith("v_mfma"): continue
        if 'D' in cfg.abl and x.startswith("ds_write") and "v10," not in x: continue
        if 'R' in cfg.abl and x.startswith("ds_read") and int(x.split()[1][2:].split(":")[0])>=128: continue
        if 'S' in cfg.abl and x.startswith("buffer_store") and "s[24:27]" in x: continue
        R.append(x)
    return R
def generate(cfg):
    out=[header(cfg)]
    E=Emit(); common_prologue(E,cfg)
    E("s_bitcmp1_b32 s28, 0"); E("s_cbranch_scc1 L_prod1")
    out+=E.L
    E=Emit(); producer(E,cfg,0); out+=E.L
    E=Emit(); E("L_prod1:"); producer(E,cfg,1); out+=E.L
    E=Emit(); consumer(E,cfg); out+=E.L
    out.append("L_exit:"); out.append("s_endpgm"); out.append("L_codeend:")
    return "\n".join(ablate(out,cfg))+footer(cfg)

if __name__=="__main__":
    kw={}
    for a in sys.argv[2:]:
        k,v=a.split("="); kw[k]=v.replace("_"," ") if k in ("xcd","stpol","abl","enc") else int(v)
    open(sys.argv[1],"w").write(generate(Cfg(**kw)))
```

```python
import sys
KN = "standalone__weight_only_int_omniquant__prompt_kernel"
M, K, N = 2048, 1024, 3584
QROW = N*4
OROW = N*2
NST = 16
XSLOT = 32768
WSLOT = 14336

class Cfg:
    def __init__(s, **kw):
        s.NX = 4; s.XL = 2
        s.RW = 4; s.LW = 2
        s.stamps = 0; s.xcd = "8x4"; s.prio = 1; s.pprio = 0; s.codepf = 2; s.loop = 1
        s.spin = 0; s.stpol = ''; s.abl = ''
        s.g = 2; s.g2 = 2; s.start = 0; s.xrot = 2; s.swap = 1; s.dfirst = 1; s.xfirst = 1; s.tailv = 0
        s.enc = ''
        s.__dict__.update(kw)
        if s.stamps==2: s.loop=0
        s.WBASE = s.NX*XSLOT
        s.ABASE = s.WBASE + 2*WSLOT
        s.LDS = s.ABASE + 4096

def order(o, hi, cfg):
    if cfg.g==0: return list(range(NST))
    def key(s):
        if s%4==o and s>=cfg.start:
            g = cfg.g2 if ((s>>2)&1)==hi else cfg.g
            return s-g-0.5
        return s
    return sorted(range(NST), key=key)
def table(o,hi,cfg):
    v=0
    for i,s in enumerate(order(o,hi,cfg)): v|=s<<(4*i)
    return v

class Emit:
    def __init__(s): s.L=[]; s.vm=[]
    def __call__(s, x): s.L.append(x)
    def vmem(s, x, tag): s.L.append(x); s.vm.append(tag)
    def waitvm(s, tag, extra=""):
        idx=[i for i,t in enumerate(s.vm) if t==tag]
        n=(len(s.vm)-1-idx[-1]) if idx else 63
        n=min(n,63)
        s.L.append(f"s_waitcnt vmcnt({n}){extra}")
        return n

def stamp(E, cfg, i):
    if cfg.stamps or cfg.enc: E(f"s_memtime s[{60+2*i}:{61+2*i}]")

def header(cfg):
    return f"""; Fused int4-weight dequant + bf16 GEMM: out[2048,3584] = (x*act) @ ((qw-z)*s); one 256x112 tile per workgroup.
; @launch grid=(256,1,1) block=(512,1,1) lds={cfg.LDS}
.amdgcn_target "amdgcn-amd-amdhsa--gfx950"
.text
.globl {KN}
.p2align 8
.type {KN},@function
{KN}:
"""
def footer(cfg):
    return f"""
.section .rodata,"a"
.p2align 6
.amdhsa_kernel {KN}
  .amdhsa_next_free_vgpr 256
  .amdhsa_next_free_sgpr 96
  .amdhsa_accum_offset 256
  .amdhsa_group_segment_fixed_size 0
  .amdhsa_kernarg_size 64
  .amdhsa_user_sgpr_count 2
  .amdhsa_user_sgpr_kernarg_segment_ptr 1
  .amdhsa_system_sgpr_workgroup_id_x 1
  .amdhsa_float_denorm_mode_32 3
.end_amdhsa_kernel
"""
def common_prologue(E, cfg):
    if cfg.spin or cfg.enc: E("s_memrealtime s[80:81]")
    if cfg.stamps: E("s_memrealtime s[76:77]")
    stamp(E,cfg,0)
    E("s_cmp_ge_u32 s2, 256"); E("s_cbranch_scc1 L_exit")
    E("s_load_dwordx4 s[4:7], s[0:1], 0")
    E("s_load_dwordx4 s[8:11], s[0:1], 16")
    E("s_load_dwordx4 s[12:15], s[0:1], 32")
    if cfg.stamps: E("s_load_dwordx2 s[58:59], s[0:1], 56")
    E("v_lshrrev_b32 v1, 6, v0")
    E("v_and_b32 v2, 63, v0")
    E("v_readfirstlane_b32 s28, v1")
    if cfg.xcd=="8x4":
        E("s_bfe_u32 s29, s2, 0x30003")
        E("s_and_b32 s45, s2, 7"); E("s_lshl_b32 s30, s45, 2"); E("s_lshr_b32 s31, s2, 6"); E("s_add_u32 s30, s30, s31")
        E("s_add_u32 s46, s29, s31"); E("s_and_b32 s46, s46, 3"); E("s_and_b32 s47, s29, 4"); E("s_or_b32 s46, s46, s47")
    elif cfg.xcd=="4x8":
        E("s_and_b32 s45, s2, 7")
        E("s_bfe_u32 s29, s2, 0x20003"); E("s_lshr_b32 s30, s2, 5"); E("s_add_u32 s46, s29, s30"); E("s_and_b32 s46, s46, 3"); E("s_and_b32 s47, s30, 4"); E("s_or_b32 s46, s46, s47")
        E("s_and_b32 s31, s2, 1"); E("s_lshl_b32 s31, s31, 2"); E("s_add_u32 s29, s29, s31")
        E("s_bfe_u32 s31, s2, 0x20001"); E("s_lshl_b32 s31, s31, 3"); E("s_add_u32 s30, s30, s31")
    E("v_and_b32 v3, 15, v0")
    E("v_bfe_u32 v1, v0, 4, 2")
    E("s_lshl_b32 s32, s29, 19")
    E("s_mul_i32 s33, s30, 448")
    E(f"s_mul_i32 s34, s29, {256*OROW}")
    E("s_mul_i32 s35, s30, 224")
    E("s_add_u32 s34, s34, s35")
    if cfg.swap:
        E("s_bitcmp1_b32 s30, 0"); E("s_cselect_b32 s37, 48, 0"); E("s_cselect_b32 s38, 0, 64")
    else:
        E("s_mov_b32 s37, 0"); E("s_mov_b32 s38, 64")
    E("s_cmp_ge_u32 s28, 4")
    E("s_cbranch_scc0 L_consumer")

def build_srd(E, base, ptr, off, size):
    E(f"s_add_u32 s{base}, s{ptr}, s{off}"); E(f"s_addc_u32 s{base+1}, s{ptr+1}, 0")
    E(f"s_sub_u32 s{base+2}, {size}, s{off}"); E(f"s_mov_b32 s{base+3}, 0x20000")

def nextstage(E, cfg, pair, dst):
    if cfg.xrot:
        E(f"s_add_u32 s{dst}, s{pair}, s45"); E(f"s_and_b32 s{dst}, s{dst}, 15")
    else: E(f"s_and_b32 s{dst}, s{pair}, 15")
    E(f"s_lshr_b64 s[{pair}:{pair+1}], s[{pair}:{pair+1}], 4")

def producer(E, cfg, h):
    nc = 4 if h==0 else 3
    setsz = 8*4
    RAW0 = 64
    OUT, AV, SV, ZV = 32, (48,56), 16, 20
    vq, vxe, vxo, va = 4,5,6,9
    vw = (7,) if h==0 else (7,8,11)
    ndma = 8
    def raw(st,e,j): return RAW0 + (st%cfg.RW)*setsz + e*4 + j
    E("s_bfe_u32 s31, s28, 0x10001")
    ncls = 8 if cfg.g2!=cfg.g else 4
    if ncls==4: E("s_and_b32 s46, s46, 3")
    tabs=[table(o&3,o>>2,cfg) for o in range(ncls)]
    E(f"s_mov_b32 s52, {tabs[0]&0xffffffff:#x}"); E(f"s_mov_b32 s53, {tabs[0]>>32:#x}")
    if cfg.g:
        for o in range(1,ncls):
            E(f"s_cmp_eq_u32 s46, {o}"); E(f"s_cselect_b32 s52, {tabs[o]&0xffffffff:#x}, s52"); E(f"s_cselect_b32 s53, {tabs[o]>>32:#x}, s53")
    E("s_mov_b64 s[54:55], s[52:53]"); E("s_mov_b64 s[56:57], s[52:53]")
    if cfg.xrot: E(f"s_mul_i32 s45, s45, {cfg.xrot}")
    E("s_lshl_b32 s36, s31, 5")
    E("v_lshl_add_u32 v10, v1, 3, s36")
    E(f"v_mul_u32_u24 v10, {QROW}, v10")
    E(f"s_lshl_b32 s42, s{37+h}, 2")
    if h==0: E("v_lshl_add_u32 v4, v3, 4, v10")
    else:
        E("v_mul_u32_u24 v4, 12, v3"); E("v_add_u32 v4, v4, v10")
    E("v_add_u32 v4, s42, v4")
    E("v_lshrrev_b32 v10, 3, v2"); E("v_and_b32 v12, 7, v2"); E("v_xor_b32 v12, v12, v1")
    E("v_lshlrev_b32 v12, 4, v12"); E("v_lshl_add_u32 v5, v10, 11, v12"); E("v_xor_b32 v6, 64, v5")
    E(f"s_lshl_b32 s42, s{37+h}, 1"); E("s_add_u32 s42, s42, s35")
    if h==0: E("v_lshl_add_u32 v10, v3, 3, s42")
    else:
        E("v_mul_u32_u24 v10, 6, v3"); E("v_add_u32 v10, s42, v10")
    E("s_sub_u32 s42, s28, 4")
    E("s_lshl_b32 s39, s42, 13")
    E("s_lshl_b32 s41, s42, 17")
    E("s_waitcnt lgkmcnt(0)")
    build_srd(E,20,6,33,K*QROW)
    build_srd(E,16,4,32,M*K*2)
    def wstart():
        nextstage(E,cfg,52,36); E(f"s_mul_i32 s36, s36, {64*QROW}")
    def wload(st,e):
        r=raw(st,e,0)
        if h==0: E.vmem(f"buffer_load_dwordx4 v[{r}:{r+3}], v{vq}, s[20:23], s36 offen", ("W",st))
        else: E.vmem(f"buffer_load_dwordx3 v[{r}:{r+2}], v{vq}, s[20:23], s36 offen", ("W",st))
        if e<7: E(f"s_add_u32 s36, s36, {QROW}")
    def xstart():
        nextstage(E,cfg,54,40); E("s_lshl_b32 s40, s40, 7"); E("s_add_u32 s40, s40, s41")
    def xdma(st,i):
        if i%4==0:
            E(f"s_add_u32 m0, s39, {(st%cfg.NX)*XSLOT + i*1024}")
            E("s_nop 0")
        E.vmem(f"buffer_load_dwordx4 v{vxe if i%2==0 else vxo}, s[16:19], s40 offen offset:{(i%4)*1024} lds", ("X",st))
        if i<ndma-1: E(f"s_add_u32 s40, s40, {16384-1024 if i%4<3 else 16384+3072}")
    def aread(st):
        nextstage(E,cfg,56,42); E("s_lshl_b32 s42, s42, 8"); E(f"v_add_u32 v12, s42, v{va}")
        a=AV[st%2]
        E(f"ds_read_b128 v[{a}:{a+3}], v12"); E(f"ds_read_b128 v[{a+4}:{a+7}], v12 offset:16")
    wstart()
    for e in range(8): wload(0,e)
    if h==0:
        E.vmem("global_load_dwordx2 v[24:25], v10, s[8:9]", "SZ")
        E.vmem("global_load_dwordx2 v[26:27], v10, s[10:11]", "SZ")
    else:
        for j in range(3): E.vmem(f"global_load_ushort v{24+j}, v10, s[8:9] offset:{2*j}", "SZ")
        for j in range(3): E.vmem(f"global_load_ushort v{28+j}, v10, s[10:11] offset:{2*j}", "SZ")
    for st in range(max(cfg.LW, cfg.XL-1)):
        if st<cfg.XL-1:
            xstart()
            for i in range(ndma): xdma(st,i)
        if st+1<cfg.LW:
            wstart()
            for e in range(8): wload(st+1,e)
    E("s_mul_i32 s42, s31, 7168"); E(f"s_add_u32 s42, s42, {cfg.WBASE}")
    if h==0: E("v_lshl_add_u32 v7, v2, 4, s42")
    else:
        for j in range(3):
            E(f"v_mul_u32_u24 v12, 3, v3"); E(f"v_add_u32 v12, {j}, v12")
            E("v_and_b32 v13, 1, v12"); E("v_lshrrev_b32 v14, 1, v12"); E("v_lshlrev_b32 v15, 2, v13"); E("v_xor_b32 v14, v14, v15")
            E("v_lshlrev_b32 v14, 4, v14"); E("v_lshl_add_u32 v14, v13, 10, v14")
            E("v_subrev_u32 v15, 32, v12"); E("v_lshlrev_b32 v15, 4, v15"); E("v_add_u32 v15, 2048, v15")
            E("v_cmp_gt_u32 vcc, 32, v12"); E("s_nop 1"); E("v_cndmask_b32 v14, v15, v14, vcc")
            E("v_lshl_add_u32 v14, v1, 8, v14"); E("v_add_u32 v14, 4096, v14"); E(f"v_add_u32 v{vw[j]}, s42, v14")
    E("s_lshl_b32 s43, s31, 7"); E(f"s_add_u32 s43, s43, {cfg.ABASE}")
    E("v_lshl_add_u32 v9, v1, 5, s43")
    stamp(E,cfg,1)
    E("s_barrier")
    aread(0)
    E.waitvm("SZ")
    if h==0:
        for j in range(4):
            for (src,dst) in ((24,SV),(26,ZV)):
                if j%2==0: E(f"v_lshlrev_b32 v{dst+j}, 16, v{src+j//2}")
                else: E(f"v_and_b32 v{dst+j}, 0xffff0000, v{src+j//2}")
    else:
        for j in range(3):
            E(f"v_lshlrev_b32 v{SV+j}, 16, v{24+j}"); E(f"v_lshlrev_b32 v{ZV+j}, 16, v{28+j}")
    for j in range(nc):
        E(f"v_mul_f32 v{ZV+j}, v{ZV+j}, v{SV+j}")
        E(f"v_mul_f32 v{SV+j}, 0x71800000, v{SV+j}")
        E(f"v_mul_f32 v{ZV+j}, 0x27000000, v{ZV+j}")
    if cfg.pprio: E(f"s_setprio {cfg.pprio}")
    def phase(j):
        st=j+1
        xs=j+cfg.XL; ws=st+cfg.LW
        do_x = xs<NST
        do_w = ws<NST
        a=AV[st%2]
        mem=[]
        xi=[(lambda i=i: ((xstart() if i==0 else None), xdma(xs,i))) for i in range(ndma)] if do_x else []
        wi=[(lambda e=e: ((wstart() if e==0 else None), wload(ws,e))) for e in range(8)] if do_w else []
        if cfg.xfirst==1: mem=xi+wi
        elif cfg.xfirst==0: mem=wi+xi
        else:
            mem=[]
            while xi or wi:
                if xi: mem.append(xi.pop(0))
                if wi: mem.append(wi.pop(0))
        for _ in range(cfg.dfirst):
            if mem: mem.pop(0)()
        E.waitvm(("W",st), " lgkmcnt(0)")
        if st+1<NST: aread(st+1)
        sl=(st%2)*WSLOT
        work=[]
        for jj in range(nc):
            for half in range(2):
                for e in range(4*half,4*half+4):
                    r=raw(st,e,jj); work.append(f"v_fma_f32 v{r}, v{r}, v{SV+jj}, -v{ZV+jj}")
                for e in range(4*half,4*half+4):
                    r=raw(st,e,jj); work.append(f"v_mul_f32 v{r}, v{r}, v{a+e}")
                for p in (2*half,2*half+1):
                    work.append(f"v_cvt_pk_bf16_f32 v{OUT+4*jj+p}, v{raw(st,2*p,jj)}, v{raw(st,2*p+1,jj)}")
            if h==0: work.append(f"ds_write_b128 v{vw[0]}, v[{OUT+4*jj}:{OUT+4*jj+3}] offset:{sl+jj*1024}")
            else: work.append(f"ds_write_b128 v{vw[jj]}, v[{OUT+4*jj}:{OUT+4*jj+3}] offset:{sl}")
        nm=len(mem)-cfg.tailv if len(mem)>cfg.tailv else len(mem)
        nw=len(work); done=0
        for i,w in enumerate(work):
            E(w)
            while done<nm and (i+1)*(nm+1) >= (done+1)*nw: mem.pop(0)(); done+=1
        while mem: mem.pop(0)()
        E.waitvm(("X",st), " lgkmcnt(0)")
        E("s_barrier")
    U=4
    last_full = min(NST-1-cfg.XL, NST-2-cfg.LW)
    phase(-1)
    jn=0
    if cfg.loop:
        n=(last_full+1)//U
        if n>=2:
            E(f"s_mov_b32 s44, {n}")
            lab=f"L_p{h}_loop"
            start=len(E.L)
            bodies=[]
            for it in range(n):
                mark=len(E.L)
                for j in range(it*U,(it+1)*U): phase(j)
                bodies.append(E.L[mark:]); del E.L[mark:]
            merged=[]
            for tup in zip(*bodies):
                if len(set(tup))==1: merged.append(tup[0])
                else:
                    assert all(x.startswith("s_waitcnt vmcnt") for x in tup), tup
                    merged.append(min(tup,key=lambda x:int(x.split("(")[1].split(")")[0])))
            assert len(set(len(b) for b in bodies))==1
            E(".p2align 6"); E(lab+":")
            E.L.extend(merged)
            E("s_sub_u32 s44, s44, 1"); E("s_cmp_lg_u32 s44, 0"); E(f"s_cbranch_scc1 {lab}")
            jn=n*U
    for j in range(jn,NST-1): phase(j)
    finish(E,cfg,False)

def finish(E,cfg,cons):
    if cfg.enc and cons:
        a,b,amp=cfg.enc.split(":")
        E("s_waitcnt vmcnt(0)"); stamp(E,cfg,5); E("s_waitcnt lgkmcnt(0)")
        E(f"s_sub_u32 s84, s{60+2*int(b)}, s{60+2*int(a)}"); E(f"s_lshr_b32 s84, s84, {amp}"); E(f"s_add_u32 s84, s84, 5000")
    elif cfg.spin or cfg.enc: E(f"s_mov_b32 s84, {cfg.spin if cfg.spin else 100}")
    if cfg.spin or cfg.enc:
        lab=f"L_spin{len(E.L)}"
        E("s_waitcnt vmcnt(0)")
        E(lab+":"); E("s_memrealtime s[82:83]"); E("s_waitcnt lgkmcnt(0)"); E("s_sub_u32 s82, s82, s80")
        E(f"s_cmp_lt_u32 s82, s84"); E(f"s_cbranch_scc1 {lab}")
    if cfg.stamps:
        stamp(E,cfg,5)
        E("s_memrealtime s[78:79]")
        E("s_waitcnt lgkmcnt(0)")
        E("s_mov_b32 s48, s58"); E("s_mov_b32 s49, s59"); E("s_mov_b32 s50, 0x1000000"); E("s_mov_b32 s51, 0x20000")
        E("s_lshl_b32 s52, s2, 3"); E("s_add_u32 s52, s52, s28"); E("s_lshl_b32 s52, s52, 5")
        E("v_mov_b32 v10, s76"); E("v_mov_b32 v11, s78")
        for i,r in enumerate((62,64,66,68,70)):
            E(f"s_sub_u32 s{r}, s{r}, s60"); E(f"v_mov_b32 v{12+i}, s{r}")
        E("s_getreg_b32 s53, hwreg(HW_REG_HW_ID)"); E("v_mov_b32 v17, s53")
        E("v_mov_b32 v9, s52")
        E("s_mov_b64 exec, 1")
        E("buffer_store_dwordx4 v[10:13], v9, s[48:51], 0 offen")
        E("buffer_store_dwordx4 v[14:17], v9, s[48:51], 0 offen offset:16")
        if cfg.stamps==2 and cons:
            E("s_mov_b64 exec, 0xffff"); E("s_lshl_b32 s52, s2, 3"); E("s_add_u32 s52, s52, s28"); E("s_lshl_b32 s52, s52, 6"); E("s_add_u32 s52, s52, 0x10000")
            E("v_and_b32 v9, 63, v0"); E("v_lshlrev_b32 v9, 2, v9"); E("v_add_u32 v9, s52, v9")
            E("buffer_store_dword v250, v9, s[48:51], 0 offen")
    E("s_endpgm")

def consumer(E,cfg):
    ACC=16; XF=(128,144); WF=(160,188)
    vx0,vx1,vw,vw5=4,5,6,7
    def acc(b,j): return ACC+(b*7+j)*4
    E("L_consumer:")
    E("v_lshlrev_b32 v10, 3, v0")
    E("s_waitcnt lgkmcnt(0)")
    E.vmem("global_load_dwordx2 v[12:13], v10, s[12:13]","A")
    if cfg.codepf:
        E("s_getpc_b64 s[44:45]"); E("L_pc:")
        E(f"s_sub_u32 s44, s44, L_pc-{KN}"); E("s_subb_u32 s45, s45, 0")
        E(f"s_mov_b32 s46, L_codeend-{KN}"); E("s_mov_b32 s47, 0x20000")
        if cfg.codepf==1:
            E("v_lshlrev_b32 v11, 6, v0")
            E.vmem("buffer_load_dword v14, v11, s[44:47], 0 offen","PF")
        else:
            E("s_lshr_b32 s43, s2, 3"); E("s_lshl_b32 s43, s43, 10"); E("v_lshlrev_b32 v11, 6, v0"); E("v_add_u32 v14, s43, v11")
            E("v_cmp_gt_u32 vcc, 16, v0"); E("s_nop 1"); E("v_cndmask_b32 v11, -1, v14, vcc")
            E.vmem("buffer_load_dword v14, v11, s[44:47], 0 offen","PF")
    build_srd(E,24,14,34,M*OROW)
    E("v_lshrrev_b32 v11, 1, v3"); E("v_xor_b32 v11, v11, v1"); E("v_lshlrev_b32 v11, 4, v11")
    E("s_lshl_b32 s36, s28, 13")
    E("v_lshl_add_u32 v11, v3, 7, v11"); E("v_add_u32 v4, s36, v11"); E("v_xor_b32 v5, 64, v4")
    E(f"v_lshlrev_b32 v6, 4, v2"); E(f"v_add_u32 v6, {cfg.WBASE}, v6"); E("v_xor_b32 v7, 64, v6")
    E(f"v_lshlrev_b32 v10, 4, v0"); E(f"v_add_u32 v10, {cfg.ABASE}, v10")
    E.waitvm("A")
    E("v_lshlrev_b32 v16, 16, v12"); E("v_and_b32 v17, 0xffff0000, v12"); E("v_lshlrev_b32 v18, 16, v13"); E("v_and_b32 v19, 0xffff0000, v13")
    for i in range(4): E(f"v_mul_f32 v{16+i}, 0x58000000, v{16+i}")
    E("ds_write_b128 v10, v[16:19]")
    E("s_lshl_b32 s36, s28, 6"); E("v_lshl_add_u32 v11, v1, 2, s36"); E(f"v_mul_u32_u24 v11, {OROW}, v11")
    E("s_lshl_b32 s37, s37, 1"); E("s_lshl_b32 s38, s38, 1")
    E("v_lshl_add_u32 v8, v3, 3, v11"); E("v_lshl_add_u32 v9, v3, 2, v11"); E("v_lshl_add_u32 v10, v3, 1, v11")
    E("v_add_u32 v8, s37, v8"); E("v_add_u32 v9, s38, v9"); E("v_add_u32 v10, s38, v10")
    if cfg.prio: E(f"s_setprio {cfg.prio}")
    stamp(E,cfg,1)
    E("s_waitcnt lgkmcnt(0)")
    E("s_barrier")
    E("s_barrier")
    stamp(E,cfg,2)
    def reads(j,t):
        s=t; va = vx0 if t==0 else vx1
        xr=lambda b: f"ds_read_b128 v[{XF[s]+4*b}:{XF[s]+4*b+3}], v{va} offset:{b*2048}"
        wr=lambda jj: f"ds_read_b128 v[{WF[s]+4*jj}:{WF[s]+4*jj+3}], v{vw5 if jj==5 else vw} offset:{(j%2)*WSLOT+(t*7+jj)*1024}"
        return [xr(0)]+[wr(jj) for jj in range(7)]+[xr(b) for b in range(1,4)]
    def mfmas(s,first,inter):
        inter=list(inter)
        for b in range(4):
            for jj in range(7):
                a=acc(b,jj); c = "0" if first else f"v[{a}:{a+3}]"
                E(f"v_mfma_f32_16x16x32_bf16 v[{a}:{a+3}], v[{XF[s]+4*b}:{XF[s]+4*b+3}], v[{WF[s]+4*jj}:{WF[s]+4*jj+3}], {c}")
                if inter: E(inter.pop(0))
        assert not inter
    def bump():
        if cfg.NX in (2,4):
            return [f"v_add_u32 v{vx0}, {XSLOT}, v{vx0}", f"v_and_b32 v{vx0}, {cfg.NX*XSLOT-1}, v{vx0}", f"v_xor_b32 v{vx1}, 64, v{vx0}"]
        raise NotImplementedError
    def phase(j):
        if cfg.stamps==2: E("s_memtime s[72:73]")
        if j==0:
            for r in reads(0,0): E(r)
        else: mfmas(1,False,reads(j,0))
        E("s_waitcnt lgkmcnt(0)")
        if cfg.stamps==2: E("s_sub_u32 s72, s72, s60"); E(f"v_writelane_b32 v250, s72, {j}")
        mfmas(0,j==0,reads(j,1)+bump())
        E("s_waitcnt lgkmcnt(0)")
        if j<NST-1: E("s_barrier")
    phase(0)
    if cfg.loop:
        E("s_mov_b32 s44, 7")
        E(".p2align 6"); E("L_c_loop:")
        phase(1); phase(2)
        E("s_sub_u32 s44, s44, 1"); E("s_cmp_lg_u32 s44, 0"); E("s_cbranch_scc1 L_c_loop")
        phase(15)
    else:
        for j in range(1,NST): phase(j)
    mfmas(1,False,[])
    stamp(E,cfg,3)
    E("s_nop 7")
    T=216; ti=0
    E("s_mov_b32 s36, 0")
    for b in range(4):
        for r in range(4):
            t=T+(ti%8)*4; ti+=1
            E(f"v_cvt_pk_bf16_f32 v{t}, v{acc(b,0)+r}, v{acc(b,1)+r}")
            E(f"v_cvt_pk_bf16_f32 v{t+1}, v{acc(b,2)+r}, v{acc(b,3)+r}")
            E(f"v_cvt_pk_bf16_f32 v{t+2}, v{acc(b,4)+r}, v{acc(b,5)+r}")
            E(f"v_cvt_pk_bf16_f32 v{t+3}, v{acc(b,6)+r}, v{acc(b,6)+r}")
            E(f"buffer_store_dwordx2 v[{t}:{t+1}], v8, s[24:27], s36 offen {cfg.stpol}")
            E(f"buffer_store_dword v{t+2}, v9, s[24:27], s36 offen {cfg.stpol}")
            E(f"buffer_store_short v{t+3}, v10, s[24:27], s36 offen offset:64 {cfg.stpol}")
            if not (b==3 and r==3): E(f"s_add_u32 s36, s36, {OROW if r<3 else OROW*13}")
    if cfg.stamps or cfg.enc: stamp(E,cfg,4); E("s_waitcnt vmcnt(0)")
    finish(E,cfg,True)

def ablate(L,cfg):
    R=[]
    for x in L:
        if 'V' in cfg.abl and (x.startswith("v_fma_f32") or (x.startswith("v_mul_f32") and "0x" not in x and int(x.split()[1][1:-1])>=64) or (x.startswith("v_cvt_pk") and int(x.split()[1][1:-1])<64)): continue
        if 'X' in cfg.abl and x.endswith(" lds"): continue
        if 'W' in cfg.abl and x.startswith("buffer_load") and "s[20:23]" in x: continue
        if 'M' in cfg.abl and x.startswith("v_mfma"): continue
        if 'D' in cfg.abl and x.startswith("ds_write") and "v10," not in x: continue
        if 'R' in cfg.abl and x.startswith("ds_read") and int(x.split()[1][2:].split(":")[0])>=128: continue
        if 'S' in cfg.abl and x.startswith("buffer_store") and "s[24:27]" in x: continue
        R.append(x)
    return R
def generate(cfg):
    out=[header(cfg)]
    E=Emit(); common_prologue(E,cfg)
    E("s_bitcmp1_b32 s28, 0"); E("s_cbranch_scc1 L_prod1")
    out+=E.L
    E=Emit(); producer(E,cfg,0); out+=E.L
    E=Emit(); E("L_prod1:"); producer(E,cfg,1); out+=E.L
    E=Emit(); consumer(E,cfg); out+=E.L
    out.append("L_exit:"); out.append("s_endpgm"); out.append("L_codeend:")
    return "\n".join(ablate(out,cfg))+footer(cfg)

if __name__=="__main__":
    kw={}
    for a in sys.argv[2:]:
        k,v=a.split("="); kw[k]=v.replace("_"," ") if k in ("xcd","stpol","abl","enc") else int(v)
    open(sys.argv[1],"w").write(generate(Cfg(**kw)))
```

```python
import sys
KN = "standalone__weight_only_int_omniquant__prompt_kernel"
M, K, N = 2048, 1024, 3584
QROW = N*4
OROW = N*2
NST = 16
XSLOT = 32768
WSLOT = 16384
NWG = 224

class Cfg:
    def __init__(s, **kw):
        s.NX = 3; s.XL = 2
        s.RW = 4; s.LW = 2; s.U = 4
        s.stamps = 0; s.prio = 1; s.pprio = 0; s.codepf = 1; s.loop = 1
        s.spin = 0; s.stpol = 'sc1'; s.abl = ''
        s.g = 1; s.g2 = 2; s.start = 0; s.xrot = 0; s.dfirst = 2; s.xfirst = 2; s.tailv = 4
        s.wpos = ''; s.snake = 1; s.tail = 1; s.tb = 5; s.cvt = 0
        s.__dict__.update(kw)
        s.WBASE = s.NX*XSLOT
        s.ABASE = s.WBASE + 2*WSLOT
        s.LDS = s.ABASE + 4096

def order(o, hi, cfg):
    if cfg.g==0: return list(range(NST))
    def key(s):
        if s%4==o and s>=cfg.start:
            g = cfg.g2 if ((s>>2)&1)==hi else cfg.g
            return s-g-0.5
        return s
    return sorted(range(NST), key=key)
def table(o,hi,cfg):
    v=0
    for i,s in enumerate(order(o,hi,cfg)): v|=s<<(4*i)
    return v

class Emit:
    def __init__(s): s.L=[]; s.vm=[]
    def __call__(s, x): s.L.append(x)
    def vmem(s, x, tag): s.L.append(x); s.vm.append(tag)
    def waitvm(s, tag, extra=""):
        idx=[i for i,t in enumerate(s.vm) if t==tag]
        n=(len(s.vm)-1-idx[-1]) if idx else 63
        n=min(n,63)
        s.L.append(f"s_waitcnt vmcnt({n}){extra}")
        return n

def stamp(E, cfg, i):
    if cfg.stamps: E(f"s_memtime s[{60+2*i}:{61+2*i}]")

def header(cfg):
    return f"""; Fused int4-weight dequant + bf16 GEMM: out[2048,3584] = (x*act) @ ((qw-z)*s); one 256x128 tile per workgroup.
; Waves 0-3 multiply (v_mfma 32x32x16, operands from LDS); waves 4-7 stream x into LDS (LDS-DMA) and turn qw into bf16.
; @launch grid=({NWG},1,1) block=(512,1,1) lds={cfg.LDS}
.amdgcn_target "amdgcn-amd-amdhsa--gfx950"
.text
.globl {KN}
.p2align 8
.type {KN},@function
{KN}:
"""
def footer(cfg):
    return f"""
.section .rodata,"a"
.p2align 6
.amdhsa_kernel {KN}
  .amdhsa_next_free_vgpr 256
  .amdhsa_next_free_sgpr 96
  .amdhsa_accum_offset 256
  .amdhsa_group_segment_fixed_size 0
  .amdhsa_kernarg_size 64
  .amdhsa_user_sgpr_count 2
  .amdhsa_user_sgpr_kernarg_segment_ptr 1
  .amdhsa_system_sgpr_workgroup_id_x 1
  .amdhsa_float_denorm_mode_32 3
.end_amdhsa_kernel
"""
def common_prologue(E, cfg):
    if cfg.spin: E("s_memrealtime s[80:81]")
    if cfg.stamps: E("s_memrealtime s[76:77]")
    stamp(E,cfg,0)
    E(f"s_cmp_ge_u32 s2, {NWG}"); E("s_cbranch_scc1 L_exit")
    E("s_load_dwordx4 s[4:7], s[0:1], 0")
    E("s_load_dwordx4 s[12:15], s[0:1], 32")
    E("s_load_dwordx4 s[8:11], s[0:1], 16")
    if cfg.stamps: E("s_load_dwordx2 s[58:59], s[0:1], 56")
    E("v_lshrrev_b32 v1, 6, v0")
    E("v_and_b32 v2, 63, v0")
    E("v_readfirstlane_b32 s28, v1")
    E("s_and_b32 s45, s2, 7")
    E("s_lshr_b32 s47, s2, 3")
    E("s_lshr_b32 s30, s47, 2")
    E("s_lshr_b32 s31, s45, 1"); E("s_mul_i32 s31, s31, 7"); E("s_add_u32 s31, s30, s31")
    E("s_and_b32 s29, s47, 3")
    E("v_and_b32 v3, 31, v0")
    E("v_bfe_u32 v1, v0, 5, 1")
    E("s_cmp_ge_u32 s28, 4")
    E("s_cbranch_scc0 L_consumer")

def bm_full(E):
    E("s_and_b32 s42, s2, 1"); E("s_lshl_b32 s42, s42, 2"); E("s_add_u32 s29, s29, s42")

def build_srd(E, base, ptr, off, size):
    E(f"s_add_u32 s{base}, s{ptr}, s{off}"); E(f"s_addc_u32 s{base+1}, s{ptr+1}, 0")
    E(f"s_sub_u32 s{base+2}, {size}, s{off}"); E(f"s_mov_b32 s{base+3}, 0x20000")

def nextstage(E, cfg, pair, dst):
    if cfg.xrot:
        E(f"s_add_u32 s{dst}, s{pair}, s45"); E(f"s_and_b32 s{dst}, s{dst}, 15")
    else: E(f"s_and_b32 s{dst}, s{pair}, 15")
    E(f"s_lshr_b64 s[{pair}:{pair+1}], s[{pair}:{pair+1}], 4")

def ring_advance(cfg, r):
    return [f"s_add_u32 s{r}, s{r}, {XSLOT}", f"s_cmp_eq_u32 s{r}, {cfg.NX*XSLOT}", f"s_cselect_b32 s{r}, 0, s{r}"]

def loopify(E, phase, j0, n, U, lab):
    E(f"s_mov_b32 s44, {n}")
    bodies=[]
    for it in range(n):
        mark=len(E.L)
        for j in range(j0+it*U,j0+(it+1)*U): phase(j)
        bodies.append(E.L[mark:]); del E.L[mark:]
    assert len(set(len(b) for b in bodies))==1
    merged=[]
    for tup in zip(*bodies):
        if len(set(tup))==1: merged.append(tup[0])
        else:
            assert all(x.startswith("s_waitcnt vmcnt") for x in tup), tup
            merged.append(min(tup,key=lambda x:int(x.split("(")[1].split(")")[0])))
    E(".p2align 6"); E(lab+":")
    E.L.extend(merged)
    E("s_sub_u32 s44, s44, 1"); E("s_cmp_lg_u32 s44, 0"); E(f"s_cbranch_scc1 {lab}")

def producer(E, cfg):
    RAW0 = 64
    OUT, AV, SV, ZV = 32, (48,56), 16, 20
    VQ, VX, vw, va = 200, 208, 7, 9
    def raw(st,e,j): return RAW0 + (st%cfg.RW)*32 + e*4 + j
    tabs=[table(o&3,o>>2,cfg) for o in range(8)]
    first=0
    for o in range(8): first|=(tabs[o]&15)<<(4*o)
    E("s_sub_u32 s31, s28, 4") if False else None
    E("s_add_u32 s46, s29, s30"); E("s_and_b32 s46, s46, 3"); E("s_and_b32 s42, s30, 4"); E("s_or_b32 s46, s46, s42")
    if cfg.xrot: E(f"s_mul_i32 s45, s45, {cfg.xrot}")
    E("s_lshl_b32 s42, s46, 2"); E(f"s_lshr_b32 s37, {first:#x}, s42")
    if cfg.xrot: E("s_add_u32 s37, s37, s45")
    E("s_and_b32 s37, s37, 15")
    E("s_lshl_b32 s33, s31, 9")
    E("s_lshl_b32 s35, s31, 8")
    E("s_sub_u32 s31, s28, 4")
    E("s_lshl_b32 s36, s31, 4")
    E("v_lshl_add_u32 v10, v1, 3, s36")
    E(f"v_mul_u32_u24 v10, {QROW}, v10")
    E(f"v_lshl_add_u32 v{VQ}, v3, 4, v10")
    for e in range(1,8): E(f"v_add_u32 v{VQ+e}, {e*QROW}, v{VQ}")
    E(f"s_mul_i32 s36, s37, {64*QROW}")
    E("s_waitcnt lgkmcnt(0)")
    stamp(E,cfg,1)
    build_srd(E,20,6,33,K*QROW)
    def wstart():
        nextstage(E,cfg,52,36); E(f"s_mul_i32 s36, s36, {64*QROW}")
    def wload(st,e):
        r=raw(st,e,0)
        E.vmem(f"buffer_load_dwordx4 v[{r}:{r+3}], v{VQ+e}, s[20:23], s36 offen", ("W",st))
    def xaddr():
        E("s_lshl_b32 s40, s40, 7"); E("s_add_u32 s40, s40, s41"); E("s_add_u32 s43, s39, s38")
        for x in ring_advance(cfg,38): E(x)
    def xstart():
        nextstage(E,cfg,54,40); xaddr()
    def xdma(st,i):
        if i==0: E("s_mov_b32 m0, s43")
        if i==4: E("s_add_u32 m0, s43, 4096")
        if i%4==0: E("s_nop 0")
        E.vmem(f"buffer_load_dwordx4 v{VX+i}, s[16:19], s40 offen offset:{(i%4)*1024} lds", ("X",st))
    def aread(st):
        nextstage(E,cfg,56,42); E("s_lshl_b32 s42, s42, 8"); E(f"v_add_u32 v12, s42, v{va}")
        a=AV[st%2]
        E(f"ds_read_b128 v[{a}:{a+3}], v12"); E(f"ds_read_b128 v[{a+4}:{a+7}], v12 offset:16")
    for e in range(8): wload(0,e)
    E("v_lshl_add_u32 v10, v3, 3, s35")
    E.vmem("global_load_dwordx2 v[24:25], v10, s[8:9]", "SZ")
    E.vmem("global_load_dwordx2 v[26:27], v10, s[10:11]", "SZ")
    bm_full(E); E("s_lshl_b32 s32, s29, 19")
    build_srd(E,16,4,32,M*K*2)
    E("v_lshrrev_b32 v10, 3, v2"); E("v_and_b32 v12, 7, v2"); E("v_lshrrev_b32 v13, 4, v2"); E("v_xor_b32 v12, v12, v13")
    E("v_lshlrev_b32 v12, 4, v12"); E(f"v_lshl_add_u32 v{VX}, v10, 11, v12"); E(f"v_xor_b32 v{VX+1}, 64, v{VX}")
    for i in range(7,1,-1): E(f"v_add_u32 v{VX+i}, {i*16384-(i%4)*1024}, v{VX+i%2}")
    E(f"v_add_u32 v{VX+1}, {16384-1024}, v{VX+1}")
    E("s_lshl_b32 s39, s31, 13"); E("s_lshl_b32 s41, s31, 17"); E("s_mov_b32 s38, 0")
    E("s_mov_b32 s40, s37"); xaddr()
    for i in range(8): xdma(0,i)
    E(f"s_mov_b32 s56, {tabs[0]&0xffffffff:#x}"); E(f"s_mov_b32 s57, {tabs[0]>>32:#x}")
    for o in range(1,8):
        if tabs[o]!=tabs[0]:
            E(f"s_cmp_eq_u32 s46, {o}"); E(f"s_cselect_b32 s56, {tabs[o]&0xffffffff:#x}, s56"); E(f"s_cselect_b32 s57, {tabs[o]>>32:#x}, s57")
    E("s_lshr_b64 s[52:53], s[56:57], 4"); E("s_lshr_b64 s[54:55], s[56:57], 4")
    for st in range(1,max(cfg.LW, cfg.XL-1)):
        if st<cfg.LW:
            wstart()
            for e in range(8): wload(st,e)
        if st<cfg.XL-1:
            xstart()
            for i in range(8): xdma(st,i)
    E("s_lshl_b32 s42, s31, 12"); E(f"s_add_u32 s42, s42, {cfg.WBASE}")
    E(f"v_lshl_add_u32 v{vw}, v2, 4, s42")
    E("s_lshl_b32 s42, s31, 6"); E(f"s_add_u32 s42, s42, {cfg.ABASE}")
    E(f"v_lshl_add_u32 v{va}, v1, 5, s42")
    xstart(); wstart()
    stamp(E,cfg,2)
    E("s_barrier")
    stamp(E,cfg,3)
    aread(0)
    E.waitvm("SZ")
    for j in range(4):
        for (src,dst) in ((24,SV),(26,ZV)):
            if j%2==0: E(f"v_lshlrev_b32 v{dst+j}, 16, v{src+j//2}")
            else: E(f"v_and_b32 v{dst+j}, 0xffff0000, v{src+j//2}")
    for j in range(4):
        E(f"v_mul_f32 v{ZV+j}, v{ZV+j}, v{SV+j}")
        if cfg.cvt:
            E(f"v_mul_f32 v{SV+j}, 1.0, v{SV+j}")
        else:
            E(f"v_mul_f32 v{SV+j}, 0x71800000, v{SV+j}")
            E(f"v_mul_f32 v{ZV+j}, 0x27000000, v{ZV+j}")
    if cfg.pprio: E(f"s_setprio {cfg.pprio}")
    def phase(j):
        st=j+1
        xs=j+cfg.XL; ws=st+cfg.LW
        a=AV[st%2]
        xi=[(lambda i=i: xdma(xs,i)) for i in range(8)] if xs<NST else []
        wi=[(lambda e=e: wload(ws,e)) for e in range(8)] if ws<NST else []
        if cfg.xfirst==1: mem=xi+wi
        elif cfg.xfirst==0: mem=wi+xi
        else:
            mem=[]
            while xi or wi:
                if xi: mem.append(xi.pop(0))
                if wi: mem.append(wi.pop(0))
        for _ in range(cfg.dfirst if j>=0 else 0):
            if mem: mem.pop(0)()
        E.waitvm(("W",st), " lgkmcnt(0)")
        if j==-1: stamp(E,cfg,4)
        if st+1<NST: aread(st+1)
        sl=(st%2)*WSLOT
        work=[]; wr=[]
        for jj in range(4):
            for half in range(2):
                rs=range(4*half,4*half+4)
                if cfg.cvt:
                    for e in rs: r=raw(st,e,jj); work.append(f"v_cvt_f32_i32 v{r}, v{r}")
                for e in rs: r=raw(st,e,jj); work.append(f"v_fma_f32 v{r}, v{r}, v{SV+jj}, -v{ZV+jj}")
                for e in rs: r=raw(st,e,jj); work.append(f"v_mul_f32 v{r}, v{r}, v{a+e}")
                for p in (2*half,2*half+1):
                    work.append(f"v_cvt_pk_bf16_f32 v{OUT+4*jj+p}, v{raw(st,2*p,jj)}, v{raw(st,2*p+1,jj)}")
            wr.append(f"ds_write_b128 v{vw}, v[{OUT+4*jj}:{OUT+4*jj+3}] offset:{sl+jj*1024}")
        per=len(work)//4
        pos=[int(x)*per//20 for x in cfg.wpos.split()] if (cfg.wpos and mem) else [per,2*per,3*per,4*per]
        for jj in (3,2,1,0):
            assert pos[jj]>=per*(jj+1)
            work.insert(pos[jj],wr[jj])
        nm=len(mem)-cfg.tailv if len(mem)>cfg.tailv else len(mem)
        nw=len(work); done=0
        for i,w in enumerate(work):
            E(w)
            while done<nm and (i+1)*(nm+1) >= (done+1)*nw: mem.pop(0)(); done+=1
        while mem: mem.pop(0)()
        if xs+1<NST: xstart()
        if ws+1<NST: wstart()
        E.waitvm(("X",st), " lgkmcnt(0)")
        E("s_barrier")
    U=cfg.U
    assert U%cfg.RW==0 and U%2==0
    last_full = min(NST-1-cfg.XL, NST-2-cfg.LW) - 1
    phase(-1)
    jn=0
    if cfg.loop:
        n=(last_full+1)//U
        if n>=2:
            loopify(E,phase,0,n,U,"L_p_loop"); jn=n*U
    for j in range(jn,NST-1): phase(j)
    finish(E,cfg,False)

def finish(E,cfg,cons):
    if cfg.spin:
        lab=f"L_spin{len(E.L)}"
        E("s_waitcnt vmcnt(0)")
        E(lab+":"); E("s_memrealtime s[82:83]"); E("s_waitcnt lgkmcnt(0)"); E("s_sub_u32 s82, s82, s80")
        E(f"s_cmp_lt_u32 s82, {cfg.spin}"); E(f"s_cbranch_scc1 {lab}")
    if cfg.stamps:
        stamp(E,cfg,5)
        E("s_memrealtime s[78:79]")
        E("s_waitcnt lgkmcnt(0)")
        E("s_mov_b32 s48, s58"); E("s_mov_b32 s49, s59"); E("s_mov_b32 s50, 0x1000000"); E("s_mov_b32 s51, 0x20000")
        E("s_lshl_b32 s52, s2, 3"); E("s_add_u32 s52, s52, s28"); E("s_lshl_b32 s52, s52, 5")
        E("v_mov_b32 v10, s76"); E("v_mov_b32 v11, s78")
        for i,r in enumerate((62,64,66,68,70)):
            E(f"s_sub_u32 s{r}, s{r}, s60"); E(f"v_mov_b32 v{12+i}, s{r}")
        E("s_getreg_b32 s53, hwreg(HW_REG_HW_ID)"); E("v_mov_b32 v17, s53")
        E("v_mov_b32 v9, s52")
        E("s_mov_b64 exec, 1")
        E("buffer_store_dwordx4 v[10:13], v9, s[48:51], 0 offen")
        E("buffer_store_dwordx4 v[14:17], v9, s[48:51], 0 offen offset:16")
        if cfg.stamps==2 and cons:
            E("s_mov_b64 exec, 0xffff"); E("s_lshl_b32 s52, s2, 3"); E("s_add_u32 s52, s52, s28"); E("s_lshl_b32 s52, s52, 6"); E("s_add_u32 s52, s52, 0x10000")
            E("v_and_b32 v9, 63, v0"); E("v_lshlrev_b32 v9, 2, v9"); E("v_add_u32 v9, s52, v9")
            E("buffer_store_dword v250, v9, s[48:51], 0 offen")
    E("s_endpgm")

def consumer(E,cfg):
    ACC=16; XF=(144,152); WF=(160,176)
    vxb=(4,5,6,7); vx=(192,193,194,195); vw=8; vo=9
    T=216
    def acc(b,j): return ACC+(b*4+j)*16
    E("L_consumer:")
    E("v_lshlrev_b32 v10, 3, v0")
    E("s_waitcnt lgkmcnt(0)")
    E.vmem("global_load_dwordx2 v[12:13], v10, s[12:13]","A")
    if cfg.codepf:
        E("s_getpc_b64 s[48:49]"); E("L_pc:")
        E(f"s_sub_u32 s48, s48, L_pc-{KN}"); E("s_subb_u32 s49, s49, 0")
        E(f"s_mov_b32 s50, L_codeend-{KN}"); E("s_mov_b32 s51, 0x20000")
        E("s_lshl_b32 s43, s47, 9"); E("v_lshlrev_b32 v11, 6, v0"); E("v_add_u32 v14, s43, v11")
        E("v_cmp_gt_u32 vcc, 8, v0"); E("s_nop 1"); E("v_cndmask_b32 v11, -1, v14, vcc")
        E.vmem("buffer_load_dword v14, v11, s[48:51], 0 offen","PF")
    bm_full(E)
    E(f"s_mul_i32 s34, s29, {256*OROW}"); E("s_lshl_b32 s35, s31, 8"); E("s_add_u32 s34, s34, s35")
    build_srd(E,24,14,34,M*OROW)
    E("v_bfe_u32 v11, v3, 1, 3"); E("v_xor_b32 v11, v11, v1"); E("v_lshlrev_b32 v11, 4, v11")
    E("s_lshl_b32 s36, s28, 13")
    E("v_lshl_add_u32 v11, v3, 7, v11"); E("v_add_u32 v4, s36, v11")
    for u in range(1,4): E(f"v_xor_b32 v{vxb[u]}, {32*u}, v4")
    for u in range(4): E(f"v_mov_b32 v{vx[u]}, v{vxb[u]}")
    E(f"v_lshlrev_b32 v{vw}, 4, v2"); E(f"v_add_u32 v{vw}, {cfg.WBASE}, v{vw}")
    E(f"v_lshlrev_b32 v10, 4, v0"); E(f"v_add_u32 v10, {cfg.ABASE}, v10")
    E("s_mov_b32 s38, 0")
    E.waitvm("A")
    E("v_lshlrev_b32 v16, 16, v12"); E("v_and_b32 v17, 0xffff0000, v12"); E("v_lshlrev_b32 v18, 16, v13"); E("v_and_b32 v19, 0xffff0000, v13")
    if not cfg.cvt:
        for i in range(4): E(f"v_mul_f32 v{16+i}, 0x58000000, v{16+i}")
    E("ds_write_b128 v10, v[16:19]")
    E("s_lshl_b32 s36, s28, 6"); E("v_lshl_add_u32 v11, v1, 2, s36"); E(f"v_mul_u32_u24 v11, {OROW}, v11")
    E(f"v_lshl_add_u32 v{vo}, v3, 3, v11")
    if cfg.prio: E(f"s_setprio {cfg.prio}")
    stamp(E,cfg,1)
    if cfg.stamps==2: E("s_mov_b32 s75, 0")
    E("s_waitcnt lgkmcnt(0)")
    E("s_barrier")
    E("s_barrier")
    stamp(E,cfg,2)
    def reads(j,u):
        s=u%2
        xr=lambda b: f"ds_read_b128 v[{XF[s]+4*b}:{XF[s]+4*b+3}], v{vx[u]} offset:{b*4096}"
        wr=lambda jj: f"ds_read_b128 v[{WF[s]+4*jj}:{WF[s]+4*jj+3}], v{vw} offset:{(j%2)*WSLOT+(u*4+jj)*1024}"
        return [xr(0)]+[wr(jj) for jj in range(4)]+[xr(1)]
    def mfma(a,xa,wa,first=False):
        c = "0" if first else f"v[{a}:{a+15}]"
        E(f"v_mfma_f32_32x32x16_bf16 v[{a}:{a+15}], v[{xa}:{xa+3}], v[{wa}:{wa+3}], {c}")
    def mfmas(s,first,inter,per=1):
        inter=list(inter)
        for b in range(2):
            for jj in (range(4) if (b==0 or not cfg.snake) else range(3,-1,-1)):
                mfma(acc(b,jj),XF[s]+4*b,WF[s]+4*jj,first)
                for _ in range(per):
                    if inter: E(inter.pop(0))
        for x in inter: E(x)
    def bump():
        return ring_advance(cfg,38)+[f"v_add_u32 v{vx[u]}, s38, v{vxb[u]}" for u in range(4)]
    def pstamp():
        if cfg.stamps==2:
            E("s_sub_u32 s72, s72, s60"); E("v_mov_b32 v251, s72"); E("v_cmp_eq_u32 vcc, s75, v2"); E("s_add_u32 s75, s75, 1"); E("s_nop 0"); E("v_cndmask_b32 v250, v250, v251, vcc")
    def phase(j):
        if cfg.stamps==2: E("s_memtime s[72:73]")
        if j==0:
            for r in reads(0,0): E(r)
        else: mfmas(1,False,reads(j,0))
        E("s_waitcnt lgkmcnt(0)")
        pstamp()
        mfmas(0,j==0,reads(j,1))
        E("s_waitcnt lgkmcnt(0)")
        mfmas(1,False,reads(j,2))
        E("s_waitcnt lgkmcnt(0)")
        mfmas(0,False,reads(j,3)+bump(),2)
        E("s_waitcnt lgkmcnt(0)")
        if j<NST-1: E("s_barrier")
    def store_ops(b):
        ops=[]
        for r in range(16):
            t=T+2*r
            ops.append(f"v_cvt_pk_bf16_f32 v{t}, v{acc(b,0)+r}, v{acc(b,1)+r}")
            ops.append(f"v_cvt_pk_bf16_f32 v{t+1}, v{acc(b,2)+r}, v{acc(b,3)+r}")
            row=32*b+8*(r>>2)+(r&3)
            ops.append(f"s_mov_b32 s36, {row*OROW}")
            ops.append(f"buffer_store_dwordx2 v[{t}:{t+1}], v{vo}, s[24:27], s36 offen {cfg.stpol}")
        return ops
    phase(0)
    last = NST-2 if cfg.tail else NST
    if cfg.loop:
        n=(last-1)//2
        loopify(E,phase,1,n,2,"L_c_loop")
        for j in range(1+2*n,last): phase(j)
    else:
        for j in range(1,last): phase(j)
    if not cfg.tail:
        mfmas(1,False,[])
        stamp(E,cfg,3)
        E("s_nop 7"); E("s_nop 7")
        for b in range(2):
            for x in store_ops(b): E(x)
    else:
        seq=[(14,0,u) for u in range(4)]+[(14,1,0)]+[(15,0,u) for u in range(4)]+[(14,1,u) for u in range(1,4)]+[(15,1,u) for u in range(4)]
        if cfg.tb==4: seq=[(14,0,u) for u in range(4)]+[(15,0,u) for u in range(4)]+[(14,1,u) for u in range(4)]+[(15,1,u) for u in range(4)]
        if cfg.tb==6: seq=[(14,0,u) for u in range(4)]+[(14,1,0),(14,1,1)]+[(15,0,u) for u in range(4)]+[(14,1,u) for u in range(2,4)]+[(15,1,u) for u in range(4)]
        first15=[i for i,h in enumerate(seq) if h[0]==15][0]
        doneb0=max(i for i,h in enumerate(seq) if h[1]==0)
        SX=(XF[0],196,XF[1]); SW=(WF[0],200,WF[1])
        s15=(15%cfg.NX)*XSLOT
        def hreads(i):
            (st,b,u)=seq[i]; k=i%3
            xa = vx[u] if st==14 else vxb[u]
            R=[f"ds_read_b128 v[{SX[k]}:{SX[k]+3}], v{xa} offset:{b*4096+(0 if st==14 else s15)}"]
            R+=[f"ds_read_b128 v[{SW[k]+4*jj}:{SW[k]+4*jj+3}], v{vw} offset:{(st%2)*WSLOT+(u*4+jj)*1024}" for jj in range(4)]
            return R
        assert s15+4096+0<65536
        if cfg.stamps==2: E("s_memtime s[72:73]")
        mfmas(1,False,hreads(0)+hreads(1),2)
        so=[]
        for i,(st,b,u) in enumerate(seq):
            k=i%3
            if i+2==first15:
                E("s_waitcnt lgkmcnt(5)"); E("s_barrier")
            elif i+1<len(seq): E(f"s_waitcnt lgkmcnt(5)")
            else: E("s_waitcnt lgkmcnt(0)")
            if i==0: pstamp()
            nxt=hreads(i+2) if i+2<len(seq) else []
            if i==doneb0+2: so=store_ops(0)
            left=len(seq)-i
            for jj in range(4):
                mfma(acc(b,jj),SX[k],SW[k]+4*jj)
                for _ in range(2 if jj==0 else 1):
                    if nxt: E(nxt.pop(0))
                if so:
                    slots=(left*4-jj)
                    n=-(-len(so)//slots)
                    for _ in range(n):
                        if so: E(so.pop(0))
            assert not nxt
        assert not so
        stamp(E,cfg,3)
        E("s_nop 7"); E("s_nop 7")
        for x in store_ops(1): E(x)
    if cfg.stamps: stamp(E,cfg,4); E("s_waitcnt vmcnt(0)")
    finish(E,cfg,True)

def ablate(L,cfg):
    R=[]
    for x in L:
        if 'V' in cfg.abl and (x.startswith("v_fma_f32") or (x.startswith("v_mul_f32") and "0x" not in x and int(x.split()[1][1:-1])>=64) or (x.startswith("v_cvt_pk") and int(x.split()[1][1:-1])<64)): continue
        if 'X' in cfg.abl and x.endswith(" lds"): continue
        if 'W' in cfg.abl and x.startswith("buffer_load") and "s[20:23]" in x: continue
        if 'M' in cfg.abl and x.startswith("v_mfma"): continue
        if 'D' in cfg.abl and x.startswith("ds_write") and "v10," not in x: continue
        if 'R' in cfg.abl and x.startswith("ds_read") and int(x.split()[1][2:].split(":")[0])>=128: continue
        if 'S' in cfg.abl and x.startswith("buffer_store") and "s[24:27]" in x: continue
        R.append(x)
    return R
def generate(cfg):
    out=[header(cfg)]
    E=Emit(); common_prologue(E,cfg); out+=E.L
    E=Emit(); producer(E,cfg); out+=E.L
    E=Emit(); consumer(E,cfg); out+=E.L
    out.append("L_exit:"); out.append("s_endpgm"); out.append("L_codeend:")
    return "\n".join(ablate(out,cfg))+footer(cfg)

if __name__=="__main__":
    kw={}
    for a in sys.argv[2:]:
        k,v=a.split("="); kw[k]=v.replace("_"," ") if k in ("stpol","abl","wpos") else int(v)
    open(sys.argv[1],"w").write(generate(Cfg(**kw)))
```

```python
import sys
KN = "standalone__weight_only_int_omniquant__prompt_kernel"
M, K, N = 2048, 1024, 3584
QROW = N*4
OROW = N*2
NST = 16
XSLOT = 32768
WSLOT = 16384
NWG = 224

class Cfg:
    def __init__(s, **kw):
        s.NX = 3; s.XL = 2
        s.RW = 4; s.LW = 2; s.U = 4
        s.stamps = 0; s.prio = 1; s.pprio = 0; s.codepf = 1; s.loop = 1
        s.spin = 0; s.stpol = 'sc1'; s.abl = ''
        s.g = 1; s.g2 = 2; s.start = 0; s.xrot = 0; s.dfirst = 2; s.xfirst = 2; s.tailv = 4
        s.wpos = ''; s.snake = 1; s.tail = 1; s.tb = 5; s.cvt = 0; s.enc = ''
        s.__dict__.update(kw)
        s.WBASE = s.NX*XSLOT
        s.ABASE = s.WBASE + 2*WSLOT
        s.LDS = s.ABASE + 4096

def order(o, hi, cfg):
    if cfg.g==0: return list(range(NST))
    def key(s):
        if s%4==o and s>=cfg.start:
            g = cfg.g2 if ((s>>2)&1)==hi else cfg.g
            return s-g-0.5
        return s
    return sorted(range(NST), key=key)
def table(o,hi,cfg):
    v=0
    for i,s in enumerate(order(o,hi,cfg)): v|=s<<(4*i)
    return v

class Emit:
    def __init__(s): s.L=[]; s.vm=[]
    def __call__(s, x): s.L.append(x)
    def vmem(s, x, tag): s.L.append(x); s.vm.append(tag)
    def waitvm(s, tag, extra=""):
        idx=[i for i,t in enumerate(s.vm) if t==tag]
        n=(len(s.vm)-1-idx[-1]) if idx else 63
        n=min(n,63)
        s.L.append(f"s_waitcnt vmcnt({n}){extra}")
        return n

def stamp(E, cfg, i):
    if cfg.stamps or cfg.enc: E(f"s_memtime s[{60+2*i}:{61+2*i}]")

def header(cfg):
    return f"""; Fused int4-weight dequant + bf16 GEMM: out[2048,3584] = (x*act) @ ((qw-z)*s); one 256x128 tile per workgroup.
; Waves 0-3 multiply (v_mfma 32x32x16, operands from LDS); waves 4-7 stream x into LDS (LDS-DMA) and turn qw into bf16.
; @launch grid=({NWG},1,1) block=(512,1,1) lds={cfg.LDS}
.amdgcn_target "amdgcn-amd-amdhsa--gfx950"
.text
.globl {KN}
.p2align 8
.type {KN},@function
{KN}:
"""
def footer(cfg):
    return f"""
.section .rodata,"a"
.p2align 6
.amdhsa_kernel {KN}
  .amdhsa_next_free_vgpr 256
  .amdhsa_next_free_sgpr 96
  .amdhsa_accum_offset 256
  .amdhsa_group_segment_fixed_size 0
  .amdhsa_kernarg_size 64
  .amdhsa_user_sgpr_count 2
  .amdhsa_user_sgpr_kernarg_segment_ptr 1
  .amdhsa_system_sgpr_workgroup_id_x 1
  .amdhsa_float_denorm_mode_32 3
.end_amdhsa_kernel
"""
def common_prologue(E, cfg):
    if cfg.spin or cfg.enc: E("s_memrealtime s[80:81]")
    if cfg.stamps: E("s_memrealtime s[76:77]")
    stamp(E,cfg,0)
    E(f"s_cmp_ge_u32 s2, {NWG}"); E("s_cbranch_scc1 L_exit")
    E("s_load_dwordx4 s[4:7], s[0:1], 0")
    E("s_load_dwordx4 s[12:15], s[0:1], 32")
    E("s_load_dwordx4 s[8:11], s[0:1], 16")
    if cfg.stamps: E("s_load_dwordx2 s[58:59], s[0:1], 56")
    E("v_lshrrev_b32 v1, 6, v0")
    E("v_and_b32 v2, 63, v0")
    E("v_readfirstlane_b32 s28, v1")
    E("s_and_b32 s45, s2, 7")
    E("s_lshr_b32 s47, s2, 3")
    E("s_lshr_b32 s30, s47, 2")
    E("s_lshr_b32 s31, s45, 1"); E("s_mul_i32 s31, s31, 7"); E("s_add_u32 s31, s30, s31")
    E("s_and_b32 s29, s47, 3")
    E("v_and_b32 v3, 31, v0")
    E("v_bfe_u32 v1, v0, 5, 1")
    E("s_cmp_ge_u32 s28, 4")
    E("s_cbranch_scc0 L_consumer")

def bm_full(E):
    E("s_and_b32 s42, s2, 1"); E("s_lshl_b32 s42, s42, 2"); E("s_add_u32 s29, s29, s42")

def build_srd(E, base, ptr, off, size):
    E(f"s_add_u32 s{base}, s{ptr}, s{off}"); E(f"s_addc_u32 s{base+1}, s{ptr+1}, 0")
    E(f"s_sub_u32 s{base+2}, {size}, s{off}"); E(f"s_mov_b32 s{base+3}, 0x20000")

def nextstage(E, cfg, pair, dst):
    if cfg.xrot:
        E(f"s_add_u32 s{dst}, s{pair}, s45"); E(f"s_and_b32 s{dst}, s{dst}, 15")
    else: E(f"s_and_b32 s{dst}, s{pair}, 15")
    E(f"s_lshr_b64 s[{pair}:{pair+1}], s[{pair}:{pair+1}], 4")

def ring_advance(cfg, r):
    return [f"s_add_u32 s{r}, s{r}, {XSLOT}", f"s_cmp_eq_u32 s{r}, {cfg.NX*XSLOT}", f"s_cselect_b32 s{r}, 0, s{r}"]

def loopify(E, phase, j0, n, U, lab):
    E(f"s_mov_b32 s44, {n}")
    bodies=[]
    for it in range(n):
        mark=len(E.L)
        for j in range(j0+it*U,j0+(it+1)*U): phase(j)
        bodies.append(E.L[mark:]); del E.L[mark:]
    assert len(set(len(b) for b in bodies))==1
    merged=[]
    for tup in zip(*bodies):
        if len(set(tup))==1: merged.append(tup[0])
        else:
            assert all(x.startswith("s_waitcnt vmcnt") for x in tup), tup
            merged.append(min(tup,key=lambda x:int(x.split("(")[1].split(")")[0])))
    E(".p2align 6"); E(lab+":")
    E.L.extend(merged)
    E("s_sub_u32 s44, s44, 1"); E("s_cmp_lg_u32 s44, 0"); E(f"s_cbranch_scc1 {lab}")

def producer(E, cfg):
    RAW0 = 64
    OUT, AV, SV, ZV = 32, (48,56), 16, 20
    VQ, VX, vw, va = 200, 208, 7, 9
    def raw(st,e,j): return RAW0 + (st%cfg.RW)*32 + e*4 + j
    tabs=[table(o&3,o>>2,cfg) for o in range(8)]
    first=0
    for o in range(8): first|=(tabs[o]&15)<<(4*o)
    E("s_sub_u32 s31, s28, 4") if False else None
    E("s_add_u32 s46, s29, s30"); E("s_and_b32 s46, s46, 3"); E("s_and_b32 s42, s30, 4"); E("s_or_b32 s46, s46, s42")
    if cfg.xrot: E(f"s_mul_i32 s45, s45, {cfg.xrot}")
    E("s_lshl_b32 s42, s46, 2"); E(f"s_lshr_b32 s37, {first:#x}, s42")
    if cfg.xrot: E("s_add_u32 s37, s37, s45")
    E("s_and_b32 s37, s37, 15")
    E("s_lshl_b32 s33, s31, 9")
    E("s_lshl_b32 s35, s31, 8")
    E("s_sub_u32 s31, s28, 4")
    E("s_lshl_b32 s36, s31, 4")
    E("v_lshl_add_u32 v10, v1, 3, s36")
    E(f"v_mul_u32_u24 v10, {QROW}, v10")
    E(f"v_lshl_add_u32 v{VQ}, v3, 4, v10")
    for e in range(1,8): E(f"v_add_u32 v{VQ+e}, {e*QROW}, v{VQ}")
    E(f"s_mul_i32 s36, s37, {64*QROW}")
    E("s_waitcnt lgkmcnt(0)")
    stamp(E,cfg,1)
    build_srd(E,20,6,33,K*QROW)
    def wstart():
        nextstage(E,cfg,52,36); E(f"s_mul_i32 s36, s36, {64*QROW}")
    def wload(st,e):
        r=raw(st,e,0)
        E.vmem(f"buffer_load_dwordx4 v[{r}:{r+3}], v{VQ+e}, s[20:23], s36 offen", ("W",st))
    def xaddr():
        E("s_lshl_b32 s40, s40, 7"); E("s_add_u32 s40, s40, s41"); E("s_add_u32 s43, s39, s38")
        for x in ring_advance(cfg,38): E(x)
    def xstart():
        nextstage(E,cfg,54,40); xaddr()
    def xdma(st,i):
        if i==0: E("s_mov_b32 m0, s43")
        if i==4: E("s_add_u32 m0, s43, 4096")
        if i%4==0: E("s_nop 0")
        E.vmem(f"buffer_load_dwordx4 v{VX+i}, s[16:19], s40 offen offset:{(i%4)*1024} lds", ("X",st))
    def aread(st):
        nextstage(E,cfg,56,42); E("s_lshl_b32 s42, s42, 8"); E(f"v_add_u32 v12, s42, v{va}")
        a=AV[st%2]
        E(f"ds_read_b128 v[{a}:{a+3}], v12"); E(f"ds_read_b128 v[{a+4}:{a+7}], v12 offset:16")
    for e in range(8): wload(0,e)
    E("v_lshl_add_u32 v10, v3, 3, s35")
    E.vmem("global_load_dwordx2 v[24:25], v10, s[8:9]", "SZ")
    E.vmem("global_load_dwordx2 v[26:27], v10, s[10:11]", "SZ")
    bm_full(E); E("s_lshl_b32 s32, s29, 19")
    build_srd(E,16,4,32,M*K*2)
    E("v_lshrrev_b32 v10, 3, v2"); E("v_and_b32 v12, 7, v2"); E("v_lshrrev_b32 v13, 4, v2"); E("v_xor_b32 v12, v12, v13")
    E("v_lshlrev_b32 v12, 4, v12"); E(f"v_lshl_add_u32 v{VX}, v10, 11, v12"); E(f"v_xor_b32 v{VX+1}, 64, v{VX}")
    for i in range(7,1,-1): E(f"v_add_u32 v{VX+i}, {i*16384-(i%4)*1024}, v{VX+i%2}")
    E(f"v_add_u32 v{VX+1}, {16384-1024}, v{VX+1}")
    E("s_lshl_b32 s39, s31, 13"); E("s_lshl_b32 s41, s31, 17"); E("s_mov_b32 s38, 0")
    E("s_mov_b32 s40, s37"); xaddr()
    for i in range(8): xdma(0,i)
    E(f"s_mov_b32 s56, {tabs[0]&0xffffffff:#x}"); E(f"s_mov_b32 s57, {tabs[0]>>32:#x}")
    for o in range(1,8):
        if tabs[o]!=tabs[0]:
            E(f"s_cmp_eq_u32 s46, {o}"); E(f"s_cselect_b32 s56, {tabs[o]&0xffffffff:#x}, s56"); E(f"s_cselect_b32 s57, {tabs[o]>>32:#x}, s57")
    E("s_lshr_b64 s[52:53], s[56:57], 4"); E("s_lshr_b64 s[54:55], s[56:57], 4")
    for st in range(1,max(cfg.LW, cfg.XL-1)):
        if st<cfg.LW:
            wstart()
            for e in range(8): wload(st,e)
        if st<cfg.XL-1:
            xstart()
            for i in range(8): xdma(st,i)
    E("s_lshl_b32 s42, s31, 12"); E(f"s_add_u32 s42, s42, {cfg.WBASE}")
    E(f"v_lshl_add_u32 v{vw}, v2, 4, s42")
    E("s_lshl_b32 s42, s31, 6"); E(f"s_add_u32 s42, s42, {cfg.ABASE}")
    E(f"v_lshl_add_u32 v{va}, v1, 5, s42")
    xstart(); wstart()
    stamp(E,cfg,2)
    E("s_barrier")
    stamp(E,cfg,3)
    aread(0)
    E.waitvm("SZ")
    for j in range(4):
        for (src,dst) in ((24,SV),(26,ZV)):
            if j%2==0: E(f"v_lshlrev_b32 v{dst+j}, 16, v{src+j//2}")
            else: E(f"v_and_b32 v{dst+j}, 0xffff0000, v{src+j//2}")
    for j in range(4):
        E(f"v_mul_f32 v{ZV+j}, v{ZV+j}, v{SV+j}")
        if cfg.cvt:
            E(f"v_mul_f32 v{SV+j}, 1.0, v{SV+j}")
        else:
            E(f"v_mul_f32 v{SV+j}, 0x71800000, v{SV+j}")
            E(f"v_mul_f32 v{ZV+j}, 0x27000000, v{ZV+j}")
    if cfg.pprio: E(f"s_setprio {cfg.pprio}")
    def phase(j):
        st=j+1
        xs=j+cfg.XL; ws=st+cfg.LW
        a=AV[st%2]
        xi=[(lambda i=i: xdma(xs,i)) for i in range(8)] if xs<NST else []
        wi=[(lambda e=e: wload(ws,e)) for e in range(8)] if ws<NST else []
        if cfg.xfirst==1: mem=xi+wi
        elif cfg.xfirst==0: mem=wi+xi
        else:
            mem=[]
            while xi or wi:
                if xi: mem.append(xi.pop(0))
                if wi: mem.append(wi.pop(0))
        for _ in range(cfg.dfirst if j>=0 else 0):
            if mem: mem.pop(0)()
        E.waitvm(("W",st), " lgkmcnt(0)")
        if j==-1: stamp(E,cfg,4)
        if st+1<NST: aread(st+1)
        sl=(st%2)*WSLOT
        work=[]; wr=[]
        for jj in range(4):
            for half in range(2):
                rs=range(4*half,4*half+4)
                if cfg.cvt:
                    for e in rs: r=raw(st,e,jj); work.append(f"v_cvt_f32_i32 v{r}, v{r}")
                for e in rs: r=raw(st,e,jj); work.append(f"v_fma_f32 v{r}, v{r}, v{SV+jj}, -v{ZV+jj}")
                for e in rs: r=raw(st,e,jj); work.append(f"v_mul_f32 v{r}, v{r}, v{a+e}")
                for p in (2*half,2*half+1):
                    work.append(f"v_cvt_pk_bf16_f32 v{OUT+4*jj+p}, v{raw(st,2*p,jj)}, v{raw(st,2*p+1,jj)}")
            wr.append(f"ds_write_b128 v{vw}, v[{OUT+4*jj}:{OUT+4*jj+3}] offset:{sl+jj*1024}")
        per=len(work)//4
        pos=[int(x)*per//20 for x in cfg.wpos.split()] if (cfg.wpos and mem) else [per,2*per,3*per,4*per]
        for jj in (3,2,1,0):
            assert pos[jj]>=per*(jj+1)
            work.insert(pos[jj],wr[jj])
        nm=len(mem)-cfg.tailv if len(mem)>cfg.tailv else len(mem)
        nw=len(work); done=0
        for i,w in enumerate(work):
            E(w)
            while done<nm and (i+1)*(nm+1) >= (done+1)*nw: mem.pop(0)(); done+=1
        while mem: mem.pop(0)()
        if xs+1<NST: xstart()
        if ws+1<NST: wstart()
        E.waitvm(("X",st), " lgkmcnt(0)")
        E("s_barrier")
    U=cfg.U
    assert U%cfg.RW==0 and U%2==0
    last_full = min(NST-1-cfg.XL, NST-2-cfg.LW) - 1
    phase(-1)
    jn=0
    if cfg.loop:
        n=(last_full+1)//U
        if n>=2:
            loopify(E,phase,0,n,U,"L_p_loop"); jn=n*U
    for j in range(jn,NST-1): phase(j)
    finish(E,cfg,False)

def finish(E,cfg,cons):
    if cfg.enc:
        role,a,b=cfg.enc.split(":")
        if (role=="c")==cons:
            E("s_waitcnt vmcnt(0)"); stamp(E,cfg,5); E("s_memrealtime s[82:83]"); E("s_waitcnt lgkmcnt(0)")
            if a=="r": E("s_sub_u32 s84, s82, s80")
            else: E(f"s_sub_u32 s84, s{60+2*int(b)}, s{60+2*int(a)}"); E("s_lshr_b32 s84, s84, 3")
            E("s_add_u32 s84, s84, 4000")
            lab=f"L_enc{len(E.L)}"
            E(lab+":"); E("s_memrealtime s[82:83]"); E("s_waitcnt lgkmcnt(0)"); E("s_sub_u32 s82, s82, s80")
            E(f"s_cmp_lt_u32 s82, s84"); E(f"s_cbranch_scc1 {lab}")
    if cfg.spin:
        lab=f"L_spin{len(E.L)}"
        E("s_waitcnt vmcnt(0)")
        E(lab+":"); E("s_memrealtime s[82:83]"); E("s_waitcnt lgkmcnt(0)"); E("s_sub_u32 s82, s82, s80")
        E(f"s_cmp_lt_u32 s82, {cfg.spin}"); E(f"s_cbranch_scc1 {lab}")
    if cfg.stamps:
        stamp(E,cfg,5)
        E("s_memrealtime s[78:79]")
        E("s_waitcnt lgkmcnt(0)")
        E("s_mov_b32 s48, s58"); E("s_mov_b32 s49, s59"); E("s_mov_b32 s50, 0x1000000"); E("s_mov_b32 s51, 0x20000")
        E("s_lshl_b32 s52, s2, 3"); E("s_add_u32 s52, s52, s28"); E("s_lshl_b32 s52, s52, 5")
        E("v_mov_b32 v10, s76"); E("v_mov_b32 v11, s78")
        for i,r in enumerate((62,64,66,68,70)):
            E(f"s_sub_u32 s{r}, s{r}, s60"); E(f"v_mov_b32 v{12+i}, s{r}")
        E("s_getreg_b32 s53, hwreg(HW_REG_HW_ID)"); E("v_mov_b32 v17, s53")
        E("v_mov_b32 v9, s52")
        E("s_mov_b64 exec, 1")
        E("buffer_store_dwordx4 v[10:13], v9, s[48:51], 0 offen")
        E("buffer_store_dwordx4 v[14:17], v9, s[48:51], 0 offen offset:16")
        if cfg.stamps==2 and cons:
            E("s_mov_b64 exec, 0xffff"); E("s_lshl_b32 s52, s2, 3"); E("s_add_u32 s52, s52, s28"); E("s_lshl_b32 s52, s52, 6"); E("s_add_u32 s52, s52, 0x10000")
            E("v_and_b32 v9, 63, v0"); E("v_lshlrev_b32 v9, 2, v9"); E("v_add_u32 v9, s52, v9")
            E("buffer_store_dword v250, v9, s[48:51], 0 offen")
    E("s_endpgm")

def consumer(E,cfg):
    ACC=16; XF=(144,152); WF=(160,176)
    vxb=(4,5,6,7); vx=(192,193,194,195); vw=8; vo=9
    T=216
    def acc(b,j): return ACC+(b*4+j)*16
    E("L_consumer:")
    E("v_lshlrev_b32 v10, 3, v0")
    E("s_waitcnt lgkmcnt(0)")
    E.vmem("global_load_dwordx2 v[12:13], v10, s[12:13]","A")
    if cfg.codepf:
        E("s_getpc_b64 s[48:49]"); E("L_pc:")
        E(f"s_sub_u32 s48, s48, L_pc-{KN}"); E("s_subb_u32 s49, s49, 0")
        E(f"s_mov_b32 s50, L_codeend-{KN}"); E("s_mov_b32 s51, 0x20000")
        E("s_lshl_b32 s43, s47, 9"); E("v_lshlrev_b32 v11, 6, v0"); E("v_add_u32 v14, s43, v11")
        E("v_cmp_gt_u32 vcc, 8, v0"); E("s_nop 1"); E("v_cndmask_b32 v11, -1, v14, vcc")
        E.vmem("buffer_load_dword v14, v11, s[48:51], 0 offen","PF")
    bm_full(E)
    E(f"s_mul_i32 s34, s29, {256*OROW}"); E("s_lshl_b32 s35, s31, 8"); E("s_add_u32 s34, s34, s35")
    build_srd(E,24,14,34,M*OROW)
    E("v_bfe_u32 v11, v3, 1, 3"); E("v_xor_b32 v11, v11, v1"); E("v_lshlrev_b32 v11, 4, v11")
    E("s_lshl_b32 s36, s28, 13")
    E("v_lshl_add_u32 v11, v3, 7, v11"); E("v_add_u32 v4, s36, v11")
    for u in range(1,4): E(f"v_xor_b32 v{vxb[u]}, {32*u}, v4")
    for u in range(4): E(f"v_mov_b32 v{vx[u]}, v{vxb[u]}")
    E(f"v_lshlrev_b32 v{vw}, 4, v2"); E(f"v_add_u32 v{vw}, {cfg.WBASE}, v{vw}")
    E(f"v_lshlrev_b32 v10, 4, v0"); E(f"v_add_u32 v10, {cfg.ABASE}, v10")
    E("s_mov_b32 s38, 0")
    E.waitvm("A")
    E("v_lshlrev_b32 v16, 16, v12"); E("v_and_b32 v17, 0xffff0000, v12"); E("v_lshlrev_b32 v18, 16, v13"); E("v_and_b32 v19, 0xffff0000, v13")
    if not cfg.cvt:
        for i in range(4): E(f"v_mul_f32 v{16+i}, 0x58000000, v{16+i}")
    E("ds_write_b128 v10, v[16:19]")
    E("s_lshl_b32 s36, s28, 6"); E("v_lshl_add_u32 v11, v1, 2, s36"); E(f"v_mul_u32_u24 v11, {OROW}, v11")
    E(f"v_lshl_add_u32 v{vo}, v3, 3, v11")
    if cfg.prio: E(f"s_setprio {cfg.prio}")
    stamp(E,cfg,1)
    if cfg.stamps==2: E("s_mov_b32 s75, 0")
    E("s_waitcnt lgkmcnt(0)")
    E("s_barrier")
    E("s_barrier")
    stamp(E,cfg,2)
    def reads(j,u):
        s=u%2
        xr=lambda b: f"ds_read_b128 v[{XF[s]+4*b}:{XF[s]+4*b+3}], v{vx[u]} offset:{b*4096}"
        wr=lambda jj: f"ds_read_b128 v[{WF[s]+4*jj}:{WF[s]+4*jj+3}], v{vw} offset:{(j%2)*WSLOT+(u*4+jj)*1024}"
        return [xr(0)]+[wr(jj) for jj in range(4)]+[xr(1)]
    def mfma(a,xa,wa,first=False):
        c = "0" if first else f"v[{a}:{a+15}]"
        E(f"v_mfma_f32_32x32x16_bf16 v[{a}:{a+15}], v[{xa}:{xa+3}], v[{wa}:{wa+3}], {c}")
    def mfmas(s,first,inter,per=1):
        inter=list(inter)
        for b in range(2):
            for jj in (range(4) if (b==0 or not cfg.snake) else range(3,-1,-1)):
                mfma(acc(b,jj),XF[s]+4*b,WF[s]+4*jj,first)
                for _ in range(per):
                    if inter: E(inter.pop(0))
        for x in inter: E(x)
    def bump():
        return ring_advance(cfg,38)+[f"v_add_u32 v{vx[u]}, s38, v{vxb[u]}" for u in range(4)]
    def pstamp():
        if cfg.stamps==2:
            E("s_sub_u32 s72, s72, s60"); E("v_mov_b32 v251, s72"); E("v_cmp_eq_u32 vcc, s75, v2"); E("s_add_u32 s75, s75, 1"); E("s_nop 0"); E("v_cndmask_b32 v250, v250, v251, vcc")
    def phase(j):
        if cfg.stamps==2: E("s_memtime s[72:73]")
        if j==0:
            for r in reads(0,0): E(r)
        else: mfmas(1,False,reads(j,0))
        E("s_waitcnt lgkmcnt(0)")
        pstamp()
        mfmas(0,j==0,reads(j,1))
        E("s_waitcnt lgkmcnt(0)")
        mfmas(1,False,reads(j,2))
        E("s_waitcnt lgkmcnt(0)")
        mfmas(0,False,reads(j,3)+bump(),2)
        E("s_waitcnt lgkmcnt(0)")
        if j<NST-1: E("s_barrier")
    def store_ops(b):
        ops=[]
        for r in range(16):
            t=T+2*r
            ops.append(f"v_cvt_pk_bf16_f32 v{t}, v{acc(b,0)+r}, v{acc(b,1)+r}")
            ops.append(f"v_cvt_pk_bf16_f32 v{t+1}, v{acc(b,2)+r}, v{acc(b,3)+r}")
            row=32*b+8*(r>>2)+(r&3)
            ops.append(f"s_mov_b32 s36, {row*OROW}")
            ops.append(f"buffer_store_dwordx2 v[{t}:{t+1}], v{vo}, s[24:27], s36 offen {cfg.stpol}")
        return ops
    phase(0)
    last = NST-2 if cfg.tail else NST
    if cfg.loop:
        n=(last-1)//2
        loopify(E,phase,1,n,2,"L_c_loop")
        for j in range(1+2*n,last): phase(j)
    else:
        for j in range(1,last): phase(j)
    if not cfg.tail:
        mfmas(1,False,[])
        stamp(E,cfg,3)
        E("s_nop 7"); E("s_nop 7")
        for b in range(2):
            for x in store_ops(b): E(x)
    else:
        seq=[(14,0,u) for u in range(4)]+[(14,1,0)]+[(15,0,u) for u in range(4)]+[(14,1,u) for u in range(1,4)]+[(15,1,u) for u in range(4)]
        if cfg.tb==4: seq=[(14,0,u) for u in range(4)]+[(15,0,u) for u in range(4)]+[(14,1,u) for u in range(4)]+[(15,1,u) for u in range(4)]
        if cfg.tb==6: seq=[(14,0,u) for u in range(4)]+[(14,1,0),(14,1,1)]+[(15,0,u) for u in range(4)]+[(14,1,u) for u in range(2,4)]+[(15,1,u) for u in range(4)]
        first15=[i for i,h in enumerate(seq) if h[0]==15][0]
        doneb0=max(i for i,h in enumerate(seq) if h[1]==0)
        SX=(XF[0],196,XF[1]); SW=(WF[0],200,WF[1])
        s15=(15%cfg.NX)*XSLOT
        def hreads(i):
            (st,b,u)=seq[i]; k=i%3
            xa = vx[u] if st==14 else vxb[u]
            R=[f"ds_read_b128 v[{SX[k]}:{SX[k]+3}], v{xa} offset:{b*4096+(0 if st==14 else s15)}"]
            R+=[f"ds_read_b128 v[{SW[k]+4*jj}:{SW[k]+4*jj+3}], v{vw} offset:{(st%2)*WSLOT+(u*4+jj)*1024}" for jj in range(4)]
            return R
        assert s15+4096+0<65536
        if cfg.stamps==2: E("s_memtime s[72:73]")
        mfmas(1,False,hreads(0)+hreads(1),2)
        so=[]
        for i,(st,b,u) in enumerate(seq):
            k=i%3
            if i+2==first15:
                E("s_waitcnt lgkmcnt(5)"); E("s_barrier")
            elif i+1<len(seq): E(f"s_waitcnt lgkmcnt(5)")
            else: E("s_waitcnt lgkmcnt(0)")
            if i==0: pstamp()
            nxt=hreads(i+2) if i+2<len(seq) else []
            if i==doneb0+2: so=store_ops(0)
            left=len(seq)-i
            for jj in range(4):
                mfma(acc(b,jj),SX[k],SW[k]+4*jj)
                for _ in range(2 if jj==0 else 1):
                    if nxt: E(nxt.pop(0))
                if so:
                    slots=(left*4-jj)
                    n=-(-len(so)//slots)
                    for _ in range(n):
                        if so: E(so.pop(0))
            assert not nxt
        assert not so
        stamp(E,cfg,3)
        E("s_nop 7"); E("s_nop 7")
        for x in store_ops(1): E(x)
    if cfg.stamps or cfg.enc: stamp(E,cfg,4); E("s_waitcnt vmcnt(0)")
    finish(E,cfg,True)

def ablate(L,cfg):
    R=[]
    for x in L:
        if 'V' in cfg.abl and (x.startswith("v_fma_f32") or (x.startswith("v_mul_f32") and "0x" not in x and int(x.split()[1][1:-1])>=64) or (x.startswith("v_cvt_pk") and int(x.split()[1][1:-1])<64)): continue
        if 'X' in cfg.abl and x.endswith(" lds"): continue
        if 'W' in cfg.abl and x.startswith("buffer_load") and "s[20:23]" in x: continue
        if 'M' in cfg.abl and x.startswith("v_mfma"): continue
        if 'D' in cfg.abl and x.startswith("ds_write") and "v10," not in x: continue
        if 'R' in cfg.abl and x.startswith("ds_read") and int(x.split()[1][2:].split(":")[0])>=128: continue
        if 'S' in cfg.abl and x.startswith("buffer_store") and "s[24:27]" in x: continue
        R.append(x)
    return R
def generate(cfg):
    out=[header(cfg)]
    E=Emit(); common_prologue(E,cfg); out+=E.L
    E=Emit(); producer(E,cfg); out+=E.L
    E=Emit(); consumer(E,cfg); out+=E.L
    out.append("L_exit:"); out.append("s_endpgm"); out.append("L_codeend:")
    return "\n".join(ablate(out,cfg))+footer(cfg)

if __name__=="__main__":
    kw={}
    for a in sys.argv[2:]:
        k,v=a.split("="); kw[k]=v.replace("_"," ") if k in ("stpol","abl","wpos","enc") else int(v)
    open(sys.argv[1],"w").write(generate(Cfg(**kw)))
```

```python
import sys
KN = "standalone__weight_only_int_omniquant__prompt_kernel"
M, K, N = 2048, 1024, 3584
QROW = N*4
OROW = N*2
NST = 16
XSLOT = 32768
WSLOT = 16384
NWG = 224

class Cfg:
    def __init__(s, **kw):
        s.NX = 3; s.XL = 2
        s.RW = 4; s.LW = 2; s.U = 4
        s.stamps = 0; s.prio = 1; s.pprio = 0; s.codepf = 1; s.loop = 1
        s.spin = 0; s.stpol = 'sc1'; s.abl = ''
        s.g = 1; s.g2 = 2; s.start = 0; s.xrot = 0; s.dfirst = 2; s.xfirst = 2; s.tailv = 4
        s.wpos = ''; s.snake = 1; s.tail = 1; s.tb = 5; s.cvt = 0; s.enc = ''; s.tlb = 0
        s.__dict__.update(kw)
        s.WBASE = s.NX*XSLOT
        s.ABASE = s.WBASE + 2*WSLOT
        s.LDS = s.ABASE + 4096

def order(o, hi, cfg):
    if cfg.g==0: return list(range(NST))
    def key(s):
        if s%4==o and s>=cfg.start:
            g = cfg.g2 if ((s>>2)&1)==hi else cfg.g
            return s-g-0.5
        return s
    return sorted(range(NST), key=key)
def table(o,hi,cfg):
    v=0
    for i,s in enumerate(order(o,hi,cfg)): v|=s<<(4*i)
    return v

class Emit:
    def __init__(s): s.L=[]; s.vm=[]
    def __call__(s, x): s.L.append(x)
    def vmem(s, x, tag): s.L.append(x); s.vm.append(tag)
    def waitvm(s, tag, extra=""):
        idx=[i for i,t in enumerate(s.vm) if t==tag]
        n=(len(s.vm)-1-idx[-1]) if idx else 63
        n=min(n,63)
        s.L.append(f"s_waitcnt vmcnt({n}){extra}")
        return n

def stamp(E, cfg, i):
    if cfg.stamps or cfg.enc: E(f"s_memtime s[{60+2*i}:{61+2*i}]")

def header(cfg):
    return f"""; Fused int4-weight dequant + bf16 GEMM: out[2048,3584] = (x*act) @ ((qw-z)*s); one 256x128 tile per workgroup.
; Waves 0-3 multiply (v_mfma 32x32x16, operands from LDS); waves 4-7 stream x into LDS (LDS-DMA) and turn qw into bf16.
; @launch grid=({NWG},1,1) block=(512,1,1) lds={cfg.LDS}
.amdgcn_target "amdgcn-amd-amdhsa--gfx950"
.text
.globl {KN}
.p2align 8
.type {KN},@function
{KN}:
"""
def footer(cfg):
    return f"""
.section .rodata,"a"
.p2align 6
.amdhsa_kernel {KN}
  .amdhsa_next_free_vgpr 256
  .amdhsa_next_free_sgpr 96
  .amdhsa_accum_offset 256
  .amdhsa_group_segment_fixed_size 0
  .amdhsa_kernarg_size 64
  .amdhsa_user_sgpr_count 2
  .amdhsa_user_sgpr_kernarg_segment_ptr 1
  .amdhsa_system_sgpr_workgroup_id_x 1
  .amdhsa_float_denorm_mode_32 3
.end_amdhsa_kernel
"""
def common_prologue(E, cfg):
    if cfg.spin or cfg.enc: E("s_memrealtime s[80:81]")
    if cfg.stamps: E("s_memrealtime s[76:77]")
    stamp(E,cfg,0)
    E(f"s_cmp_ge_u32 s2, {NWG}"); E("s_cbranch_scc1 L_exit")
    E("s_load_dwordx4 s[4:7], s[0:1], 0")
    E("s_load_dwordx4 s[12:15], s[0:1], 32")
    E("s_load_dwordx4 s[8:11], s[0:1], 16")
    if cfg.stamps: E("s_load_dwordx2 s[58:59], s[0:1], 56")
    E("v_lshrrev_b32 v1, 6, v0")
    E("v_and_b32 v2, 63, v0")
    E("v_readfirstlane_b32 s28, v1")
    E("s_and_b32 s45, s2, 7")
    E("s_lshr_b32 s47, s2, 3")
    E("s_lshr_b32 s30, s47, 2")
    E("s_lshr_b32 s31, s45, 1"); E("s_mul_i32 s31, s31, 7"); E("s_add_u32 s31, s30, s31")
    E("s_and_b32 s29, s47, 3")
    E("v_and_b32 v3, 31, v0")
    E("v_bfe_u32 v1, v0, 5, 1")
    E("s_cmp_ge_u32 s28, 4")
    E("s_cbranch_scc0 L_consumer")

def bm_full(E):
    E("s_and_b32 s42, s2, 1"); E("s_lshl_b32 s42, s42, 2"); E("s_add_u32 s29, s29, s42")

def build_srd(E, base, ptr, off, size):
    E(f"s_add_u32 s{base}, s{ptr}, s{off}"); E(f"s_addc_u32 s{base+1}, s{ptr+1}, 0")
    E(f"s_sub_u32 s{base+2}, {size}, s{off}"); E(f"s_mov_b32 s{base+3}, 0x20000")

def nextstage(E, cfg, pair, dst):
    if cfg.xrot:
        E(f"s_add_u32 s{dst}, s{pair}, s45"); E(f"s_and_b32 s{dst}, s{dst}, 15")
    else: E(f"s_and_b32 s{dst}, s{pair}, 15")
    E(f"s_lshr_b64 s[{pair}:{pair+1}], s[{pair}:{pair+1}], 4")

def ring_advance(cfg, r):
    return [f"s_add_u32 s{r}, s{r}, {XSLOT}", f"s_cmp_eq_u32 s{r}, {cfg.NX*XSLOT}", f"s_cselect_b32 s{r}, 0, s{r}"]

def loopify(E, phase, j0, n, U, lab):
    E(f"s_mov_b32 s44, {n}")
    bodies=[]
    for it in range(n):
        mark=len(E.L)
        for j in range(j0+it*U,j0+(it+1)*U): phase(j)
        bodies.append(E.L[mark:]); del E.L[mark:]
    assert len(set(len(b) for b in bodies))==1
    merged=[]
    for tup in zip(*bodies):
        if len(set(tup))==1: merged.append(tup[0])
        else:
            assert all(x.startswith("s_waitcnt vmcnt") for x in tup), tup
            merged.append(min(tup,key=lambda x:int(x.split("(")[1].split(")")[0])))
    E(".p2align 6"); E(lab+":")
    E.L.extend(merged)
    E("s_sub_u32 s44, s44, 1"); E("s_cmp_lg_u32 s44, 0"); E(f"s_cbranch_scc1 {lab}")

def producer(E, cfg):
    RAW0 = 64
    OUT, AV, SV, ZV = 32, (48,56), 16, 20
    VQ, VX, vw, va = 200, 208, 7, 9
    def raw(st,e,j): return RAW0 + (st%cfg.RW)*32 + e*4 + j
    tabs=[table(o&3,o>>2,cfg) for o in range(8)]
    first=0
    for o in range(8): first|=(tabs[o]&15)<<(4*o)
    E("s_sub_u32 s31, s28, 4") if False else None
    E("s_add_u32 s46, s29, s30"); E("s_and_b32 s46, s46, 3"); E("s_and_b32 s42, s30, 4"); E("s_or_b32 s46, s46, s42")
    if cfg.xrot: E(f"s_mul_i32 s45, s45, {cfg.xrot}")
    E("s_lshl_b32 s42, s46, 2"); E(f"s_lshr_b32 s37, {first:#x}, s42")
    if cfg.xrot: E("s_add_u32 s37, s37, s45")
    E("s_and_b32 s37, s37, 15")
    E("s_lshl_b32 s33, s31, 9")
    E("s_lshl_b32 s35, s31, 8")
    E("s_sub_u32 s31, s28, 4")
    E("s_lshl_b32 s36, s31, 4")
    E("v_lshl_add_u32 v10, v1, 3, s36")
    E(f"v_mul_u32_u24 v10, {QROW}, v10")
    E(f"v_lshl_add_u32 v{VQ}, v3, 4, v10")
    for e in range(1,8): E(f"v_add_u32 v{VQ+e}, {e*QROW}, v{VQ}")
    E(f"s_mul_i32 s36, s37, {64*QROW}")
    E("s_waitcnt lgkmcnt(0)")
    stamp(E,cfg,1)
    build_srd(E,20,6,33,K*QROW)
    def wstart():
        nextstage(E,cfg,52,36); E(f"s_mul_i32 s36, s36, {64*QROW}")
    def wload(st,e):
        r=raw(st,e,0)
        E.vmem(f"buffer_load_dwordx4 v[{r}:{r+3}], v{VQ+e}, s[20:23], s36 offen", ("W",st))
    def xaddr():
        E("s_lshl_b32 s40, s40, 7"); E("s_add_u32 s40, s40, s41"); E("s_add_u32 s43, s39, s38")
        for x in ring_advance(cfg,38): E(x)
    def xstart():
        nextstage(E,cfg,54,40); xaddr()
    def xdma(st,i):
        if i==0: E("s_mov_b32 m0, s43")
        if i==4: E("s_add_u32 m0, s43, 4096")
        if i%4==0: E("s_nop 0")
        E.vmem(f"buffer_load_dwordx4 v{VX+i}, s[16:19], s40 offen offset:{(i%4)*1024} lds", ("X",st))
    def aread(st):
        nextstage(E,cfg,56,42); E("s_lshl_b32 s42, s42, 8"); E(f"v_add_u32 v12, s42, v{va}")
        a=AV[st%2]
        E(f"ds_read_b128 v[{a}:{a+3}], v12"); E(f"ds_read_b128 v[{a+4}:{a+7}], v12 offset:16")
    for e in range(8): wload(0,e)
    E("v_lshl_add_u32 v10, v3, 3, s35")
    E.vmem("global_load_dwordx2 v[24:25], v10, s[8:9]", "SZ")
    E.vmem("global_load_dwordx2 v[26:27], v10, s[10:11]", "SZ")
    bm_full(E); E("s_lshl_b32 s32, s29, 19")
    build_srd(E,16,4,32,M*K*2)
    E("v_lshrrev_b32 v10, 3, v2"); E("v_and_b32 v12, 7, v2"); E("v_lshrrev_b32 v13, 4, v2"); E("v_xor_b32 v12, v12, v13")
    E("v_lshlrev_b32 v12, 4, v12"); E(f"v_lshl_add_u32 v{VX}, v10, 11, v12"); E(f"v_xor_b32 v{VX+1}, 64, v{VX}")
    for i in range(7,1,-1): E(f"v_add_u32 v{VX+i}, {i*16384-(i%4)*1024}, v{VX+i%2}")
    E(f"v_add_u32 v{VX+1}, {16384-1024}, v{VX+1}")
    E("s_lshl_b32 s39, s31, 13"); E("s_lshl_b32 s41, s31, 17"); E("s_mov_b32 s38, 0")
    E("s_mov_b32 s40, s37"); xaddr()
    for i in range(8): xdma(0,i)
    E(f"s_mov_b32 s56, {tabs[0]&0xffffffff:#x}"); E(f"s_mov_b32 s57, {tabs[0]>>32:#x}")
    for o in range(1,8):
        if tabs[o]!=tabs[0]:
            E(f"s_cmp_eq_u32 s46, {o}"); E(f"s_cselect_b32 s56, {tabs[o]&0xffffffff:#x}, s56"); E(f"s_cselect_b32 s57, {tabs[o]>>32:#x}, s57")
    E("s_lshr_b64 s[52:53], s[56:57], 4"); E("s_lshr_b64 s[54:55], s[56:57], 4")
    for st in range(1,max(cfg.LW, cfg.XL-1)):
        if st<cfg.LW:
            wstart()
            for e in range(8): wload(st,e)
        if st<cfg.XL-1:
            xstart()
            for i in range(8): xdma(st,i)
    E("s_lshl_b32 s42, s31, 12"); E(f"s_add_u32 s42, s42, {cfg.WBASE}")
    E(f"v_lshl_add_u32 v{vw}, v2, 4, s42")
    E("s_lshl_b32 s42, s31, 6"); E(f"s_add_u32 s42, s42, {cfg.ABASE}")
    E(f"v_lshl_add_u32 v{va}, v1, 5, s42")
    xstart(); wstart()
    stamp(E,cfg,2)
    E("s_barrier")
    stamp(E,cfg,3)
    aread(0)
    E.waitvm("SZ")
    for j in range(4):
        for (src,dst) in ((24,SV),(26,ZV)):
            if j%2==0: E(f"v_lshlrev_b32 v{dst+j}, 16, v{src+j//2}")
            else: E(f"v_and_b32 v{dst+j}, 0xffff0000, v{src+j//2}")
    for j in range(4):
        E(f"v_mul_f32 v{ZV+j}, v{ZV+j}, v{SV+j}")
        if cfg.cvt:
            E(f"v_mul_f32 v{SV+j}, 1.0, v{SV+j}")
        else:
            E(f"v_mul_f32 v{SV+j}, 0x71800000, v{SV+j}")
            E(f"v_mul_f32 v{ZV+j}, 0x27000000, v{ZV+j}")
    if cfg.pprio: E(f"s_setprio {cfg.pprio}")
    def phase(j):
        st=j+1
        xs=j+cfg.XL; ws=st+cfg.LW
        a=AV[st%2]
        xi=[(lambda i=i: xdma(xs,i)) for i in range(8)] if xs<NST else []
        wi=[(lambda e=e: wload(ws,e)) for e in range(8)] if ws<NST else []
        if cfg.xfirst==1: mem=xi+wi
        elif cfg.xfirst==0: mem=wi+xi
        else:
            mem=[]
            while xi or wi:
                if xi: mem.append(xi.pop(0))
                if wi: mem.append(wi.pop(0))
        for _ in range(cfg.dfirst if j>=0 else 0):
            if mem: mem.pop(0)()
        E.waitvm(("W",st), " lgkmcnt(0)")
        if j==-1: stamp(E,cfg,4)
        if st+1<NST: aread(st+1)
        sl=(st%2)*WSLOT
        work=[]; wr=[]
        for jj in range(4):
            for half in range(2):
                rs=range(4*half,4*half+4)
                if cfg.cvt:
                    for e in rs: r=raw(st,e,jj); work.append(f"v_cvt_f32_i32 v{r}, v{r}")
                for e in rs: r=raw(st,e,jj); work.append(f"v_fma_f32 v{r}, v{r}, v{SV+jj}, -v{ZV+jj}")
                for e in rs: r=raw(st,e,jj); work.append(f"v_mul_f32 v{r}, v{r}, v{a+e}")
                for p in (2*half,2*half+1):
                    work.append(f"v_cvt_pk_bf16_f32 v{OUT+4*jj+p}, v{raw(st,2*p,jj)}, v{raw(st,2*p+1,jj)}")
            wr.append(f"ds_write_b128 v{vw}, v[{OUT+4*jj}:{OUT+4*jj+3}] offset:{sl+jj*1024}")
        per=len(work)//4
        pos=[int(x)*per//20 for x in cfg.wpos.split()] if (cfg.wpos and mem) else [per,2*per,3*per,4*per]
        for jj in (3,2,1,0):
            assert pos[jj]>=per*(jj+1)
            work.insert(pos[jj],wr[jj])
        nm=len(mem)-cfg.tailv if len(mem)>cfg.tailv else len(mem)
        nw=len(work); done=0
        for i,w in enumerate(work):
            E(w)
            while done<nm and (i+1)*(nm+1) >= (done+1)*nw: mem.pop(0)(); done+=1
        while mem: mem.pop(0)()
        if xs+1<NST: xstart()
        if ws+1<NST: wstart()
        E.waitvm(("X",st), " lgkmcnt(0)")
        E("s_barrier")
    U=cfg.U
    assert U%cfg.RW==0 and U%2==0
    last_full = min(NST-1-cfg.XL, NST-2-cfg.LW) - 1
    phase(-1)
    jn=0
    if cfg.loop:
        n=(last_full+1)//U
        if n>=2:
            loopify(E,phase,0,n,U,"L_p_loop"); jn=n*U
    for j in range(jn,NST-1): phase(j)
    finish(E,cfg,False)

def finish(E,cfg,cons):
    if cfg.enc:
        role,a,b=cfg.enc.split(":")
        if (role=="c")==cons:
            E("s_waitcnt vmcnt(0)"); stamp(E,cfg,5); E("s_memrealtime s[82:83]"); E("s_waitcnt lgkmcnt(0)")
            if a=="r": E("s_sub_u32 s84, s82, s80")
            else: E(f"s_sub_u32 s84, s{60+2*int(b)}, s{60+2*int(a)}"); E("s_lshr_b32 s84, s84, 3")
            E("s_add_u32 s84, s84, 4000")
            lab=f"L_enc{len(E.L)}"
            E(lab+":"); E("s_memrealtime s[82:83]"); E("s_waitcnt lgkmcnt(0)"); E("s_sub_u32 s82, s82, s80")
            E(f"s_cmp_lt_u32 s82, s84"); E(f"s_cbranch_scc1 {lab}")
    if cfg.spin:
        lab=f"L_spin{len(E.L)}"
        E("s_waitcnt vmcnt(0)")
        E(lab+":"); E("s_memrealtime s[82:83]"); E("s_waitcnt lgkmcnt(0)"); E("s_sub_u32 s82, s82, s80")
        E(f"s_cmp_lt_u32 s82, {cfg.spin}"); E(f"s_cbranch_scc1 {lab}")
    if cfg.stamps:
        stamp(E,cfg,5)
        E("s_memrealtime s[78:79]")
        E("s_waitcnt lgkmcnt(0)")
        E("s_mov_b32 s48, s58"); E("s_mov_b32 s49, s59"); E("s_mov_b32 s50, 0x1000000"); E("s_mov_b32 s51, 0x20000")
        E("s_lshl_b32 s52, s2, 3"); E("s_add_u32 s52, s52, s28"); E("s_lshl_b32 s52, s52, 5")
        E("v_mov_b32 v10, s76"); E("v_mov_b32 v11, s78")
        for i,r in enumerate((62,64,66,68,70)):
            E(f"s_sub_u32 s{r}, s{r}, s60"); E(f"v_mov_b32 v{12+i}, s{r}")
        E("s_getreg_b32 s53, hwreg(HW_REG_HW_ID)"); E("v_mov_b32 v17, s53")
        E("v_mov_b32 v9, s52")
        E("s_mov_b64 exec, 1")
        E("buffer_store_dwordx4 v[10:13], v9, s[48:51], 0 offen")
        E("buffer_store_dwordx4 v[14:17], v9, s[48:51], 0 offen offset:16")
        if cfg.stamps==2 and cons:
            E("s_mov_b64 exec, 0xffff"); E("s_lshl_b32 s52, s2, 3"); E("s_add_u32 s52, s52, s28"); E("s_lshl_b32 s52, s52, 6"); E("s_add_u32 s52, s52, 0x10000")
            E("v_and_b32 v9, 63, v0"); E("v_lshlrev_b32 v9, 2, v9"); E("v_add_u32 v9, s52, v9")
            E("buffer_store_dword v250, v9, s[48:51], 0 offen")
    E("s_endpgm")

def consumer(E,cfg):
    ACC=16; XF=(144,152); WF=(160,176)
    vxb=(4,5,6,7); vx=(192,193,194,195); vw=8; vo=9
    T=216
    def acc(b,j): return ACC+(b*4+j)*16
    E("L_consumer:")
    E("v_lshlrev_b32 v10, 3, v0")
    E("s_waitcnt lgkmcnt(0)")
    E.vmem("global_load_dwordx2 v[12:13], v10, s[12:13]","A")
    if cfg.codepf:
        E("s_getpc_b64 s[48:49]"); E("L_pc:")
        E(f"s_sub_u32 s48, s48, L_pc-{KN}"); E("s_subb_u32 s49, s49, 0")
        E(f"s_mov_b32 s50, L_codeend-{KN}"); E("s_mov_b32 s51, 0x20000")
        E("s_lshl_b32 s43, s47, 9"); E("v_lshlrev_b32 v11, 6, v0"); E("v_add_u32 v14, s43, v11")
        E("v_cmp_gt_u32 vcc, 8, v0"); E("s_nop 1"); E("v_cndmask_b32 v11, -1, v14, vcc")
        E.vmem("buffer_load_dword v14, v11, s[48:51], 0 offen","PF")
    bm_full(E)
    E(f"s_mul_i32 s34, s29, {256*OROW}"); E("s_lshl_b32 s35, s31, 8"); E("s_add_u32 s34, s34, s35")
    build_srd(E,24,14,34,M*OROW)
    if cfg.tlb&1:
        E("s_lshl_b32 s33, s31, 9"); build_srd(E,20,6,33,K*QROW)
        E("v_lshlrev_b32 v11, 21, v0"); E("v_cmp_gt_u32 vcc, 8, v0"); E("s_nop 1"); E("v_cndmask_b32 v11, -1, v11, vcc")
        E.vmem("buffer_load_dword v15, v11, s[20:23], 0 offen","PF")
    if cfg.tlb&2:
        E(f"v_mul_u32_u24 v11, {63*OROW}, v2"); E(f"s_mul_i32 s36, s28, {64*OROW}"); E("v_add_u32 v11, s36, v11")
        E("v_cmp_gt_u32 vcc, 2, v2"); E("s_nop 1"); E("v_cndmask_b32 v11, -1, v11, vcc")
        E.vmem("buffer_load_dword v15, v11, s[24:27], 0 offen","PF")
    E("v_bfe_u32 v11, v3, 1, 3"); E("v_xor_b32 v11, v11, v1"); E("v_lshlrev_b32 v11, 4, v11")
    E("s_lshl_b32 s36, s28, 13")
    E("v_lshl_add_u32 v11, v3, 7, v11"); E("v_add_u32 v4, s36, v11")
    for u in range(1,4): E(f"v_xor_b32 v{vxb[u]}, {32*u}, v4")
    for u in range(4): E(f"v_mov_b32 v{vx[u]}, v{vxb[u]}")
    E(f"v_lshlrev_b32 v{vw}, 4, v2"); E(f"v_add_u32 v{vw}, {cfg.WBASE}, v{vw}")
    E(f"v_lshlrev_b32 v10, 4, v0"); E(f"v_add_u32 v10, {cfg.ABASE}, v10")
    E("s_mov_b32 s38, 0")
    E.waitvm("A")
    E("v_lshlrev_b32 v16, 16, v12"); E("v_and_b32 v17, 0xffff0000, v12"); E("v_lshlrev_b32 v18, 16, v13"); E("v_and_b32 v19, 0xffff0000, v13")
    if not cfg.cvt:
        for i in range(4): E(f"v_mul_f32 v{16+i}, 0x58000000, v{16+i}")
    E("ds_write_b128 v10, v[16:19]")
    E("s_lshl_b32 s36, s28, 6"); E("v_lshl_add_u32 v11, v1, 2, s36"); E(f"v_mul_u32_u24 v11, {OROW}, v11")
    E(f"v_lshl_add_u32 v{vo}, v3, 3, v11")
    if cfg.prio: E(f"s_setprio {cfg.prio}")
    stamp(E,cfg,1)
    if cfg.stamps==2: E("s_mov_b32 s75, 0")
    E("s_waitcnt lgkmcnt(0)")
    E("s_barrier")
    E("s_barrier")
    stamp(E,cfg,2)
    def reads(j,u):
        s=u%2
        xr=lambda b: f"ds_read_b128 v[{XF[s]+4*b}:{XF[s]+4*b+3}], v{vx[u]} offset:{b*4096}"
        wr=lambda jj: f"ds_read_b128 v[{WF[s]+4*jj}:{WF[s]+4*jj+3}], v{vw} offset:{(j%2)*WSLOT+(u*4+jj)*1024}"
        return [xr(0)]+[wr(jj) for jj in range(4)]+[xr(1)]
    def mfma(a,xa,wa,first=False):
        c = "0" if first else f"v[{a}:{a+15}]"
        E(f"v_mfma_f32_32x32x16_bf16 v[{a}:{a+15}], v[{xa}:{xa+3}], v[{wa}:{wa+3}], {c}")
    def mfmas(s,first,inter,per=1):
        inter=list(inter)
        for b in range(2):
            for jj in (range(4) if (b==0 or not cfg.snake) else range(3,-1,-1)):
                mfma(acc(b,jj),XF[s]+4*b,WF[s]+4*jj,first)
                for _ in range(per):
                    if inter: E(inter.pop(0))
        for x in inter: E(x)
    def bump():
        return ring_advance(cfg,38)+[f"v_add_u32 v{vx[u]}, s38, v{vxb[u]}" for u in range(4)]
    def pstamp():
        if cfg.stamps==2:
            E("s_sub_u32 s72, s72, s60"); E("v_mov_b32 v251, s72"); E("v_cmp_eq_u32 vcc, s75, v2"); E("s_add_u32 s75, s75, 1"); E("s_nop 0"); E("v_cndmask_b32 v250, v250, v251, vcc")
    def phase(j):
        if cfg.stamps==2: E("s_memtime s[72:73]")
        if j==0:
            for r in reads(0,0): E(r)
        else: mfmas(1,False,reads(j,0))
        E("s_waitcnt lgkmcnt(0)")
        pstamp()
        mfmas(0,j==0,reads(j,1))
        E("s_waitcnt lgkmcnt(0)")
        mfmas(1,False,reads(j,2))
        E("s_waitcnt lgkmcnt(0)")
        mfmas(0,False,reads(j,3)+bump(),2)
        E("s_waitcnt lgkmcnt(0)")
        if j<NST-1: E("s_barrier")
    def store_ops(b):
        ops=[]
        for r in range(16):
            t=T+2*r
            ops.append(f"v_cvt_pk_bf16_f32 v{t}, v{acc(b,0)+r}, v{acc(b,1)+r}")
            ops.append(f"v_cvt_pk_bf16_f32 v{t+1}, v{acc(b,2)+r}, v{acc(b,3)+r}")
            row=32*b+8*(r>>2)+(r&3)
            ops.append(f"s_mov_b32 s36, {row*OROW}")
            ops.append(f"buffer_store_dwordx2 v[{t}:{t+1}], v{vo}, s[24:27], s36 offen {cfg.stpol}")
        return ops
    phase(0)
    last = NST-2 if cfg.tail else NST
    if cfg.loop:
        n=(last-1)//2
        loopify(E,phase,1,n,2,"L_c_loop")
        for j in range(1+2*n,last): phase(j)
    else:
        for j in range(1,last): phase(j)
    if not cfg.tail:
        mfmas(1,False,[])
        stamp(E,cfg,3)
        E("s_nop 7"); E("s_nop 7")
        for b in range(2):
            for x in store_ops(b): E(x)
    else:
        seq=[(14,0,u) for u in range(4)]+[(14,1,0)]+[(15,0,u) for u in range(4)]+[(14,1,u) for u in range(1,4)]+[(15,1,u) for u in range(4)]
        if cfg.tb==4: seq=[(14,0,u) for u in range(4)]+[(15,0,u) for u in range(4)]+[(14,1,u) for u in range(4)]+[(15,1,u) for u in range(4)]
        if cfg.tb==6: seq=[(14,0,u) for u in range(4)]+[(14,1,0),(14,1,1)]+[(15,0,u) for u in range(4)]+[(14,1,u) for u in range(2,4)]+[(15,1,u) for u in range(4)]
        first15=[i for i,h in enumerate(seq) if h[0]==15][0]
        doneb0=max(i for i,h in enumerate(seq) if h[1]==0)
        SX=(XF[0],196,XF[1]); SW=(WF[0],200,WF[1])
        s15=(15%cfg.NX)*XSLOT
        def hreads(i):
            (st,b,u)=seq[i]; k=i%3
            xa = vx[u] if st==14 else vxb[u]
            R=[f"ds_read_b128 v[{SX[k]}:{SX[k]+3}], v{xa} offset:{b*4096+(0 if st==14 else s15)}"]
            R+=[f"ds_read_b128 v[{SW[k]+4*jj}:{SW[k]+4*jj+3}], v{vw} offset:{(st%2)*WSLOT+(u*4+jj)*1024}" for jj in range(4)]
            return R
        assert s15+4096+0<65536
        if cfg.stamps==2: E("s_memtime s[72:73]")
        mfmas(1,False,hreads(0)+hreads(1),2)
        so=[]
        for i,(st,b,u) in enumerate(seq):
            k=i%3
            if i+2==first15:
                E("s_waitcnt lgkmcnt(5)"); E("s_barrier")
            elif i+1<len(seq): E(f"s_waitcnt lgkmcnt(5)")
            else: E("s_waitcnt lgkmcnt(0)")
            if i==0: pstamp()
            nxt=hreads(i+2) if i+2<len(seq) else []
            if i==doneb0+2: so=store_ops(0)
            left=len(seq)-i
            for jj in range(4):
                mfma(acc(b,jj),SX[k],SW[k]+4*jj)
                for _ in range(2 if jj==0 else 1):
                    if nxt: E(nxt.pop(0))
                if so:
                    slots=(left*4-jj)
                    n=-(-len(so)//slots)
                    for _ in range(n):
                        if so: E(so.pop(0))
            assert not nxt
        assert not so
        stamp(E,cfg,3)
        E("s_nop 7"); E("s_nop 7")
        for x in store_ops(1): E(x)
    if cfg.stamps or cfg.enc: stamp(E,cfg,4); E("s_waitcnt vmcnt(0)")
    finish(E,cfg,True)

def ablate(L,cfg):
    R=[]
    for x in L:
        if 'V' in cfg.abl and (x.startswith("v_fma_f32") or (x.startswith("v_mul_f32") and "0x" not in x and int(x.split()[1][1:-1])>=64) or (x.startswith("v_cvt_pk") and int(x.split()[1][1:-1])<64)): continue
        if 'X' in cfg.abl and x.endswith(" lds"): continue
        if 'W' in cfg.abl and x.startswith("buffer_load") and "s[20:23]" in x: continue
        if 'M' in cfg.abl and x.startswith("v_mfma"): continue
        if 'D' in cfg.abl and x.startswith("ds_write") and "v10," not in x: continue
        if 'R' in cfg.abl and x.startswith("ds_read") and int(x.split()[1][2:].split(":")[0])>=128: continue
        if 'S' in cfg.abl and x.startswith("buffer_store") and "s[24:27]" in x: continue
        R.append(x)
    return R
def generate(cfg):
    out=[header(cfg)]
    E=Emit(); common_prologue(E,cfg); out+=E.L
    E=Emit(); producer(E,cfg); out+=E.L
    E=Emit(); consumer(E,cfg); out+=E.L
    out.append("L_exit:"); out.append("s_endpgm"); out.append("L_codeend:")
    return "\n".join(ablate(out,cfg))+footer(cfg)

if __name__=="__main__":
    kw={}
    for a in sys.argv[2:]:
        k,v=a.split("="); kw[k]=v.replace("_"," ") if k in ("stpol","abl","wpos","enc") else int(v)
    open(sys.argv[1],"w").write(generate(Cfg(**kw)))
```

```python
import sys
KN = "standalone__weight_only_int_omniquant__prompt_kernel"
M, K, N = 2048, 1024, 3584
QROW = N*4
OROW = N*2
NST = 16
XSLOT = 32768
WSLOT = 16384
NWG = 224

class Cfg:
    def __init__(s, **kw):
        s.NX = 3; s.XL = 2
        s.RW = 2; s.LW = 1; s.U = 2
        s.stamps = 0; s.prio = 1; s.pprio = 2; s.codepf = 1; s.loop = 1
        s.spin = 0; s.stpol = 'sc1'; s.abl = ''
        s.g = 1; s.g2 = 2; s.start = 0; s.xrot = 8; s.dfirst = 2; s.xfirst = 0; s.tailv = 6
        s.wpos = '60 66 73 80'; s.snake = 1; s.tail = 1; s.tb = 5; s.cvt = 0; s.enc = ''; s.tlb = 0; s.pf = 0; s.pf0 = 0; s.pfw = 0; s.cw = 1; s.rd2 = 1; s.bw = 0; s.gv = ''; s.stpol2 = None
        s.__dict__.update(kw)
        s.WBASE = s.NX*XSLOT
        s.ABASE = s.WBASE + 2*WSLOT
        s.LDS = s.ABASE + 4096

def order(o, hi, cfg):
    if cfg.g==0: return list(range(NST))
    def key(s):
        if s%4==o and s>=cfg.start:
            g = cfg.g2 if ((s>>2)&1)==hi else cfg.g
            if cfg.gv:
                t=cfg.gv.split()[s>>2]; g=int(t[1] if ((s>>2)&1)==hi else t[0])
                if g==0: return s
            return s-g-0.5
        return s
    return sorted(range(NST), key=key)
def table(o,hi,cfg):
    v=0
    for i,s in enumerate(order(o,hi,cfg)): v|=s<<(4*i)
    return v

class Emit:
    def __init__(s): s.L=[]; s.vm=[]
    def __call__(s, x): s.L.append(x)
    def vmem(s, x, tag): s.L.append(x); s.vm.append(tag)
    def waitvm(s, tag, extra=""):
        idx=[i for i,t in enumerate(s.vm) if t==tag]
        n=(len(s.vm)-1-idx[-1]) if idx else 63
        n=min(n,63)
        s.L.append(f"s_waitcnt vmcnt({n}){extra}")
        return n

def stamp(E, cfg, i):
    if cfg.stamps or cfg.enc: E(f"s_memtime s[{60+2*i}:{61+2*i}]")

def header(cfg):
    return f"""; Fused int4-weight dequant + bf16 GEMM: out[2048,3584] = (x*act) @ ((qw-z)*s); one 256x128 tile per workgroup.
; Waves 0-3 multiply (v_mfma 32x32x16, operands from LDS); waves 4-7 stream x into LDS (LDS-DMA) and turn qw into bf16.
; @launch grid=({NWG},1,1) block=(512,1,1) lds={cfg.LDS}
.amdgcn_target "amdgcn-amd-amdhsa--gfx950"
.text
.globl {KN}
.p2align 8
.type {KN},@function
{KN}:
"""
def footer(cfg):
    return f"""
.section .rodata,"a"
.p2align 6
.amdhsa_kernel {KN}
  .amdhsa_next_free_vgpr 256
  .amdhsa_next_free_sgpr 96
  .amdhsa_accum_offset 256
  .amdhsa_group_segment_fixed_size 0
  .amdhsa_kernarg_size 64
  .amdhsa_user_sgpr_count 2
  .amdhsa_user_sgpr_kernarg_segment_ptr 1
  .amdhsa_system_sgpr_workgroup_id_x 1
  .amdhsa_float_denorm_mode_32 3
.end_amdhsa_kernel
"""
def common_prologue(E, cfg):
    if cfg.spin or cfg.enc: E("s_memrealtime s[80:81]")
    if cfg.stamps: E("s_memrealtime s[76:77]")
    stamp(E,cfg,0)
    if cfg.bw: E("s_mov_b32 s86, 0")
    E(f"s_cmp_ge_u32 s2, {NWG}"); E("s_cbranch_scc1 L_exit")
    E("s_load_dwordx4 s[4:7], s[0:1], 0")
    E("s_load_dwordx4 s[12:15], s[0:1], 32")
    E("s_load_dwordx4 s[8:11], s[0:1], 16")
    if cfg.stamps: E("s_load_dwordx2 s[58:59], s[0:1], 56")
    E("v_lshrrev_b32 v1, 6, v0")
    E("v_and_b32 v2, 63, v0")
    E("v_readfirstlane_b32 s28, v1")
    E("s_and_b32 s45, s2, 7")
    E("s_lshr_b32 s47, s2, 3")
    E("s_lshr_b32 s30, s47, 2")
    E("s_lshr_b32 s31, s45, 1"); E("s_mul_i32 s31, s31, 7"); E("s_add_u32 s31, s30, s31")
    E("s_and_b32 s29, s47, 3")
    E("v_and_b32 v3, 31, v0")
    E("v_bfe_u32 v1, v0, 5, 1")
    E("s_cmp_ge_u32 s28, 4")
    E("s_cbranch_scc0 L_consumer")

def bm_full(E):
    E("s_and_b32 s42, s2, 1"); E("s_lshl_b32 s42, s42, 2"); E("s_add_u32 s29, s29, s42")

def build_srd(E, base, ptr, off, size):
    E(f"s_add_u32 s{base}, s{ptr}, s{off}"); E(f"s_addc_u32 s{base+1}, s{ptr+1}, 0")
    E(f"s_sub_u32 s{base+2}, {size}, s{off}"); E(f"s_mov_b32 s{base+3}, 0x20000")

def nextstage(E, cfg, pair, dst):
    if cfg.xrot:
        E(f"s_add_u32 s{dst}, s{pair}, s45"); E(f"s_and_b32 s{dst}, s{dst}, 15")
    else: E(f"s_and_b32 s{dst}, s{pair}, 15")
    E(f"s_lshr_b64 s[{pair}:{pair+1}], s[{pair}:{pair+1}], 4")

def ring_advance(cfg, r):
    return [f"s_add_u32 s{r}, s{r}, {XSLOT}", f"s_cmp_eq_u32 s{r}, {cfg.NX*XSLOT}", f"s_cselect_b32 s{r}, 0, s{r}"]

def loopify(E, phase, j0, n, U, lab):
    E(f"s_mov_b32 s44, {n}")
    bodies=[]
    for it in range(n):
        mark=len(E.L)
        for j in range(j0+it*U,j0+(it+1)*U): phase(j)
        bodies.append(E.L[mark:]); del E.L[mark:]
    assert len(set(len(b) for b in bodies))==1
    merged=[]
    for tup in zip(*bodies):
        if len(set(tup))==1: merged.append(tup[0])
        else:
            assert all(x.startswith("s_waitcnt vmcnt") for x in tup), tup
            merged.append(min(tup,key=lambda x:int(x.split("(")[1].split(")")[0])))
    E(".p2align 6"); E(lab+":")
    E.L.extend(merged)
    E("s_sub_u32 s44, s44, 1"); E("s_cmp_lg_u32 s44, 0"); E(f"s_cbranch_scc1 {lab}")

def producer(E, cfg):
    RAW0 = 64
    OUT, AV, SV, ZV = 32, (48,56), 16, 20
    VQ, VX, vw, va = 200, 208, 7, 9
    def raw(st,e,j): return RAW0 + (st%cfg.RW)*32 + e*4 + j
    tabs=[table(o&3,o>>2,cfg) for o in range(8)]
    first=0
    for o in range(8): first|=(tabs[o]&15)<<(4*o)
    E("s_sub_u32 s31, s28, 4") if False else None
    E("s_add_u32 s46, s29, s30"); E("s_and_b32 s46, s46, 3"); E("s_and_b32 s42, s30, 4"); E("s_or_b32 s46, s46, s42")
    assert cfg.xrot in (0,8) and cfg.XL==2
    E("s_lshl_b32 s42, s46, 2"); E(f"s_lshr_b32 s37, {first:#x}, s42")
    E("s_and_b32 s37, s37, 15")
    if cfg.xrot:
        E("s_and_b32 s45, s2, 1"); E("s_lshl_b32 s45, s45, 3"); E("s_xor_b32 s37, s37, s45")
    E("s_lshl_b32 s33, s31, 9")
    E("s_lshl_b32 s35, s31, 8")
    E("s_sub_u32 s31, s28, 4")
    E("s_lshl_b32 s36, s31, 4")
    E("v_lshl_add_u32 v10, v1, 3, s36")
    E(f"v_mul_u32_u24 v10, {QROW}, v10")
    E(f"v_lshl_add_u32 v{VQ}, v3, 4, v10")
    for e in range(1,8): E(f"v_add_u32 v{VQ+e}, {e*QROW}, v{VQ}")
    E(f"s_mul_i32 s36, s37, {64*QROW}")
    E("s_waitcnt lgkmcnt(0)")
    stamp(E,cfg,1)
    build_srd(E,20,6,33,K*QROW)
    def advance():
        if cfg.LW==2: E("s_lshl_b32 s40, s37, 7")
        E("s_and_b32 s37, s52, 15"); E("s_lshr_b64 s[52:53], s[52:53], 4")
        E(f"s_mul_i32 s36, s37, {64*QROW}")
        if cfg.LW==1: E("s_lshl_b32 s40, s37, 7")
    def ring():
        E(f"s_add_u32 s43, s43, {XSLOT}"); E("s_cmp_eq_u32 s43, s38"); E("s_cselect_b32 s43, s39, s43")
    def wload(st,e):
        r=raw(st,e,0)
        E.vmem(f"buffer_load_dwordx4 v[{r}:{r+3}], v{VQ+e}, s[20:23], s36 offen", ("W",st))
    def xdma(st,i):
        E.vmem(f"buffer_load_dwordx4 v{VX+i}, s[16:19], s40 offen offset:{(i%4)*1024} lds", ("X",st))
    M0A="s_mov_b32 m0, s43"; M0B="s_add_u32 m0, s43, 4096"
    def aread(st):
        a=AV[st%2]
        E(f"v_lshl_add_u32 v12, s40, 1, v{va}")
        E(f"ds_read_b128 v[{a}:{a+3}], v12"); E(f"ds_read_b128 v[{a+4}:{a+7}], v12 offset:16")
    for e in range(8): wload(0,e)
    E("v_lshl_add_u32 v10, v3, 3, s35")
    E.vmem("global_load_dwordx2 v[24:25], v10, s[8:9]", "SZ")
    E.vmem("global_load_dwordx2 v[26:27], v10, s[10:11]", "SZ")
    bm_full(E); E("s_lshl_b32 s32, s29, 19")
    build_srd(E,16,4,32,M*K*2)
    E("v_lshrrev_b32 v10, 3, v2"); E("v_and_b32 v12, 7, v2"); E("v_lshrrev_b32 v13, 4, v2"); E("v_xor_b32 v12, v12, v13")
    E("v_lshlrev_b32 v12, 4, v12"); E(f"v_lshl_add_u32 v{VX}, v10, 11, v12"); E(f"v_xor_b32 v{VX+1}, 64, v{VX}")
    for i in range(7,1,-1): E(f"v_add_u32 v{VX+i}, {i*16384-(i%4)*1024}, v{VX+i%2}")
    E(f"v_add_u32 v{VX+1}, {16384-1024}, v{VX+1}")
    E("s_lshl_b32 s39, s31, 13"); E("s_lshl_b32 s41, s31, 17"); E(f"s_add_u32 s38, s39, {cfg.NX*XSLOT}"); E("s_mov_b32 s43, s39")
    for i in range(8): E(f"v_add_u32 v{VX+i}, s41, v{VX+i}")
    E("s_lshl_b32 s40, s37, 7")
    for i in range(8):
        if i%4==0: E(M0A if i==0 else M0B); E("s_nop 0")
        xdma(0,i)
    ring(); E(M0A)
    E(f"s_mov_b32 s52, {tabs[0]&0xffffffff:#x}"); E(f"s_mov_b32 s53, {tabs[0]>>32:#x}")
    for o in range(1,8):
        if tabs[o]!=tabs[0]:
            E(f"s_cmp_eq_u32 s46, {o}"); E(f"s_cselect_b32 s52, {tabs[o]&0xffffffff:#x}, s52"); E(f"s_cselect_b32 s53, {tabs[o]>>32:#x}, s53")
    if cfg.xrot:
        E("s_mul_i32 s45, s45, 0x11111111"); E("s_xor_b32 s52, s52, s45"); E("s_xor_b32 s53, s53, s45")
    E("s_lshr_b64 s[52:53], s[52:53], 4")
    E("s_lshl_b32 s42, s31, 12"); E(f"s_add_u32 s42, s42, {cfg.WBASE}")
    E(f"v_lshl_add_u32 v{vw}, v2, 4, s42")
    E("s_lshl_b32 s42, s31, 6"); E(f"s_add_u32 s42, s42, {cfg.ABASE}")
    E(f"v_lshl_add_u32 v{va}, v1, 5, s42")
    E("s_mov_b32 s47, s40")
    if cfg.LW==2:
        E("s_and_b32 s37, s52, 15"); E("s_lshr_b64 s[52:53], s[52:53], 4"); E(f"s_mul_i32 s36, s37, {64*QROW}")
        for e in range(8): wload(1,e)
    advance()
    stamp(E,cfg,2)
    E("s_barrier")
    stamp(E,cfg,3)
    E(f"v_lshl_add_u32 v12, s47, 1, v{va}")
    E(f"ds_read_b128 v[{AV[0]}:{AV[0]+3}], v12"); E(f"ds_read_b128 v[{AV[0]+4}:{AV[0]+7}], v12 offset:16")
    E.waitvm("SZ")
    for j in range(4):
        for (src,dst) in ((24,SV),(26,ZV)):
            if j%2==0: E(f"v_lshlrev_b32 v{dst+j}, 16, v{src+j//2}")
            else: E(f"v_and_b32 v{dst+j}, 0xffff0000, v{src+j//2}")
    for j in range(4):
        E(f"v_mul_f32 v{ZV+j}, v{ZV+j}, v{SV+j}")
        if cfg.cvt:
            E(f"v_mul_f32 v{SV+j}, 1.0, v{SV+j}")
        else:
            E(f"v_mul_f32 v{SV+j}, 0x71800000, v{SV+j}")
            E(f"v_mul_f32 v{ZV+j}, 0x27000000, v{ZV+j}")
    if cfg.pprio: E(f"s_setprio {cfg.pprio}")
    def phase(j):
        st=j+1
        xs=j+cfg.XL; ws=st+cfg.LW
        a=AV[st%2]
        xi=[(lambda i=i: (xdma(xs,i), (E(M0B) if i==3 else None))) for i in range(8)] if xs<NST else []
        wi=[(lambda e=e: wload(ws,e)) for e in range(8)] if ws<NST else []
        if cfg.xfirst==1: mem=xi+wi
        elif cfg.xfirst==0: mem=wi+xi
        else:
            mem=[]
            while xi or wi:
                if xi: mem.append(xi.pop(0))
                if wi: mem.append(wi.pop(0))
        for _ in range(cfg.dfirst if j>=0 else 0):
            if mem: mem.pop(0)()
        E.waitvm(("W",st), " lgkmcnt(0)")
        if j==-1: stamp(E,cfg,4)
        if st+1<NST: aread(st+1)
        sl=(st%2)*WSLOT
        work=[]; wr=[]
        for jj in range(4):
            for half in range(2):
                rs=range(4*half,4*half+4)
                if cfg.cvt:
                    for e in rs: r=raw(st,e,jj); work.append(f"v_cvt_f32_i32 v{r}, v{r}")
                for e in rs: r=raw(st,e,jj); work.append(f"v_fma_f32 v{r}, v{r}, v{SV+jj}, -v{ZV+jj}")
                for e in rs: r=raw(st,e,jj); work.append(f"v_mul_f32 v{r}, v{r}, v{a+e}")
                for p in (2*half,2*half+1):
                    work.append(f"v_cvt_pk_bf16_f32 v{OUT+4*jj+p}, v{raw(st,2*p,jj)}, v{raw(st,2*p+1,jj)}")
            wr.append(f"ds_write_b128 v{vw}, v[{OUT+4*jj}:{OUT+4*jj+3}] offset:{sl+jj*1024}")
        per=len(work)//4
        pos=[int(x)*per//20 for x in cfg.wpos.split()] if (cfg.wpos and mem) else [per,2*per,3*per,4*per]
        for jj in (3,2,1,0):
            assert pos[jj]>=per*(jj+1)
            work.insert(pos[jj],wr[jj])
        nm=len(mem)-cfg.tailv if len(mem)>cfg.tailv else len(mem)
        nw=len(work); done=0
        for i,w in enumerate(work):
            E(w)
            while done<nm and (i+1)*(nm+1) >= (done+1)*nw: mem.pop(0)(); done+=1
        while mem: mem.pop(0)()
        if xs+1<NST: ring(); E(M0A)
        if ws+1<NST: advance()
        elif xs+1<NST: E("s_lshl_b32 s40, s37, 7")
        E.waitvm(("X",st), " lgkmcnt(0)")
        if cfg.bw: E("s_memtime s[88:89]")
        E("s_barrier")
        if cfg.bw:
            E("s_memtime s[90:91]"); E("s_waitcnt lgkmcnt(0)"); E("s_sub_u32 s90, s90, s88")
            E("s_add_u32 s86, s86, s90")
    U=cfg.U
    assert U%cfg.RW==0 and U%2==0
    last_full = min(NST-1-cfg.XL, NST-2-cfg.LW) - 1
    phase(-1)
    jn=0
    if cfg.loop:
        n=(last_full+1)//U
        if n>=2:
            loopify(E,phase,0,n,U,"L_p_loop"); jn=n*U
    for j in range(jn,NST-1): phase(j)
    finish(E,cfg,False)

def finish(E,cfg,cons):
    if cfg.enc:
        role,a,b=cfg.enc.split(":")
        if (role=="c")==cons:
            E("s_waitcnt vmcnt(0)"); stamp(E,cfg,5); E("s_memrealtime s[82:83]"); E("s_waitcnt lgkmcnt(0)")
            if a=="r": E("s_sub_u32 s84, s82, s80")
            else: E(f"s_sub_u32 s84, s{60+2*int(b)}, s{60+2*int(a)}"); E("s_lshr_b32 s84, s84, 3")
            E("s_add_u32 s84, s84, 4000")
            lab=f"L_enc{len(E.L)}"
            E(lab+":"); E("s_memrealtime s[82:83]"); E("s_waitcnt lgkmcnt(0)"); E("s_sub_u32 s82, s82, s80")
            E(f"s_cmp_lt_u32 s82, s84"); E(f"s_cbranch_scc1 {lab}")
    if cfg.spin:
        lab=f"L_spin{len(E.L)}"
        E("s_waitcnt vmcnt(0)")
        E(lab+":"); E("s_memrealtime s[82:83]"); E("s_waitcnt lgkmcnt(0)"); E("s_sub_u32 s82, s82, s80")
        E(f"s_cmp_lt_u32 s82, {cfg.spin}"); E(f"s_cbranch_scc1 {lab}")
    if cfg.stamps:
        stamp(E,cfg,5)
        E("s_memrealtime s[78:79]")
        E("s_waitcnt lgkmcnt(0)")
        if cfg.bw: E("s_add_u32 s62, s60, s86")
        E("s_mov_b32 s48, s58"); E("s_mov_b32 s49, s59"); E("s_mov_b32 s50, 0x1000000"); E("s_mov_b32 s51, 0x20000")
        E("s_lshl_b32 s52, s2, 3"); E("s_add_u32 s52, s52, s28"); E("s_lshl_b32 s52, s52, 5")
        E("v_mov_b32 v10, s76"); E("v_mov_b32 v11, s78")
        for i,r in enumerate((62,64,66,68,70)):
            E(f"s_sub_u32 s{r}, s{r}, s60"); E(f"v_mov_b32 v{12+i}, s{r}")
        E("s_getreg_b32 s53, hwreg(HW_REG_HW_ID)"); E("v_mov_b32 v17, s53")
        E("v_mov_b32 v9, s52")
        E("s_mov_b64 exec, 1")
        E("buffer_store_dwordx4 v[10:13], v9, s[48:51], 0 offen")
        E("buffer_store_dwordx4 v[14:17], v9, s[48:51], 0 offen offset:16")
        if cfg.stamps==2 and cons:
            E("s_mov_b64 exec, 0xffff"); E("s_lshl_b32 s52, s2, 3"); E("s_add_u32 s52, s52, s28"); E("s_lshl_b32 s52, s52, 6"); E("s_add_u32 s52, s52, 0x10000")
            E("v_and_b32 v9, 63, v0"); E("v_lshlrev_b32 v9, 2, v9"); E("v_add_u32 v9, s52, v9")
            E("buffer_store_dword v250, v9, s[48:51], 0 offen")
    E("s_endpgm")

def consumer(E,cfg):
    ACC=16; XF=(144,152); WF=(160,176)
    vxb=(4,5,6,7); vx=(192,193,194,195); vw=8; vo=9
    T=216
    def acc(b,j): return ACC+(b*4+j)*16
    E("L_consumer:")
    E("v_lshlrev_b32 v10, 3, v0")
    E("s_waitcnt lgkmcnt(0)")
    E.vmem("global_load_dwordx2 v[12:13], v10, s[12:13]","A")
    if cfg.codepf:
        E("s_getpc_b64 s[48:49]"); E("L_pc:")
        E(f"s_sub_u32 s48, s48, L_pc-{KN}"); E("s_subb_u32 s49, s49, 0")
        E(f"s_mov_b32 s50, L_codeend-{KN}"); E("s_mov_b32 s51, 0x20000")
        E("s_lshl_b32 s43, s47, 9"); E("v_lshlrev_b32 v11, 6, v0"); E("v_add_u32 v14, s43, v11")
        E("v_cmp_gt_u32 vcc, 8, v0"); E("s_nop 1"); E("v_cndmask_b32 v11, -1, v14, vcc")
        E.vmem("buffer_load_dword v14, v11, s[48:51], 0 offen","PF")
    if cfg.pf:
        E("s_cmp_ge_u32 s45, 2"); E("s_cbranch_scc1 L_nopf")
        E("s_mul_i32 s36, s45, 28"); E("s_add_u32 s36, s36, s47"); E("s_lshl_b32 s36, s36, 8")
        E("v_add_u32 v11, s36, v0"); E("v_mul_u32_u24 v14, 24967, v11"); E("v_lshrrev_b32 v14, 22, v14")
        E("v_mul_u32_u24 v15, 168, v14"); E("v_sub_u32 v15, v11, v15")
        E(f"v_mul_u32_u24 v11, {QROW}, v14"); E("v_lshl_add_u32 v11, v15, 6, v11")
        E("v_cmp_gt_u32 vcc, 64, v14"); E("s_mov_b32 s20, s6"); E("s_mov_b32 s21, s7"); E("v_cndmask_b32 v11, -1, v11, vcc")
        E(f"s_mov_b32 s22, {K*QROW}"); E("s_mov_b32 s23, 0x20000")
        for st in range(cfg.pf0,cfg.pf0+cfg.pf):
            E(f"s_mov_b32 s36, {st*64*QROW+3584}")
            E(f"buffer_load_dword v{20+st}, v11, s[20:23], s36 offen")
        if cfg.pfw: E("s_waitcnt vmcnt(0)")
        E("L_nopf:")
        E.vm.append("A")
    bm_full(E)
    E(f"s_mul_i32 s34, s29, {256*OROW}"); E("s_lshl_b32 s35, s31, 8"); E("s_add_u32 s34, s34, s35")
    build_srd(E,24,14,34,M*OROW)
    if cfg.tlb&1:
        E("s_lshl_b32 s33, s31, 9"); build_srd(E,20,6,33,K*QROW)
        E("v_lshlrev_b32 v11, 21, v0"); E("v_cmp_gt_u32 vcc, 8, v0"); E("s_nop 1"); E("v_cndmask_b32 v11, -1, v11, vcc")
        E.vmem("buffer_load_dword v15, v11, s[20:23], 0 offen","PF")
    if cfg.tlb&2:
        E(f"v_mul_u32_u24 v11, {63*OROW}, v2"); E(f"s_mul_i32 s36, s28, {64*OROW}"); E("v_add_u32 v11, s36, v11")
        E("v_cmp_gt_u32 vcc, 2, v2"); E("s_nop 1"); E("v_cndmask_b32 v11, -1, v11, vcc")
        E.vmem("buffer_load_dword v15, v11, s[24:27], 0 offen","PF")
    E("v_bfe_u32 v11, v3, 1, 3"); E("v_xor_b32 v11, v11, v1"); E("v_lshlrev_b32 v11, 4, v11")
    E("s_lshl_b32 s36, s28, 13")
    E("v_lshl_add_u32 v11, v3, 7, v11"); E("v_add_u32 v4, s36, v11")
    for u in range(1,4): E(f"v_xor_b32 v{vxb[u]}, {32*u}, v4")
    for u in range(4): E(f"v_mov_b32 v{vx[u]}, v{vxb[u]}")
    E(f"v_lshlrev_b32 v{vw}, 4, v2"); E(f"v_add_u32 v{vw}, {cfg.WBASE}, v{vw}")
    E(f"v_lshlrev_b32 v10, 4, v0"); E(f"v_add_u32 v10, {cfg.ABASE}, v10")
    E("s_mov_b32 s38, 0")
    E.waitvm("A")
    E("v_lshlrev_b32 v16, 16, v12"); E("v_and_b32 v17, 0xffff0000, v12"); E("v_lshlrev_b32 v18, 16, v13"); E("v_and_b32 v19, 0xffff0000, v13")
    if not cfg.cvt:
        for i in range(4): E(f"v_mul_f32 v{16+i}, 0x58000000, v{16+i}")
    E("ds_write_b128 v10, v[16:19]")
    E("s_lshl_b32 s36, s28, 6"); E("v_lshl_add_u32 v11, v1, 2, s36"); E(f"v_mul_u32_u24 v11, {OROW}, v11")
    E(f"v_lshl_add_u32 v{vo}, v3, 3, v11")
    if cfg.prio: E(f"s_setprio {cfg.prio}")
    stamp(E,cfg,1)
    if cfg.stamps==2: E("s_mov_b32 s75, 0")
    E("s_waitcnt lgkmcnt(0)")
    E("s_barrier")
    E("s_barrier")
    stamp(E,cfg,2)
    def reads(j,u):
        s=u%2
        xr=lambda b: f"ds_read_b128 v[{XF[s]+4*b}:{XF[s]+4*b+3}], v{vx[u]} offset:{b*4096}"
        wr=lambda jj: f"ds_read_b128 v[{WF[s]+4*jj}:{WF[s]+4*jj+3}], v{vw} offset:{(j%2)*WSLOT+(u*4+jj)*1024}"
        return [xr(0)]+[wr(jj) for jj in range(4)]+[xr(1)]
    def mfma(a,xa,wa,first=False):
        c = "0" if first else f"v[{a}:{a+15}]"
        E(f"v_mfma_f32_32x32x16_bf16 v[{a}:{a+15}], v[{xa}:{xa+3}], v[{wa}:{wa+3}], {c}")
    def mfmas(s,first,inter,per=1,pend=0):
        inter=list(inter); issued=0; g=0
        need=[2,3,4,5,6,6,6,6]
        for b in range(2):
            for jj in (range(4) if (b==0 or not cfg.snake) else range(3,-1,-1)):
                if pend and g<5: E(f"s_waitcnt lgkmcnt({pend-need[g]+issued})")
                mfma(acc(b,jj),XF[s]+4*b,WF[s]+4*jj,first)
                for _ in range(per):
                    if inter:
                        x=inter.pop(0); E(x)
                        if x.startswith("ds_read"): issued+=1
                g+=1
        for x in inter: E(x)
    def bump():
        return ring_advance(cfg,38)+[f"v_add_u32 v{vx[u]}, s38, v{vxb[u]}" for u in range(4)]
    def pstamp():
        if cfg.stamps==2:
            E("s_sub_u32 s72, s72, s60"); E("v_mov_b32 v251, s72"); E("v_cmp_eq_u32 vcc, s75, v2"); E("s_add_u32 s75, s75, 1"); E("s_nop 0"); E("v_cndmask_b32 v250, v250, v251, vcc")
    def phase(j):
        if cfg.stamps==2: E("s_memtime s[72:73]")
        cw = cfg.cw and cfg.stamps!=2
        if j==0:
            for r in reads(0,0): E(r)
        else: mfmas(1,False,reads(j,0),cfg.rd2)
        if not cw: E("s_waitcnt lgkmcnt(0)")
        pstamp()
        mfmas(0,j==0,reads(j,1),cfg.rd2,6 if cw else 0)
        if not cw: E("s_waitcnt lgkmcnt(0)")
        mfmas(1,False,reads(j,2),cfg.rd2,6 if cw else 0)
        if not cw: E("s_waitcnt lgkmcnt(0)")
        mfmas(0,False,reads(j,3)+bump(),2,6 if cw else 0)
        E("s_waitcnt lgkmcnt(0)")
        if cfg.bw: E("s_memtime s[88:89]")
        if j<NST-1: E("s_barrier")
        if cfg.bw:
            E("s_memtime s[90:91]"); E("s_waitcnt lgkmcnt(0)"); E("s_sub_u32 s90, s90, s88")
            E("s_add_u32 s86, s86, s90")
    def store_ops(b):
        ops=[]
        for r in range(16):
            t=T+2*r
            ops.append(f"v_cvt_pk_bf16_f32 v{t}, v{acc(b,0)+r}, v{acc(b,1)+r}")
            ops.append(f"v_cvt_pk_bf16_f32 v{t+1}, v{acc(b,2)+r}, v{acc(b,3)+r}")
            row=32*b+8*(r>>2)+(r&3)
            ops.append(f"s_mov_b32 s36, {row*OROW}")
            ops.append(f"buffer_store_dwordx2 v[{t}:{t+1}], v{vo}, s[24:27], s36 offen {cfg.stpol if (b==0 or cfg.stpol2 is None) else cfg.stpol2}")
        return ops
    phase(0)
    last = NST-2 if cfg.tail else NST
    if cfg.loop:
        n=(last-1)//2
        loopify(E,phase,1,n,2,"L_c_loop")
        for j in range(1+2*n,last): phase(j)
    else:
        for j in range(1,last): phase(j)
    if not cfg.tail:
        mfmas(1,False,[])
        stamp(E,cfg,3)
        E("s_nop 7"); E("s_nop 7")
        for b in range(2):
            for x in store_ops(b): E(x)
    else:
        seq=[(14,0,u) for u in range(4)]+[(14,1,0)]+[(15,0,u) for u in range(4)]+[(14,1,u) for u in range(1,4)]+[(15,1,u) for u in range(4)]
        if cfg.tb==4: seq=[(14,0,u) for u in range(4)]+[(15,0,u) for u in range(4)]+[(14,1,u) for u in range(4)]+[(15,1,u) for u in range(4)]
        if cfg.tb==6: seq=[(14,0,u) for u in range(4)]+[(14,1,0),(14,1,1)]+[(15,0,u) for u in range(4)]+[(14,1,u) for u in range(2,4)]+[(15,1,u) for u in range(4)]
        first15=[i for i,h in enumerate(seq) if h[0]==15][0]
        doneb0=max(i for i,h in enumerate(seq) if h[1]==0)
        SX=(XF[0],196,XF[1]); SW=(WF[0],200,WF[1])
        s15=(15%cfg.NX)*XSLOT
        def hreads(i):
            (st,b,u)=seq[i]; k=i%3
            xa = vx[u] if st==14 else vxb[u]
            R=[f"ds_read_b128 v[{SX[k]}:{SX[k]+3}], v{xa} offset:{b*4096+(0 if st==14 else s15)}"]
            R+=[f"ds_read_b128 v[{SW[k]+4*jj}:{SW[k]+4*jj+3}], v{vw} offset:{(st%2)*WSLOT+(u*4+jj)*1024}" for jj in range(4)]
            return R
        assert s15+4096+0<65536
        if cfg.stamps==2: E("s_memtime s[72:73]")
        mfmas(1,False,hreads(0)+hreads(1),2)
        so=[]
        for i,(st,b,u) in enumerate(seq):
            k=i%3
            if i+2==first15:
                E("s_waitcnt lgkmcnt(5)"); E("s_barrier")
            elif i+1<len(seq): E(f"s_waitcnt lgkmcnt(5)")
            else: E("s_waitcnt lgkmcnt(0)")
            if i==0: pstamp()
            nxt=hreads(i+2) if i+2<len(seq) else []
            if i==doneb0+2: so=store_ops(0)
            left=len(seq)-i
            for jj in range(4):
                mfma(acc(b,jj),SX[k],SW[k]+4*jj)
                for _ in range(2 if jj==0 else 1):
                    if nxt: E(nxt.pop(0))
                if so:
                    slots=(left*4-jj)
                    n=-(-len(so)//slots)
                    for _ in range(n):
                        if so: E(so.pop(0))
            assert not nxt
        assert not so
        stamp(E,cfg,3)
        E("s_nop 7"); E("s_nop 7")
        for x in store_ops(1): E(x)
    if cfg.stamps or cfg.enc: stamp(E,cfg,4); E("s_waitcnt vmcnt(0)")
    finish(E,cfg,True)

def ablate(L,cfg):
    R=[]
    for x in L:
        if 'V' in cfg.abl and (x.startswith("v_fma_f32") or (x.startswith("v_mul_f32") and "0x" not in x and int(x.split()[1][1:-1])>=64) or (x.startswith("v_cvt_pk") and int(x.split()[1][1:-1])<64)): continue
        if 'X' in cfg.abl and x.endswith(" lds"): continue
        if 'W' in cfg.abl and x.startswith("buffer_load") and "s[20:23]" in x: continue
        if 'M' in cfg.abl and x.startswith("v_mfma"): continue
        if 'D' in cfg.abl and x.startswith("ds_write") and "v10," not in x: continue
        if 'R' in cfg.abl and x.startswith("ds_read") and int(x.split()[1][2:].split(":")[0])>=128: continue
        if 'S' in cfg.abl and x.startswith("buffer_store") and "s[24:27]" in x: continue
        R.append(x)
    return R
def generate(cfg):
    out=[header(cfg)]
    E=Emit(); common_prologue(E,cfg); out+=E.L
    E=Emit(); producer(E,cfg); out+=E.L
    E=Emit(); consumer(E,cfg); out+=E.L
    out.append("L_exit:"); out.append("s_endpgm"); out.append("L_codeend:")
    return "\n".join(ablate(out,cfg))+footer(cfg)

if __name__=="__main__":
    kw={}
    for a in sys.argv[2:]:
        k,v=a.split("="); kw[k]=v.replace("_"," ") if k in ("stpol","abl","wpos","enc","gv","stpol2") else int(v)
    open(sys.argv[1],"w").write(generate(Cfg(**kw)))
```

```python
import sys
KN = "standalone__weight_only_int_omniquant__prompt_kernel"
M, K, N = 2048, 1024, 3584
QROW = N*4
OROW = N*2
NST = 16
XSLOT = 32768
WSLOT = 16384
NWG = 224

class Cfg:
    def __init__(s, **kw):
        s.NX = 3; s.XL = 2
        s.RW = 2; s.LW = 1; s.U = 2
        s.stamps = 0; s.prio = 1; s.pprio = 2; s.codepf = 1; s.loop = 1
        s.spin = 0; s.stpol = 'sc1'; s.abl = ''
        s.g = 1; s.g2 = 2; s.start = 0; s.xrot = 8; s.dfirst = 2; s.xfirst = 0; s.tailv = 6
        s.wpos = '60 66 73 80'; s.snake = 1; s.tail = 1; s.tb = 5; s.cvt = 0; s.enc = ''; s.tlb = 0; s.pf = 0; s.pf0 = 0; s.pfw = 0; s.cw = 1; s.rd2 = 1; s.bw = 0; s.gv = ''; s.stpol2 = None; s.pre = 0; s.szf = 0; s.diag = 0
        s.__dict__.update(kw)
        s.WBASE = s.NX*XSLOT
        s.ABASE = s.WBASE + 2*WSLOT
        s.LDS = s.ABASE + 4096

def order(o, hi, cfg):
    if cfg.g==0: return list(range(NST))
    def key(s):
        if s%4==o and s>=cfg.start:
            g = cfg.g2 if ((s>>2)&1)==hi else cfg.g
            if cfg.gv:
                t=cfg.gv.split()[s>>2]; g=int(t[1] if ((s>>2)&1)==hi else t[0])
                if g==0: return s
            return s-g-0.5
        return s
    return sorted(range(NST), key=key)
def table(o,hi,cfg):
    v=0
    for i,s in enumerate(order(o,hi,cfg)): v|=s<<(4*i)
    return v

class Emit:
    def __init__(s): s.L=[]; s.vm=[]
    def __call__(s, x): s.L.append(x)
    def vmem(s, x, tag): s.L.append(x); s.vm.append(tag)
    def waitvm(s, tag, extra=""):
        idx=[i for i,t in enumerate(s.vm) if t==tag]
        n=(len(s.vm)-1-idx[-1]) if idx else 63
        n=min(n,63)
        s.L.append(f"s_waitcnt vmcnt({n}){extra}")
        return n

def stamp(E, cfg, i):
    if cfg.stamps or cfg.enc: E(f"s_memtime s[{60+2*i}:{61+2*i}]")

def header(cfg):
    return f"""; Fused int4-weight dequant + bf16 GEMM: out[2048,3584] = (x*act) @ ((qw-z)*s); one 256x128 tile per workgroup.
; Waves 0-3 multiply (v_mfma 32x32x16, operands from LDS); waves 4-7 stream x into LDS (LDS-DMA) and turn qw into bf16.
; @launch grid=({NWG},1,1) block=(512,1,1) lds={cfg.LDS}
.amdgcn_target "amdgcn-amd-amdhsa--gfx950"
.text
.globl {KN}
.p2align 8
.type {KN},@function
{KN}:
"""
def footer(cfg):
    return f"""
.section .rodata,"a"
.p2align 6
.amdhsa_kernel {KN}
  .amdhsa_next_free_vgpr 256
  .amdhsa_next_free_sgpr 96
  .amdhsa_accum_offset 256
  .amdhsa_group_segment_fixed_size 0
  .amdhsa_kernarg_size 64
  .amdhsa_user_sgpr_count 2
  .amdhsa_user_sgpr_kernarg_segment_ptr 1
  .amdhsa_system_sgpr_workgroup_id_x 1
  .amdhsa_float_denorm_mode_32 3
.end_amdhsa_kernel
"""
def common_prologue(E, cfg):
    if cfg.spin or cfg.enc: E("s_memrealtime s[80:81]")
    if cfg.stamps: E("s_memrealtime s[76:77]")
    stamp(E,cfg,0)
    if cfg.bw: E("s_mov_b32 s86, 0")
    E(f"s_cmp_ge_u32 s2, {NWG}"); E("s_cbranch_scc1 L_exit")
    E("s_load_dwordx4 s[4:7], s[0:1], 0")
    E("s_load_dwordx4 s[12:15], s[0:1], 32")
    E("s_load_dwordx4 s[8:11], s[0:1], 16")
    if cfg.stamps: E("s_load_dwordx2 s[58:59], s[0:1], 56")
    E("v_lshrrev_b32 v1, 6, v0")
    E("v_and_b32 v2, 63, v0")
    E("v_readfirstlane_b32 s28, v1")
    E("s_and_b32 s45, s2, 7")
    E("s_lshr_b32 s47, s2, 3")
    E("s_lshr_b32 s30, s47, 2")
    E("s_lshr_b32 s31, s45, 1"); E("s_mul_i32 s31, s31, 7"); E("s_add_u32 s31, s30, s31")
    E("s_and_b32 s29, s47, 3")
    E("v_and_b32 v3, 31, v0")
    E("v_bfe_u32 v1, v0, 5, 1")
    E("s_cmp_ge_u32 s28, 4")
    E("s_cbranch_scc0 L_consumer")

def bm_full(E):
    E("s_and_b32 s42, s2, 1"); E("s_lshl_b32 s42, s42, 2"); E("s_add_u32 s29, s29, s42")

def build_srd(E, base, ptr, off, size):
    E(f"s_add_u32 s{base}, s{ptr}, s{off}"); E(f"s_addc_u32 s{base+1}, s{ptr+1}, 0")
    E(f"s_sub_u32 s{base+2}, {size}, s{off}"); E(f"s_mov_b32 s{base+3}, 0x20000")

def nextstage(E, cfg, pair, dst):
    if cfg.xrot:
        E(f"s_add_u32 s{dst}, s{pair}, s45"); E(f"s_and_b32 s{dst}, s{dst}, 15")
    else: E(f"s_and_b32 s{dst}, s{pair}, 15")
    E(f"s_lshr_b64 s[{pair}:{pair+1}], s[{pair}:{pair+1}], 4")

def ring_advance(cfg, r):
    return [f"s_add_u32 s{r}, s{r}, {XSLOT}", f"s_cmp_eq_u32 s{r}, {cfg.NX*XSLOT}", f"s_cselect_b32 s{r}, 0, s{r}"]

def loopify(E, phase, j0, n, U, lab):
    E(f"s_mov_b32 s44, {n}")
    bodies=[]
    for it in range(n):
        mark=len(E.L)
        for j in range(j0+it*U,j0+(it+1)*U): phase(j)
        bodies.append(E.L[mark:]); del E.L[mark:]
    assert len(set(len(b) for b in bodies))==1
    merged=[]
    for tup in zip(*bodies):
        if len(set(tup))==1: merged.append(tup[0])
        else:
            assert all(x.startswith("s_waitcnt vmcnt") for x in tup), tup
            merged.append(min(tup,key=lambda x:int(x.split("(")[1].split(")")[0])))
    E(".p2align 6"); E(lab+":")
    E.L.extend(merged)
    E("s_sub_u32 s44, s44, 1"); E("s_cmp_lg_u32 s44, 0"); E(f"s_cbranch_scc1 {lab}")

def producer(E, cfg):
    RAW0 = 64
    OUT, AV, SV, ZV = 32, (48,56), 16, 20
    VQ, VX, vw, va = 200, 208, 7, 9
    def raw(st,e,j): return RAW0 + (st%cfg.RW)*32 + e*4 + j
    tabs=[table(o&3,o>>2,cfg) for o in range(8)]
    first=0
    for o in range(8): first|=(tabs[o]&15)<<(4*o)
    E("s_sub_u32 s31, s28, 4") if False else None
    E("s_add_u32 s46, s29, s30"); E("s_and_b32 s46, s46, 3"); E("s_and_b32 s42, s30, 4"); E("s_or_b32 s46, s46, s42")
    assert cfg.xrot in (0,8) and cfg.XL==2
    E("s_lshl_b32 s42, s46, 2"); E(f"s_lshr_b32 s37, {first:#x}, s42")
    E("s_and_b32 s37, s37, 15")
    if cfg.xrot:
        E("s_and_b32 s45, s2, 1"); E("s_lshl_b32 s45, s45, 3"); E("s_xor_b32 s37, s37, s45")
    E("s_lshl_b32 s33, s31, 9")
    E("s_lshl_b32 s35, s31, 8")
    E("s_sub_u32 s31, s28, 4")
    E("s_lshl_b32 s36, s31, 4")
    E("v_lshl_add_u32 v10, v1, 3, s36")
    E(f"v_mul_u32_u24 v10, {QROW}, v10")
    E(f"v_lshl_add_u32 v{VQ}, v3, 4, v10")
    for e in range(1,8): E(f"v_add_u32 v{VQ+e}, {e*QROW}, v{VQ}")
    E(f"s_mul_i32 s36, s37, {64*QROW}")
    E("s_waitcnt lgkmcnt(0)")
    stamp(E,cfg,1)
    build_srd(E,20,6,33,K*QROW)
    def advance():
        if cfg.LW==2: E("s_lshl_b32 s40, s37, 7")
        E("s_and_b32 s37, s52, 15"); E("s_lshr_b64 s[52:53], s[52:53], 4")
        E(f"s_mul_i32 s36, s37, {64*QROW}")
        if cfg.LW==1: E("s_lshl_b32 s40, s37, 7")
    def ring():
        E(f"s_add_u32 s43, s43, {XSLOT}"); E("s_cmp_eq_u32 s43, s38"); E("s_cselect_b32 s43, s39, s43")
    def wload(st,e):
        r=raw(st,e,0)
        E.vmem(f"buffer_load_dwordx4 v[{r}:{r+3}], v{VQ+e}, s[20:23], s36 offen", ("W",st))
    def xdma(st,i):
        E.vmem(f"buffer_load_dwordx4 v{VX+i}, s[16:19], s40 offen offset:{(i%4)*1024} lds", ("X",st))
    M0A="s_mov_b32 m0, s43"; M0B="s_add_u32 m0, s43, 4096"
    def aread(st):
        a=AV[st%2]
        E(f"v_lshl_add_u32 v12, s40, 1, v{va}")
        E(f"ds_read_b128 v[{a}:{a+3}], v12"); E(f"ds_read_b128 v[{a+4}:{a+7}], v12 offset:16")
    if cfg.diag==2:
        wload(0,0); E("s_waitcnt vmcnt(0)"); stamp(E,cfg,2)
    for e in range(8): wload(0,e)
    if cfg.diag==1: E("s_waitcnt vmcnt(0)"); stamp(E,cfg,2)
    E("v_lshl_add_u32 v10, v3, 3, s35")
    E.vmem("global_load_dwordx2 v[24:25], v10, s[8:9]", "SZ")
    E.vmem("global_load_dwordx2 v[26:27], v10, s[10:11]", "SZ")
    if cfg.diag: E("s_waitcnt vmcnt(0)"); stamp(E,cfg,3)
    bm_full(E); E("s_lshl_b32 s32, s29, 19")
    build_srd(E,16,4,32,M*K*2)
    E("v_lshrrev_b32 v10, 3, v2"); E("v_and_b32 v12, 7, v2"); E("v_lshrrev_b32 v13, 4, v2"); E("v_xor_b32 v12, v12, v13")
    E("v_lshlrev_b32 v12, 4, v12"); E(f"v_lshl_add_u32 v{VX}, v10, 11, v12"); E(f"v_xor_b32 v{VX+1}, 64, v{VX}")
    for i in range(7,1,-1): E(f"v_add_u32 v{VX+i}, {i*16384-(i%4)*1024}, v{VX+i%2}")
    E(f"v_add_u32 v{VX+1}, {16384-1024}, v{VX+1}")
    E("s_lshl_b32 s39, s31, 13"); E("s_lshl_b32 s41, s31, 17"); E(f"s_add_u32 s38, s39, {cfg.NX*XSLOT}"); E("s_mov_b32 s43, s39")
    for i in range(8): E(f"v_add_u32 v{VX+i}, s41, v{VX+i}")
    E("s_lshl_b32 s40, s37, 7")
    for i in range(8):
        if i%4==0: E(M0A if i==0 else M0B); E("s_nop 0")
        xdma(0,i)
    if cfg.diag: E("s_waitcnt vmcnt(0)"); stamp(E,cfg,4)
    ring(); E(M0A)
    E(f"s_mov_b32 s52, {tabs[0]&0xffffffff:#x}"); E(f"s_mov_b32 s53, {tabs[0]>>32:#x}")
    for o in range(1,8):
        if tabs[o]!=tabs[0]:
            E(f"s_cmp_eq_u32 s46, {o}"); E(f"s_cselect_b32 s52, {tabs[o]&0xffffffff:#x}, s52"); E(f"s_cselect_b32 s53, {tabs[o]>>32:#x}, s53")
    if cfg.xrot:
        E("s_mul_i32 s45, s45, 0x11111111"); E("s_xor_b32 s52, s52, s45"); E("s_xor_b32 s53, s53, s45")
    E("s_lshr_b64 s[52:53], s[52:53], 4")
    E("s_lshl_b32 s42, s31, 12"); E(f"s_add_u32 s42, s42, {cfg.WBASE}")
    E(f"v_lshl_add_u32 v{vw}, v2, 4, s42")
    E("s_lshl_b32 s42, s31, 6"); E(f"s_add_u32 s42, s42, {cfg.ABASE}")
    E(f"v_lshl_add_u32 v{va}, v1, 5, s42")
    E("s_mov_b32 s47, s40")
    if cfg.LW==2:
        E("s_and_b32 s37, s52, 15"); E("s_lshr_b64 s[52:53], s[52:53], 4"); E(f"s_mul_i32 s36, s37, {64*QROW}")
        for e in range(8): wload(1,e)
    advance()
    if cfg.LW==1:
        for e in range(cfg.pre): wload(1,e)
    if not cfg.diag: stamp(E,cfg,2)
    E("s_barrier")
    if not cfg.diag: stamp(E,cfg,3)
    E(f"v_lshl_add_u32 v12, s47, 1, v{va}")
    E(f"ds_read_b128 v[{AV[0]}:{AV[0]+3}], v12"); E(f"ds_read_b128 v[{AV[0]+4}:{AV[0]+7}], v12 offset:16")
    E.waitvm("SZ")
    for j in range(4):
        for (src,dst) in ((24,SV),(26,ZV)):
            if j%2==0: E(f"v_lshlrev_b32 v{dst+j}, 16, v{src+j//2}")
            else: E(f"v_and_b32 v{dst+j}, 0xffff0000, v{src+j//2}")
    for j in range(4):
        E(f"v_mul_f32 v{ZV+j}, v{ZV+j}, v{SV+j}")
        if cfg.cvt:
            E(f"v_mul_f32 v{SV+j}, 1.0, v{SV+j}")
        else:
            E(f"v_mul_f32 v{SV+j}, 0x71800000, v{SV+j}")
            E(f"v_mul_f32 v{ZV+j}, 0x27000000, v{ZV+j}")
    if cfg.pprio: E(f"s_setprio {cfg.pprio}")
    def phase(j):
        st=j+1
        xs=j+cfg.XL; ws=st+cfg.LW
        a=AV[st%2]
        xi=[(lambda i=i: (xdma(xs,i), (E(M0B) if i==3 else None))) for i in range(8)] if xs<NST else []
        wi=[(lambda e=e: wload(ws,e)) for e in range(cfg.pre if (j==-1 and cfg.LW==1) else 0,8)] if ws<NST else []
        if cfg.xfirst==1: mem=xi+wi
        elif cfg.xfirst==0: mem=wi+xi
        else:
            mem=[]
            while xi or wi:
                if xi: mem.append(xi.pop(0))
                if wi: mem.append(wi.pop(0))
        for _ in range(cfg.dfirst if j>=0 else 0):
            if mem: mem.pop(0)()
        E.waitvm(("W",st), " lgkmcnt(0)")
        if j==-1 and not cfg.diag: stamp(E,cfg,4)
        if st+1<NST: aread(st+1)
        sl=(st%2)*WSLOT
        work=[]; wr=[]
        for jj in range(4):
            for half in range(2):
                rs=range(4*half,4*half+4)
                if cfg.cvt:
                    for e in rs: r=raw(st,e,jj); work.append(f"v_cvt_f32_i32 v{r}, v{r}")
                for e in rs: r=raw(st,e,jj); work.append(f"v_fma_f32 v{r}, v{r}, v{SV+jj}, -v{ZV+jj}")
                for e in rs: r=raw(st,e,jj); work.append(f"v_mul_f32 v{r}, v{r}, v{a+e}")
                for p in (2*half,2*half+1):
                    work.append(f"v_cvt_pk_bf16_f32 v{OUT+4*jj+p}, v{raw(st,2*p,jj)}, v{raw(st,2*p+1,jj)}")
            wr.append(f"ds_write_b128 v{vw}, v[{OUT+4*jj}:{OUT+4*jj+3}] offset:{sl+jj*1024}")
        per=len(work)//4
        pos=[int(x)*per//20 for x in cfg.wpos.split()] if (cfg.wpos and mem) else [per,2*per,3*per,4*per]
        for jj in (3,2,1,0):
            assert pos[jj]>=per*(jj+1)
            work.insert(pos[jj],wr[jj])
        nm=len(mem)-cfg.tailv if len(mem)>cfg.tailv else len(mem)
        nw=len(work); done=0
        for i,w in enumerate(work):
            E(w)
            while done<nm and (i+1)*(nm+1) >= (done+1)*nw: mem.pop(0)(); done+=1
        while mem: mem.pop(0)()
        if xs+1<NST: ring(); E(M0A)
        if ws+1<NST: advance()
        elif xs+1<NST: E("s_lshl_b32 s40, s37, 7")
        E.waitvm(("X",st), " lgkmcnt(0)")
        if cfg.bw: E("s_memtime s[88:89]")
        E("s_barrier")
        if cfg.bw:
            E("s_memtime s[90:91]"); E("s_waitcnt lgkmcnt(0)"); E("s_sub_u32 s90, s90, s88")
            E("s_add_u32 s86, s86, s90")
    U=cfg.U
    assert U%cfg.RW==0 and U%2==0
    last_full = min(NST-1-cfg.XL, NST-2-cfg.LW) - 1
    phase(-1)
    jn=0
    if cfg.loop:
        n=(last_full+1)//U
        if n>=2:
            loopify(E,phase,0,n,U,"L_p_loop"); jn=n*U
    for j in range(jn,NST-1): phase(j)
    finish(E,cfg,False)

def finish(E,cfg,cons):
    if cfg.enc:
        role,a,b=cfg.enc.split(":")
        if (role=="c")==cons:
            E("s_waitcnt vmcnt(0)"); stamp(E,cfg,5); E("s_memrealtime s[82:83]"); E("s_waitcnt lgkmcnt(0)")
            if a=="r": E("s_sub_u32 s84, s82, s80")
            else: E(f"s_sub_u32 s84, s{60+2*int(b)}, s{60+2*int(a)}"); E("s_lshr_b32 s84, s84, 3")
            E("s_add_u32 s84, s84, 4000")
            lab=f"L_enc{len(E.L)}"
            E(lab+":"); E("s_memrealtime s[82:83]"); E("s_waitcnt lgkmcnt(0)"); E("s_sub_u32 s82, s82, s80")
            E(f"s_cmp_lt_u32 s82, s84"); E(f"s_cbranch_scc1 {lab}")
    if cfg.spin:
        lab=f"L_spin{len(E.L)}"
        E("s_waitcnt vmcnt(0)")
        E(lab+":"); E("s_memrealtime s[82:83]"); E("s_waitcnt lgkmcnt(0)"); E("s_sub_u32 s82, s82, s80")
        E(f"s_cmp_lt_u32 s82, {cfg.spin}"); E(f"s_cbranch_scc1 {lab}")
    if cfg.stamps:
        stamp(E,cfg,5)
        E("s_memrealtime s[78:79]")
        E("s_waitcnt lgkmcnt(0)")
        if cfg.bw: E("s_add_u32 s62, s60, s86")
        E("s_mov_b32 s48, s58"); E("s_mov_b32 s49, s59"); E("s_mov_b32 s50, 0x1000000"); E("s_mov_b32 s51, 0x20000")
        E("s_lshl_b32 s52, s2, 3"); E("s_add_u32 s52, s52, s28"); E("s_lshl_b32 s52, s52, 5")
        E("v_mov_b32 v10, s76"); E("v_mov_b32 v11, s78")
        for i,r in enumerate((62,64,66,68,70)):
            E(f"s_sub_u32 s{r}, s{r}, s60"); E(f"v_mov_b32 v{12+i}, s{r}")
        E("s_getreg_b32 s53, hwreg(HW_REG_HW_ID)"); E("v_mov_b32 v17, s53")
        E("v_mov_b32 v9, s52")
        E("s_mov_b64 exec, 1")
        E("buffer_store_dwordx4 v[10:13], v9, s[48:51], 0 offen")
        E("buffer_store_dwordx4 v[14:17], v9, s[48:51], 0 offen offset:16")
        if cfg.stamps==2 and cons:
            E("s_mov_b64 exec, 0xffff"); E("s_lshl_b32 s52, s2, 3"); E("s_add_u32 s52, s52, s28"); E("s_lshl_b32 s52, s52, 6"); E("s_add_u32 s52, s52, 0x10000")
            E("v_and_b32 v9, 63, v0"); E("v_lshlrev_b32 v9, 2, v9"); E("v_add_u32 v9, s52, v9")
            E("buffer_store_dword v250, v9, s[48:51], 0 offen")
    E("s_endpgm")

def consumer(E,cfg):
    ACC=16; XF=(144,152); WF=(160,176)
    vxb=(4,5,6,7); vx=(192,193,194,195); vw=8; vo=9
    T=216
    def acc(b,j): return ACC+(b*4+j)*16
    E("L_consumer:")
    E("v_lshlrev_b32 v10, 3, v0")
    E("s_waitcnt lgkmcnt(0)")
    E.vmem("global_load_dwordx2 v[12:13], v10, s[12:13]","A")
    if cfg.codepf:
        E("s_getpc_b64 s[48:49]"); E("L_pc:")
        E(f"s_sub_u32 s48, s48, L_pc-{KN}"); E("s_subb_u32 s49, s49, 0")
        E(f"s_mov_b32 s50, L_codeend-{KN}"); E("s_mov_b32 s51, 0x20000")
        E("s_lshl_b32 s43, s47, 9"); E("v_lshlrev_b32 v11, 6, v0"); E("v_add_u32 v14, s43, v11")
        E("v_cmp_gt_u32 vcc, 8, v0"); E("s_nop 1"); E("v_cndmask_b32 v11, -1, v14, vcc")
        E.vmem("buffer_load_dword v14, v11, s[48:51], 0 offen","PF")
    if cfg.pf:
        E("s_cmp_ge_u32 s45, 2"); E("s_cbranch_scc1 L_nopf")
        E("s_mul_i32 s36, s45, 28"); E("s_add_u32 s36, s36, s47"); E("s_lshl_b32 s36, s36, 8")
        E("v_add_u32 v11, s36, v0"); E("v_mul_u32_u24 v14, 24967, v11"); E("v_lshrrev_b32 v14, 22, v14")
        E("v_mul_u32_u24 v15, 168, v14"); E("v_sub_u32 v15, v11, v15")
        E(f"v_mul_u32_u24 v11, {QROW}, v14"); E("v_lshl_add_u32 v11, v15, 6, v11")
        E("v_cmp_gt_u32 vcc, 64, v14"); E("s_mov_b32 s20, s6"); E("s_mov_b32 s21, s7"); E("v_cndmask_b32 v11, -1, v11, vcc")
        E(f"s_mov_b32 s22, {K*QROW}"); E("s_mov_b32 s23, 0x20000")
        for st in range(cfg.pf0,cfg.pf0+cfg.pf):
            E(f"s_mov_b32 s36, {st*64*QROW+3584}")
            E(f"buffer_load_dword v{20+st}, v11, s[20:23], s36 offen")
        if cfg.pfw: E("s_waitcnt vmcnt(0)")
        E("L_nopf:")
        E.vm.append("A")
    bm_full(E)
    E(f"s_mul_i32 s34, s29, {256*OROW}"); E("s_lshl_b32 s35, s31, 8"); E("s_add_u32 s34, s34, s35")
    build_srd(E,24,14,34,M*OROW)
    if cfg.tlb&1:
        E("s_lshl_b32 s33, s31, 9"); build_srd(E,20,6,33,K*QROW)
        E("v_lshlrev_b32 v11, 21, v0"); E("v_cmp_gt_u32 vcc, 8, v0"); E("s_nop 1"); E("v_cndmask_b32 v11, -1, v11, vcc")
        E.vmem("buffer_load_dword v15, v11, s[20:23], 0 offen","PF")
    if cfg.tlb&2:
        E(f"v_mul_u32_u24 v11, {63*OROW}, v2"); E(f"s_mul_i32 s36, s28, {64*OROW}"); E("v_add_u32 v11, s36, v11")
        E("v_cmp_gt_u32 vcc, 2, v2"); E("s_nop 1"); E("v_cndmask_b32 v11, -1, v11, vcc")
        E.vmem("buffer_load_dword v15, v11, s[24:27], 0 offen","PF")
    E("v_bfe_u32 v11, v3, 1, 3"); E("v_xor_b32 v11, v11, v1"); E("v_lshlrev_b32 v11, 4, v11")
    E("s_lshl_b32 s36, s28, 13")
    E("v_lshl_add_u32 v11, v3, 7, v11"); E("v_add_u32 v4, s36, v11")
    for u in range(1,4): E(f"v_xor_b32 v{vxb[u]}, {32*u}, v4")
    for u in range(4): E(f"v_mov_b32 v{vx[u]}, v{vxb[u]}")
    E(f"v_lshlrev_b32 v{vw}, 4, v2"); E(f"v_add_u32 v{vw}, {cfg.WBASE}, v{vw}")
    E(f"v_lshlrev_b32 v10, 4, v0"); E(f"v_add_u32 v10, {cfg.ABASE}, v10")
    E("s_mov_b32 s38, 0")
    E.waitvm("A")
    E("v_lshlrev_b32 v16, 16, v12"); E("v_and_b32 v17, 0xffff0000, v12"); E("v_lshlrev_b32 v18, 16, v13"); E("v_and_b32 v19, 0xffff0000, v13")
    if not cfg.cvt:
        for i in range(4): E(f"v_mul_f32 v{16+i}, 0x58000000, v{16+i}")
    E("ds_write_b128 v10, v[16:19]")
    E("s_lshl_b32 s36, s28, 6"); E("v_lshl_add_u32 v11, v1, 2, s36"); E(f"v_mul_u32_u24 v11, {OROW}, v11")
    E(f"v_lshl_add_u32 v{vo}, v3, 3, v11")
    if cfg.prio: E(f"s_setprio {cfg.prio}")
    stamp(E,cfg,1)
    if cfg.stamps==2: E("s_mov_b32 s75, 0")
    E("s_waitcnt lgkmcnt(0)")
    E("s_barrier")
    E("s_barrier")
    stamp(E,cfg,2)
    def reads(j,u):
        s=u%2
        xr=lambda b: f"ds_read_b128 v[{XF[s]+4*b}:{XF[s]+4*b+3}], v{vx[u]} offset:{b*4096}"
        wr=lambda jj: f"ds_read_b128 v[{WF[s]+4*jj}:{WF[s]+4*jj+3}], v{vw} offset:{(j%2)*WSLOT+(u*4+jj)*1024}"
        return [xr(0)]+[wr(jj) for jj in range(4)]+[xr(1)]
    def mfma(a,xa,wa,first=False):
        c = "0" if first else f"v[{a}:{a+15}]"
        E(f"v_mfma_f32_32x32x16_bf16 v[{a}:{a+15}], v[{xa}:{xa+3}], v[{wa}:{wa+3}], {c}")
    def mfmas(s,first,inter,per=1,pend=0):
        inter=list(inter); issued=0; g=0
        need=[2,3,4,5,6,6,6,6]
        for b in range(2):
            for jj in (range(4) if (b==0 or not cfg.snake) else range(3,-1,-1)):
                if pend and g<5: E(f"s_waitcnt lgkmcnt({pend-need[g]+issued})")
                mfma(acc(b,jj),XF[s]+4*b,WF[s]+4*jj,first)
                for _ in range(per):
                    if inter:
                        x=inter.pop(0); E(x)
                        if x.startswith("ds_read"): issued+=1
                g+=1
        for x in inter: E(x)
    def bump():
        return ring_advance(cfg,38)+[f"v_add_u32 v{vx[u]}, s38, v{vxb[u]}" for u in range(4)]
    def pstamp():
        if cfg.stamps==2:
            E("s_sub_u32 s72, s72, s60"); E("v_mov_b32 v251, s72"); E("v_cmp_eq_u32 vcc, s75, v2"); E("s_add_u32 s75, s75, 1"); E("s_nop 0"); E("v_cndmask_b32 v250, v250, v251, vcc")
    def phase(j):
        if cfg.stamps==2: E("s_memtime s[72:73]")
        cw = cfg.cw and cfg.stamps!=2
        if j==0:
            for r in reads(0,0): E(r)
        else: mfmas(1,False,reads(j,0),cfg.rd2)
        if not cw: E("s_waitcnt lgkmcnt(0)")
        pstamp()
        mfmas(0,j==0,reads(j,1),cfg.rd2,6 if cw else 0)
        if not cw: E("s_waitcnt lgkmcnt(0)")
        mfmas(1,False,reads(j,2),cfg.rd2,6 if cw else 0)
        if not cw: E("s_waitcnt lgkmcnt(0)")
        mfmas(0,False,reads(j,3)+bump(),2,6 if cw else 0)
        E("s_waitcnt lgkmcnt(0)")
        if cfg.bw: E("s_memtime s[88:89]")
        if j<NST-1: E("s_barrier")
        if cfg.bw:
            E("s_memtime s[90:91]"); E("s_waitcnt lgkmcnt(0)"); E("s_sub_u32 s90, s90, s88")
            E("s_add_u32 s86, s86, s90")
    def store_ops(b):
        ops=[]
        for r in range(16):
            t=T+2*r
            ops.append(f"v_cvt_pk_bf16_f32 v{t}, v{acc(b,0)+r}, v{acc(b,1)+r}")
            ops.append(f"v_cvt_pk_bf16_f32 v{t+1}, v{acc(b,2)+r}, v{acc(b,3)+r}")
            row=32*b+8*(r>>2)+(r&3)
            ops.append(f"s_mov_b32 s36, {row*OROW}")
            ops.append(f"buffer_store_dwordx2 v[{t}:{t+1}], v{vo}, s[24:27], s36 offen {cfg.stpol if (b==0 or cfg.stpol2 is None) else cfg.stpol2}")
        return ops
    phase(0)
    last = NST-2 if cfg.tail else NST
    if cfg.loop:
        n=(last-1)//2
        loopify(E,phase,1,n,2,"L_c_loop")
        for j in range(1+2*n,last): phase(j)
    else:
        for j in range(1,last): phase(j)
    if not cfg.tail:
        mfmas(1,False,[])
        stamp(E,cfg,3)
        E("s_nop 7"); E("s_nop 7")
        for b in range(2):
            for x in store_ops(b): E(x)
    else:
        seq=[(14,0,u) for u in range(4)]+[(14,1,0)]+[(15,0,u) for u in range(4)]+[(14,1,u) for u in range(1,4)]+[(15,1,u) for u in range(4)]
        if cfg.tb==4: seq=[(14,0,u) for u in range(4)]+[(15,0,u) for u in range(4)]+[(14,1,u) for u in range(4)]+[(15,1,u) for u in range(4)]
        if cfg.tb==6: seq=[(14,0,u) for u in range(4)]+[(14,1,0),(14,1,1)]+[(15,0,u) for u in range(4)]+[(14,1,u) for u in range(2,4)]+[(15,1,u) for u in range(4)]
        first15=[i for i,h in enumerate(seq) if h[0]==15][0]
        doneb0=max(i for i,h in enumerate(seq) if h[1]==0)
        SX=(XF[0],196,XF[1]); SW=(WF[0],200,WF[1])
        s15=(15%cfg.NX)*XSLOT
        def hreads(i):
            (st,b,u)=seq[i]; k=i%3
            xa = vx[u] if st==14 else vxb[u]
            R=[f"ds_read_b128 v[{SX[k]}:{SX[k]+3}], v{xa} offset:{b*4096+(0 if st==14 else s15)}"]
            R+=[f"ds_read_b128 v[{SW[k]+4*jj}:{SW[k]+4*jj+3}], v{vw} offset:{(st%2)*WSLOT+(u*4+jj)*1024}" for jj in range(4)]
            return R
        assert s15+4096+0<65536
        if cfg.stamps==2: E("s_memtime s[72:73]")
        mfmas(1,False,hreads(0)+hreads(1),2)
        so=[]
        for i,(st,b,u) in enumerate(seq):
            k=i%3
            if i+2==first15:
                E("s_waitcnt lgkmcnt(5)"); E("s_barrier")
            elif i+1<len(seq): E(f"s_waitcnt lgkmcnt(5)")
            else: E("s_waitcnt lgkmcnt(0)")
            if i==0: pstamp()
            nxt=hreads(i+2) if i+2<len(seq) else []
            if i==doneb0+2: so=store_ops(0)
            left=len(seq)-i
            for jj in range(4):
                mfma(acc(b,jj),SX[k],SW[k]+4*jj)
                for _ in range(2 if jj==0 else 1):
                    if nxt: E(nxt.pop(0))
                if so:
                    slots=(left*4-jj)
                    n=-(-len(so)//slots)
                    for _ in range(n):
                        if so: E(so.pop(0))
            assert not nxt
        assert not so
        stamp(E,cfg,3)
        E("s_nop 7"); E("s_nop 7")
        for x in store_ops(1): E(x)
    if cfg.stamps or cfg.enc: stamp(E,cfg,4); E("s_waitcnt vmcnt(0)")
    finish(E,cfg,True)

def ablate(L,cfg):
    R=[]
    for x in L:
        if 'V' in cfg.abl and (x.startswith("v_fma_f32") or (x.startswith("v_mul_f32") and "0x" not in x and int(x.split()[1][1:-1])>=64) or (x.startswith("v_cvt_pk") and int(x.split()[1][1:-1])<64)): continue
        if 'X' in cfg.abl and x.endswith(" lds"): continue
        if 'W' in cfg.abl and x.startswith("buffer_load") and "s[20:23]" in x: continue
        if 'M' in cfg.abl and x.startswith("v_mfma"): continue
        if 'D' in cfg.abl and x.startswith("ds_write") and "v10," not in x: continue
        if 'R' in cfg.abl and x.startswith("ds_read") and int(x.split()[1][2:].split(":")[0])>=128: continue
        if 'S' in cfg.abl and x.startswith("buffer_store") and "s[24:27]" in x: continue
        R.append(x)
    return R
def generate(cfg):
    out=[header(cfg)]
    E=Emit(); common_prologue(E,cfg); out+=E.L
    E=Emit(); producer(E,cfg); out+=E.L
    E=Emit(); consumer(E,cfg); out+=E.L
    out.append("L_exit:"); out.append("s_endpgm"); out.append("L_codeend:")
    return "\n".join(ablate(out,cfg))+footer(cfg)

if __name__=="__main__":
    kw={}
    for a in sys.argv[2:]:
        k,v=a.split("="); kw[k]=v.replace("_"," ") if k in ("stpol","abl","wpos","enc","gv","stpol2") else int(v)
    open(sys.argv[1],"w").write(generate(Cfg(**kw)))
```

```python
import sys
KN = "standalone__weight_only_int_omniquant__prompt_kernel"
M, K, N = 2048, 1024, 3584
QROW = N*4
OROW = N*2
NST = 16
XSLOT = 32768
WSLOT = 16384
NWG = 224

class Cfg:
    def __init__(s, **kw):
        s.NX = 3; s.XL = 2
        s.RW = 2; s.LW = 1; s.U = 2
        s.stamps = 0; s.prio = 1; s.pprio = 2; s.codepf = 1; s.loop = 1
        s.spin = 0; s.stpol = 'sc1'; s.abl = ''
        s.g = 1; s.g2 = 2; s.start = 0; s.xrot = 8; s.dfirst = 2; s.xfirst = 0; s.tailv = 6
        s.wpos = '60 66 73 80'; s.snake = 1; s.tail = 1; s.tb = 5; s.cvt = 0; s.enc = ''; s.tlb = 0; s.pf = 0; s.pf0 = 0; s.pfw = 0; s.cw = 1; s.rd2 = 1; s.bw = 0; s.gv = ''; s.stpol2 = None; s.pre = 0; s.szf = 0; s.diag = 0; s.bpos = 8; s.off = ''
        s.__dict__.update(kw)
        s.WBASE = s.NX*XSLOT
        s.ABASE = s.WBASE + 2*WSLOT
        s.LDS = s.ABASE + 4096

def order(o, hi, cfg):
    if cfg.g==0: return list(range(NST))
    def key(s):
        if s%4==o and s>=cfg.start:
            g = cfg.g2 if ((s>>2)&1)==hi else cfg.g
            if cfg.gv:
                t=cfg.gv.split()[s>>2]; g=int(t[1] if ((s>>2)&1)==hi else t[0])
                if g==0: return s
            return s-g-0.5
        return s
    return sorted(range(NST), key=key)
def table(o,hi,cfg):
    v=0
    for i,s in enumerate(order(o,hi,cfg)): v|=s<<(4*i)
    return v

class Emit:
    def __init__(s): s.L=[]; s.vm=[]
    def __call__(s, x): s.L.append(x)
    def vmem(s, x, tag): s.L.append(x); s.vm.append(tag)
    def waitvm(s, tag, extra=""):
        idx=[i for i,t in enumerate(s.vm) if t==tag]
        n=(len(s.vm)-1-idx[-1]) if idx else 63
        n=min(n,63)
        s.L.append(f"s_waitcnt vmcnt({n}){extra}")
        return n

def stamp(E, cfg, i):
    if cfg.stamps or cfg.enc: E(f"s_memtime s[{60+2*i}:{61+2*i}]")

def header(cfg):
    return f"""; Fused int4-weight dequant + bf16 GEMM: out[2048,3584] = (x*act) @ ((qw-z)*s); one 256x128 tile per workgroup.
; Waves 0-3 multiply (v_mfma 32x32x16, operands from LDS); waves 4-7 stream x into LDS (LDS-DMA) and turn qw into bf16.
; @launch grid=({NWG},1,1) block=(512,1,1) lds={cfg.LDS}
.amdgcn_target "amdgcn-amd-amdhsa--gfx950"
.text
.globl {KN}
.p2align 8
.type {KN},@function
{KN}:
"""
def footer(cfg):
    return f"""
.section .rodata,"a"
.p2align 6
.amdhsa_kernel {KN}
  .amdhsa_next_free_vgpr 256
  .amdhsa_next_free_sgpr 96
  .amdhsa_accum_offset 256
  .amdhsa_group_segment_fixed_size 0
  .amdhsa_kernarg_size 64
  .amdhsa_user_sgpr_count 2
  .amdhsa_user_sgpr_kernarg_segment_ptr 1
  .amdhsa_system_sgpr_workgroup_id_x 1
  .amdhsa_float_denorm_mode_32 3
.end_amdhsa_kernel
"""
def common_prologue(E, cfg):
    if cfg.spin or cfg.enc: E("s_memrealtime s[80:81]")
    if cfg.stamps: E("s_memrealtime s[76:77]")
    stamp(E,cfg,0)
    if cfg.bw: E("s_mov_b32 s86, 0")
    E(f"s_cmp_ge_u32 s2, {NWG}"); E("s_cbranch_scc1 L_exit")
    E("s_load_dwordx4 s[4:7], s[0:1], 0")
    E("s_load_dwordx4 s[12:15], s[0:1], 32")
    E("s_load_dwordx4 s[8:11], s[0:1], 16")
    if cfg.stamps: E("s_load_dwordx2 s[58:59], s[0:1], 56")
    E("v_lshrrev_b32 v1, 6, v0")
    E("v_and_b32 v2, 63, v0")
    E("v_readfirstlane_b32 s28, v1")
    E("s_and_b32 s45, s2, 7")
    E("s_lshr_b32 s47, s2, 3")
    E("s_lshr_b32 s30, s47, 2")
    E("s_lshr_b32 s31, s45, 1"); E("s_mul_i32 s31, s31, 7"); E("s_add_u32 s31, s30, s31")
    E("s_and_b32 s29, s47, 3")
    E("v_and_b32 v3, 31, v0")
    E("v_bfe_u32 v1, v0, 5, 1")
    E("s_cmp_ge_u32 s28, 4")
    E("s_cbranch_scc0 L_consumer")

def bm_full(E):
    E("s_and_b32 s42, s2, 1"); E("s_lshl_b32 s42, s42, 2"); E("s_add_u32 s29, s29, s42")

def build_srd(E, base, ptr, off, size):
    E(f"s_add_u32 s{base}, s{ptr}, s{off}"); E(f"s_addc_u32 s{base+1}, s{ptr+1}, 0")
    E(f"s_sub_u32 s{base+2}, {size}, s{off}"); E(f"s_mov_b32 s{base+3}, 0x20000")

def nextstage(E, cfg, pair, dst):
    if cfg.xrot:
        E(f"s_add_u32 s{dst}, s{pair}, s45"); E(f"s_and_b32 s{dst}, s{dst}, 15")
    else: E(f"s_and_b32 s{dst}, s{pair}, 15")
    E(f"s_lshr_b64 s[{pair}:{pair+1}], s[{pair}:{pair+1}], 4")

def ring_advance(cfg, r):
    return [f"s_add_u32 s{r}, s{r}, {XSLOT}", f"s_cmp_eq_u32 s{r}, {cfg.NX*XSLOT}", f"s_cselect_b32 s{r}, 0, s{r}"]

def loopify(E, phase, j0, n, U, lab):
    E(f"s_mov_b32 s44, {n}")
    bodies=[]
    for it in range(n):
        mark=len(E.L)
        for j in range(j0+it*U,j0+(it+1)*U): phase(j)
        bodies.append(E.L[mark:]); del E.L[mark:]
    assert len(set(len(b) for b in bodies))==1
    merged=[]
    for tup in zip(*bodies):
        if len(set(tup))==1: merged.append(tup[0])
        else:
            assert all(x.startswith("s_waitcnt vmcnt") for x in tup), tup
            merged.append(min(tup,key=lambda x:int(x.split("(")[1].split(")")[0])))
    E(".p2align 6"); E(lab+":")
    E.L.extend(merged)
    E("s_sub_u32 s44, s44, 1"); E("s_cmp_lg_u32 s44, 0"); E(f"s_cbranch_scc1 {lab}")

def producer(E, cfg):
    RAW0 = 64
    OUT, AV, SV, ZV = 32, (48,56), 16, 20
    VQ, VX, vw, va = 200, 208, 7, 9
    def raw(st,e,j): return RAW0 + (st%cfg.RW)*32 + e*4 + j
    tabs=[table(o&3,o>>2,cfg) for o in range(8)]
    first=0
    for o in range(8): first|=(tabs[o]&15)<<(4*o)
    E("s_sub_u32 s31, s28, 4") if False else None
    E("s_add_u32 s46, s29, s30"); E("s_and_b32 s46, s46, 3"); E("s_and_b32 s42, s30, 4"); E("s_or_b32 s46, s46, s42")
    assert cfg.xrot in (0,8) and cfg.XL==2
    E("s_lshl_b32 s42, s46, 2"); E(f"s_lshr_b32 s37, {first:#x}, s42")
    E("s_and_b32 s37, s37, 15")
    if cfg.xrot:
        E("s_and_b32 s45, s2, 1"); E("s_lshl_b32 s45, s45, 3"); E("s_xor_b32 s37, s37, s45")
    E("s_lshl_b32 s33, s31, 9")
    E("s_lshl_b32 s35, s31, 8")
    E("s_sub_u32 s31, s28, 4")
    E("s_lshl_b32 s36, s31, 4")
    E("v_lshl_add_u32 v10, v1, 3, s36")
    E(f"v_mul_u32_u24 v10, {QROW}, v10")
    E(f"v_lshl_add_u32 v{VQ}, v3, 4, v10")
    for e in range(1,8): E(f"v_add_u32 v{VQ+e}, {e*QROW}, v{VQ}")
    E(f"s_mul_i32 s36, s37, {64*QROW}")
    E("s_waitcnt lgkmcnt(0)")
    stamp(E,cfg,1)
    build_srd(E,20,6,33,K*QROW)
    def advance():
        if cfg.LW==2: E("s_lshl_b32 s40, s37, 7")
        E("s_and_b32 s37, s52, 15"); E("s_lshr_b64 s[52:53], s[52:53], 4")
        E(f"s_mul_i32 s36, s37, {64*QROW}")
        if cfg.LW==1: E("s_lshl_b32 s40, s37, 7")
    def ring():
        E(f"s_add_u32 s43, s43, {XSLOT}"); E("s_cmp_eq_u32 s43, s38"); E("s_cselect_b32 s43, s39, s43")
    def wload(st,e):
        r=raw(st,e,0)
        E.vmem(f"buffer_load_dwordx4 v[{r}:{r+3}], v{VQ+e}, s[20:23], s36 offen", ("W",st))
    def xdma(st,i):
        E.vmem(f"buffer_load_dwordx4 v{VX+i}, s[16:19], s40 offen offset:{(i%4)*1024} lds", ("X",st))
    M0A="s_mov_b32 m0, s43"; M0B="s_add_u32 m0, s43, 4096"
    def aread(st):
        a=AV[st%2]
        E(f"v_lshl_add_u32 v12, s40, 1, v{va}")
        E(f"ds_read_b128 v[{a}:{a+3}], v12"); E(f"ds_read_b128 v[{a+4}:{a+7}], v12 offset:16")
    if cfg.diag==2:
        wload(0,0); E("s_waitcnt vmcnt(0)"); stamp(E,cfg,2)
    for e in range(8): wload(0,e)
    if cfg.diag==1: E("s_waitcnt vmcnt(0)"); stamp(E,cfg,2)
    E("v_lshl_add_u32 v10, v3, 3, s35")
    E.vmem("global_load_dwordx2 v[24:25], v10, s[8:9]", "SZ")
    E.vmem("global_load_dwordx2 v[26:27], v10, s[10:11]", "SZ")
    if cfg.diag: E("s_waitcnt vmcnt(0)"); stamp(E,cfg,3)
    bm_full(E); E("s_lshl_b32 s32, s29, 19")
    build_srd(E,16,4,32,M*K*2)
    E("v_lshrrev_b32 v10, 3, v2"); E("v_and_b32 v12, 7, v2"); E("v_lshrrev_b32 v13, 4, v2"); E("v_xor_b32 v12, v12, v13")
    E("v_lshlrev_b32 v12, 4, v12"); E(f"v_lshl_add_u32 v{VX}, v10, 11, v12"); E(f"v_xor_b32 v{VX+1}, 64, v{VX}")
    for i in range(7,1,-1): E(f"v_add_u32 v{VX+i}, {i*16384-(i%4)*1024}, v{VX+i%2}")
    E(f"v_add_u32 v{VX+1}, {16384-1024}, v{VX+1}")
    E("s_lshl_b32 s39, s31, 13"); E("s_lshl_b32 s41, s31, 17"); E(f"s_add_u32 s38, s39, {cfg.NX*XSLOT}"); E("s_mov_b32 s43, s39")
    for i in range(8): E(f"v_add_u32 v{VX+i}, s41, v{VX+i}")
    E("s_lshl_b32 s40, s37, 7")
    for i in range(8):
        if i%4==0: E(M0A if i==0 else M0B); E("s_nop 0")
        xdma(0,i)
    if cfg.diag: E("s_waitcnt vmcnt(0)"); stamp(E,cfg,4)
    ring(); E(M0A)
    E(f"s_mov_b32 s52, {tabs[0]&0xffffffff:#x}"); E(f"s_mov_b32 s53, {tabs[0]>>32:#x}")
    for o in range(1,8):
        if tabs[o]!=tabs[0]:
            E(f"s_cmp_eq_u32 s46, {o}"); E(f"s_cselect_b32 s52, {tabs[o]&0xffffffff:#x}, s52"); E(f"s_cselect_b32 s53, {tabs[o]>>32:#x}, s53")
    if cfg.xrot:
        E("s_mul_i32 s45, s45, 0x11111111"); E("s_xor_b32 s52, s52, s45"); E("s_xor_b32 s53, s53, s45")
    E("s_lshr_b64 s[52:53], s[52:53], 4")
    E("s_lshl_b32 s42, s31, 12"); E(f"s_add_u32 s42, s42, {cfg.WBASE}")
    E(f"v_lshl_add_u32 v{vw}, v2, 4, s42")
    E("s_lshl_b32 s42, s31, 6"); E(f"s_add_u32 s42, s42, {cfg.ABASE}")
    E(f"v_lshl_add_u32 v{va}, v1, 5, s42")
    E("s_mov_b32 s47, s40")
    if cfg.LW==2:
        E("s_and_b32 s37, s52, 15"); E("s_lshr_b64 s[52:53], s[52:53], 4"); E(f"s_mul_i32 s36, s37, {64*QROW}")
        for e in range(8): wload(1,e)
    advance()
    if cfg.LW==1:
        for e in range(cfg.pre): wload(1,e)
    if not cfg.diag: stamp(E,cfg,2)
    E("s_barrier")
    if not cfg.diag: stamp(E,cfg,3)
    E(f"v_lshl_add_u32 v12, s47, 1, v{va}")
    E(f"ds_read_b128 v[{AV[0]}:{AV[0]+3}], v12"); E(f"ds_read_b128 v[{AV[0]+4}:{AV[0]+7}], v12 offset:16")
    E.waitvm("SZ")
    for j in range(4):
        for (src,dst) in ((24,SV),(26,ZV)):
            if j%2==0: E(f"v_lshlrev_b32 v{dst+j}, 16, v{src+j//2}")
            else: E(f"v_and_b32 v{dst+j}, 0xffff0000, v{src+j//2}")
    for j in range(4):
        E(f"v_mul_f32 v{ZV+j}, v{ZV+j}, v{SV+j}")
        if cfg.cvt:
            E(f"v_mul_f32 v{SV+j}, 1.0, v{SV+j}")
        else:
            E(f"v_mul_f32 v{SV+j}, 0x71800000, v{SV+j}")
            E(f"v_mul_f32 v{ZV+j}, 0x27000000, v{ZV+j}")
    if cfg.pprio: E(f"s_setprio {cfg.pprio}")
    def phase(j):
        st=j+1
        xs=j+cfg.XL; ws=st+cfg.LW
        a=AV[st%2]
        xi=[(lambda i=i: (xdma(xs,i), (E(M0B) if i==3 else None))) for i in range(8)] if xs<NST else []
        wi=[(lambda e=e: wload(ws,e)) for e in range(cfg.pre if (j==-1 and cfg.LW==1) else 0,8)] if ws<NST else []
        if cfg.xfirst==1: mem=xi+wi
        elif cfg.xfirst==0: mem=wi+xi
        else:
            mem=[]
            while xi or wi:
                if xi: mem.append(xi.pop(0))
                if wi: mem.append(wi.pop(0))
        for _ in range(cfg.dfirst if j>=0 else 0):
            if mem: mem.pop(0)()
        E.waitvm(("W",st), " lgkmcnt(0)")
        if j==-1 and not cfg.diag: stamp(E,cfg,4)
        if st+1<NST: aread(st+1)
        sl=(st%2)*WSLOT
        work=[]; wr=[]
        for jj in range(4):
            for half in range(2):
                rs=range(4*half,4*half+4)
                if cfg.cvt:
                    for e in rs: r=raw(st,e,jj); work.append(f"v_cvt_f32_i32 v{r}, v{r}")
                for e in rs: r=raw(st,e,jj); work.append(f"v_fma_f32 v{r}, v{r}, v{SV+jj}, -v{ZV+jj}")
                for e in rs: r=raw(st,e,jj); work.append(f"v_mul_f32 v{r}, v{r}, v{a+e}")
                for p in (2*half,2*half+1):
                    work.append(f"v_cvt_pk_bf16_f32 v{OUT+4*jj+p}, v{raw(st,2*p,jj)}, v{raw(st,2*p+1,jj)}")
            wr.append(f"ds_write_b128 v{vw}, v[{OUT+4*jj}:{OUT+4*jj+3}] offset:{sl+jj*1024}")
        per=len(work)//4
        pos=[int(x)*per//20 for x in cfg.wpos.split()] if (cfg.wpos and mem) else [per,2*per,3*per,4*per]
        for jj in (3,2,1,0):
            assert pos[jj]>=per*(jj+1)
            work.insert(pos[jj],wr[jj])
        nm=len(mem)-cfg.tailv if len(mem)>cfg.tailv else len(mem)
        nw=len(work); done=0
        for i,w in enumerate(work):
            E(w)
            while done<nm and (i+1)*(nm+1) >= (done+1)*nw: mem.pop(0)(); done+=1
        while mem: mem.pop(0)()
        if xs+1<NST: ring(); E(M0A)
        if ws+1<NST: advance()
        elif xs+1<NST: E("s_lshl_b32 s40, s37, 7")
        E.waitvm(("X",st), " lgkmcnt(0)")
        if cfg.bw: E("s_memtime s[88:89]")
        E("s_barrier")
        if cfg.bw:
            E("s_memtime s[90:91]"); E("s_waitcnt lgkmcnt(0)"); E("s_sub_u32 s90, s90, s88")
            E("s_add_u32 s86, s86, s90")
    U=cfg.U
    assert U%cfg.RW==0 and U%2==0
    last_full = min(NST-1-cfg.XL, NST-2-cfg.LW) - 1
    phase(-1)
    jn=0
    if cfg.loop:
        n=(last_full+1)//U
        if n>=2:
            loopify(E,phase,0,n,U,"L_p_loop"); jn=n*U
    for j in range(jn,NST-1): phase(j)
    finish(E,cfg,False)

def finish(E,cfg,cons):
    if cfg.enc:
        role,a,b=cfg.enc.split(":")
        if (role=="c")==cons:
            E("s_waitcnt vmcnt(0)"); stamp(E,cfg,5); E("s_memrealtime s[82:83]"); E("s_waitcnt lgkmcnt(0)")
            if a=="r": E("s_sub_u32 s84, s82, s80")
            else: E(f"s_sub_u32 s84, s{60+2*int(b)}, s{60+2*int(a)}"); E("s_lshr_b32 s84, s84, 3")
            E("s_add_u32 s84, s84, 4000")
            lab=f"L_enc{len(E.L)}"
            E(lab+":"); E("s_memrealtime s[82:83]"); E("s_waitcnt lgkmcnt(0)"); E("s_sub_u32 s82, s82, s80")
            E(f"s_cmp_lt_u32 s82, s84"); E(f"s_cbranch_scc1 {lab}")
    if cfg.spin:
        lab=f"L_spin{len(E.L)}"
        E("s_waitcnt vmcnt(0)")
        E(lab+":"); E("s_memrealtime s[82:83]"); E("s_waitcnt lgkmcnt(0)"); E("s_sub_u32 s82, s82, s80")
        E(f"s_cmp_lt_u32 s82, {cfg.spin}"); E(f"s_cbranch_scc1 {lab}")
    if cfg.stamps:
        stamp(E,cfg,5)
        E("s_memrealtime s[78:79]")
        E("s_waitcnt lgkmcnt(0)")
        if cfg.bw: E("s_add_u32 s62, s60, s86")
        E("s_mov_b32 s48, s58"); E("s_mov_b32 s49, s59"); E("s_mov_b32 s50, 0x1000000"); E("s_mov_b32 s51, 0x20000")
        E("s_lshl_b32 s52, s2, 3"); E("s_add_u32 s52, s52, s28"); E("s_lshl_b32 s52, s52, 5")
        E("v_mov_b32 v10, s76"); E("v_mov_b32 v11, s78")
        for i,r in enumerate((62,64,66,68,70)):
            E(f"s_sub_u32 s{r}, s{r}, s60"); E(f"v_mov_b32 v{12+i}, s{r}")
        E("s_getreg_b32 s53, hwreg(HW_REG_HW_ID)"); E("v_mov_b32 v17, s53")
        E("v_mov_b32 v9, s52")
        E("s_mov_b64 exec, 1")
        E("buffer_store_dwordx4 v[10:13], v9, s[48:51], 0 offen")
        E("buffer_store_dwordx4 v[14:17], v9, s[48:51], 0 offen offset:16")
        if cfg.stamps==2 and cons:
            E("s_mov_b64 exec, 0xffff"); E("s_lshl_b32 s52, s2, 3"); E("s_add_u32 s52, s52, s28"); E("s_lshl_b32 s52, s52, 6"); E("s_add_u32 s52, s52, 0x10000")
            E("v_and_b32 v9, 63, v0"); E("v_lshlrev_b32 v9, 2, v9"); E("v_add_u32 v9, s52, v9")
            E("buffer_store_dword v250, v9, s[48:51], 0 offen")
    E("s_endpgm")

def consumer(E,cfg):
    ACC=16; XF=(144,152); WF=(160,176)
    vxb=(4,5,6,7); vx=(192,193,194,195); vw=8; vo=9
    T=216
    def acc(b,j): return ACC+(b*4+j)*16
    E("L_consumer:")
    E("v_lshlrev_b32 v10, 3, v0")
    E("s_waitcnt lgkmcnt(0)")
    E.vmem("global_load_dwordx2 v[12:13], v10, s[12:13]","A")
    if cfg.codepf:
        E("s_getpc_b64 s[48:49]"); E("L_pc:")
        E(f"s_sub_u32 s48, s48, L_pc-{KN}"); E("s_subb_u32 s49, s49, 0")
        E(f"s_mov_b32 s50, L_codeend-{KN}"); E("s_mov_b32 s51, 0x20000")
        E("s_lshl_b32 s43, s47, 9"); E("v_lshlrev_b32 v11, 6, v0"); E("v_add_u32 v14, s43, v11")
        E("v_cmp_gt_u32 vcc, 8, v0"); E("s_nop 1"); E("v_cndmask_b32 v11, -1, v14, vcc")
        E.vmem("buffer_load_dword v14, v11, s[48:51], 0 offen","PF")
    if cfg.pf:
        E("s_cmp_ge_u32 s45, 2"); E("s_cbranch_scc1 L_nopf")
        E("s_mul_i32 s36, s45, 28"); E("s_add_u32 s36, s36, s47"); E("s_lshl_b32 s36, s36, 8")
        E("v_add_u32 v11, s36, v0"); E("v_mul_u32_u24 v14, 24967, v11"); E("v_lshrrev_b32 v14, 22, v14")
        E("v_mul_u32_u24 v15, 168, v14"); E("v_sub_u32 v15, v11, v15")
        E(f"v_mul_u32_u24 v11, {QROW}, v14"); E("v_lshl_add_u32 v11, v15, 6, v11")
        E("v_cmp_gt_u32 vcc, 64, v14"); E("s_mov_b32 s20, s6"); E("s_mov_b32 s21, s7"); E("v_cndmask_b32 v11, -1, v11, vcc")
        E(f"s_mov_b32 s22, {K*QROW}"); E("s_mov_b32 s23, 0x20000")
        for st in range(cfg.pf0,cfg.pf0+cfg.pf):
            E(f"s_mov_b32 s36, {st*64*QROW+3584}")
            E(f"buffer_load_dword v{20+st}, v11, s[20:23], s36 offen")
        if cfg.pfw: E("s_waitcnt vmcnt(0)")
        E("L_nopf:")
        E.vm.append("A")
    bm_full(E)
    E(f"s_mul_i32 s34, s29, {256*OROW}"); E("s_lshl_b32 s35, s31, 8"); E("s_add_u32 s34, s34, s35")
    build_srd(E,24,14,34,M*OROW)
    if cfg.tlb&1:
        E("s_lshl_b32 s33, s31, 9"); build_srd(E,20,6,33,K*QROW)
        E("v_lshlrev_b32 v11, 21, v0"); E("v_cmp_gt_u32 vcc, 8, v0"); E("s_nop 1"); E("v_cndmask_b32 v11, -1, v11, vcc")
        E.vmem("buffer_load_dword v15, v11, s[20:23], 0 offen","PF")
    if cfg.tlb&2:
        E(f"v_mul_u32_u24 v11, {63*OROW}, v2"); E(f"s_mul_i32 s36, s28, {64*OROW}"); E("v_add_u32 v11, s36, v11")
        E("v_cmp_gt_u32 vcc, 2, v2"); E("s_nop 1"); E("v_cndmask_b32 v11, -1, v11, vcc")
        E.vmem("buffer_load_dword v15, v11, s[24:27], 0 offen","PF")
    E("v_bfe_u32 v11, v3, 1, 3"); E("v_xor_b32 v11, v11, v1"); E("v_lshlrev_b32 v11, 4, v11")
    E("s_lshl_b32 s36, s28, 13")
    E("v_lshl_add_u32 v11, v3, 7, v11"); E("v_add_u32 v4, s36, v11")
    for u in range(1,4): E(f"v_xor_b32 v{vxb[u]}, {32*u}, v4")
    for u in range(4): E(f"v_mov_b32 v{vx[u]}, v{vxb[u]}")
    E(f"v_lshlrev_b32 v{vw}, 4, v2"); E(f"v_add_u32 v{vw}, {cfg.WBASE}, v{vw}")
    E(f"v_lshlrev_b32 v10, 4, v0"); E(f"v_add_u32 v10, {cfg.ABASE}, v10")
    E("s_mov_b32 s38, 0")
    E.waitvm("A")
    E("v_lshlrev_b32 v16, 16, v12"); E("v_and_b32 v17, 0xffff0000, v12"); E("v_lshlrev_b32 v18, 16, v13"); E("v_and_b32 v19, 0xffff0000, v13")
    if not cfg.cvt:
        for i in range(4): E(f"v_mul_f32 v{16+i}, 0x58000000, v{16+i}")
    E("ds_write_b128 v10, v[16:19]")
    E("s_lshl_b32 s36, s28, 6"); E("v_lshl_add_u32 v11, v1, 2, s36"); E(f"v_mul_u32_u24 v11, {OROW}, v11")
    E(f"v_lshl_add_u32 v{vo}, v3, 3, v11")
    if cfg.prio: E(f"s_setprio {cfg.prio}")
    stamp(E,cfg,1)
    if cfg.stamps==2: E("s_mov_b32 s75, 0")
    E("s_waitcnt lgkmcnt(0)")
    E("s_barrier")
    E("s_barrier")
    stamp(E,cfg,2)
    def reads(j,u):
        s=u%2
        xr=lambda b: f"ds_read_b128 v[{XF[s]+4*b}:{XF[s]+4*b+3}], v{vx[u]} offset:{b*4096}"
        wr=lambda jj: f"ds_read_b128 v[{WF[s]+4*jj}:{WF[s]+4*jj+3}], v{vw} offset:{(j%2)*WSLOT+(u*4+jj)*1024}"
        return [xr(0)]+[wr(jj) for jj in range(4)]+[xr(1)]
    def mfma(a,xa,wa,first=False):
        c = "0" if first else f"v[{a}:{a+15}]"
        E(f"v_mfma_f32_32x32x16_bf16 v[{a}:{a+15}], v[{xa}:{xa+3}], v[{wa}:{wa+3}], {c}")
    def mfmas(s,first,inter,per=1,pend=0,bar=99):
        inter=list(inter); issued=0; g=0
        need=[2,3,4,5,6,6,6,6]
        for b in range(2):
            for jj in (range(4) if (b==0 or not cfg.snake) else range(3,-1,-1)):
                if pend and g<5: E(f"s_waitcnt lgkmcnt({pend-need[g]+issued})")
                mfma(acc(b,jj),XF[s]+4*b,WF[s]+4*jj,first)
                for _ in range(per):
                    if inter:
                        x=inter.pop(0); E(x)
                        if x.startswith("ds_read"): issued+=1
                g+=1
                if g==bar:
                    assert not any(x.startswith("ds_read") for x in inter)
                    E("s_waitcnt lgkmcnt(0)"); E("s_barrier")
        for x in inter: E(x)
    def bump():
        return ring_advance(cfg,38)+[f"v_add_u32 v{vx[u]}, s38, v{vxb[u]}" for u in range(4)]
    def pstamp():
        if cfg.stamps==2:
            E("s_sub_u32 s72, s72, s60"); E("v_mov_b32 v251, s72"); E("v_cmp_eq_u32 vcc, s75, v2"); E("s_add_u32 s75, s75, 1"); E("s_nop 0"); E("v_cndmask_b32 v250, v250, v251, vcc")
    def phase(j):
        if cfg.stamps==2: E("s_memtime s[72:73]")
        cw = cfg.cw and cfg.stamps!=2
        if j==0:
            for r in reads(0,0): E(r)
        else: mfmas(1,False,reads(j,0),cfg.rd2)
        if not cw: E("s_waitcnt lgkmcnt(0)")
        pstamp()
        mfmas(0,j==0,reads(j,1),cfg.rd2,6 if cw else 0)
        if not cw: E("s_waitcnt lgkmcnt(0)")
        mfmas(1,False,reads(j,2),cfg.rd2,6 if cw else 0)
        if not cw: E("s_waitcnt lgkmcnt(0)")
        early = cfg.bpos<8 and not cfg.bw
        mfmas(0,False,reads(j,3)+bump(),2,6 if cw else 0, cfg.bpos if early else 99)
        if early: return
        E("s_waitcnt lgkmcnt(0)")
        if cfg.bw: E("s_memtime s[88:89]")
        if j<NST-1: E("s_barrier")
        if cfg.bw:
            E("s_memtime s[90:91]"); E("s_waitcnt lgkmcnt(0)"); E("s_sub_u32 s90, s90, s88")
            E("s_add_u32 s86, s86, s90")
    def store_ops(b):
        ops=[]
        for r in range(16):
            t=T+2*r
            if cfg.off:
                import struct
                h=struct.unpack("<I",struct.pack("<f",float(cfg.off)))[0]
                for jj in range(4): ops.append(f"v_add_f32 v{acc(b,jj)+r}, {h:#x}, v{acc(b,jj)+r}")
            ops.append(f"v_cvt_pk_bf16_f32 v{t}, v{acc(b,0)+r}, v{acc(b,1)+r}")
            ops.append(f"v_cvt_pk_bf16_f32 v{t+1}, v{acc(b,2)+r}, v{acc(b,3)+r}")
            row=32*b+8*(r>>2)+(r&3)
            ops.append(f"s_mov_b32 s36, {row*OROW}")
            ops.append(f"buffer_store_dwordx2 v[{t}:{t+1}], v{vo}, s[24:27], s36 offen {cfg.stpol if (b==0 or cfg.stpol2 is None) else cfg.stpol2}")
        return ops
    phase(0)
    last = NST-2 if cfg.tail else NST
    if cfg.loop:
        n=(last-1)//2
        loopify(E,phase,1,n,2,"L_c_loop")
        for j in range(1+2*n,last): phase(j)
    else:
        for j in range(1,last): phase(j)
    if not cfg.tail:
        mfmas(1,False,[])
        stamp(E,cfg,3)
        E("s_nop 7"); E("s_nop 7")
        for b in range(2):
            for x in store_ops(b): E(x)
    else:
        seq=[(14,0,u) for u in range(4)]+[(14,1,0)]+[(15,0,u) for u in range(4)]+[(14,1,u) for u in range(1,4)]+[(15,1,u) for u in range(4)]
        if cfg.tb==4: seq=[(14,0,u) for u in range(4)]+[(15,0,u) for u in range(4)]+[(14,1,u) for u in range(4)]+[(15,1,u) for u in range(4)]
        if cfg.tb==6: seq=[(14,0,u) for u in range(4)]+[(14,1,0),(14,1,1)]+[(15,0,u) for u in range(4)]+[(14,1,u) for u in range(2,4)]+[(15,1,u) for u in range(4)]
        first15=[i for i,h in enumerate(seq) if h[0]==15][0]
        doneb0=max(i for i,h in enumerate(seq) if h[1]==0)
        SX=(XF[0],196,XF[1]); SW=(WF[0],200,WF[1])
        s15=(15%cfg.NX)*XSLOT
        def hreads(i):
            (st,b,u)=seq[i]; k=i%3
            xa = vx[u] if st==14 else vxb[u]
            R=[f"ds_read_b128 v[{SX[k]}:{SX[k]+3}], v{xa} offset:{b*4096+(0 if st==14 else s15)}"]
            R+=[f"ds_read_b128 v[{SW[k]+4*jj}:{SW[k]+4*jj+3}], v{vw} offset:{(st%2)*WSLOT+(u*4+jj)*1024}" for jj in range(4)]
            return R
        assert s15+4096+0<65536
        if cfg.stamps==2: E("s_memtime s[72:73]")
        mfmas(1,False,hreads(0)+hreads(1),2)
        so=[]
        for i,(st,b,u) in enumerate(seq):
            k=i%3
            if i+2==first15:
                E("s_waitcnt lgkmcnt(5)"); E("s_barrier")
            elif i+1<len(seq): E(f"s_waitcnt lgkmcnt(5)")
            else: E("s_waitcnt lgkmcnt(0)")
            if i==0: pstamp()
            nxt=hreads(i+2) if i+2<len(seq) else []
            if i==doneb0+2: so=store_ops(0)
            left=len(seq)-i
            for jj in range(4):
                mfma(acc(b,jj),SX[k],SW[k]+4*jj)
                for _ in range(2 if jj==0 else 1):
                    if nxt: E(nxt.pop(0))
                if so:
                    slots=(left*4-jj)
                    n=-(-len(so)//slots)
                    for _ in range(n):
                        if so: E(so.pop(0))
            assert not nxt
        assert not so
        stamp(E,cfg,3)
        E("s_nop 7"); E("s_nop 7")
        for x in store_ops(1): E(x)
    if cfg.stamps or cfg.enc: stamp(E,cfg,4); E("s_waitcnt vmcnt(0)")
    finish(E,cfg,True)

def ablate(L,cfg):
    R=[]
    for x in L:
        if 'V' in cfg.abl and (x.startswith("v_fma_f32") or (x.startswith("v_mul_f32") and "0x" not in x and int(x.split()[1][1:-1])>=64) or (x.startswith("v_cvt_pk") and int(x.split()[1][1:-1])<64)): continue
        if 'X' in cfg.abl and x.endswith(" lds"): continue
        if 'W' in cfg.abl and x.startswith("buffer_load") and "s[20:23]" in x: continue
        if 'M' in cfg.abl and x.startswith("v_mfma"): continue
        if 'D' in cfg.abl and x.startswith("ds_write") and "v10," not in x: continue
        if 'R' in cfg.abl and x.startswith("ds_read") and int(x.split()[1][2:].split(":")[0])>=128: continue
        if 'S' in cfg.abl and x.startswith("buffer_store") and "s[24:27]" in x: continue
        R.append(x)
    return R
def generate(cfg):
    out=[header(cfg)]
    E=Emit(); common_prologue(E,cfg); out+=E.L
    E=Emit(); producer(E,cfg); out+=E.L
    E=Emit(); consumer(E,cfg); out+=E.L
    out.append("L_exit:"); out.append("s_endpgm"); out.append("L_codeend:")
    return "\n".join(ablate(out,cfg))+footer(cfg)

if __name__=="__main__":
    kw={}
    for a in sys.argv[2:]:
        k,v=a.split("="); kw[k]=v.replace("_"," ") if k in ("stpol","abl","wpos","enc","gv","stpol2","off") else int(v)
    open(sys.argv[1],"w").write(generate(Cfg(**kw)))
```

```python
import sys
KN = "standalone__weight_only_int_omniquant__prompt_kernel"
M, K, N = 2048, 1024, 3584
QROW = N*4
OROW = N*2
NST = 16
XSLOT = 32768
WSLOT = 16384
NWG = 224

class Cfg:
    def __init__(s, **kw):
        s.NX = 3; s.XL = 2
        s.RW = 2; s.LW = 1; s.U = 2
        s.stamps = 0; s.prio = 1; s.pprio = 2; s.codepf = 1; s.loop = 1
        s.spin = 0; s.stpol = 'sc1'; s.abl = ''
        s.g = 1; s.g2 = 2; s.start = 0; s.xrot = 8; s.dfirst = 2; s.xfirst = 0; s.tailv = 6
        s.wpos = '60 66 73 80'; s.snake = 1; s.tail = 2; s.tb = 5; s.cvt = 0; s.enc = ''; s.tlb = 0; s.pf = 0; s.pf0 = 0; s.pfw = 0; s.cw = 1; s.rd2 = 1; s.bw = 0; s.gv = ''; s.stpol2 = None; s.pre = 0; s.szf = 0; s.diag = 0; s.bpos = 8; s.off = ''; s.q4 = 1; s.qpre = 3; s.qd = 4; s.srow = 1; s.qmax = 4; s.qend = 8
        s.__dict__.update(kw)
        if s.stamps or s.enc or s.spin: s.srow = 0
        s.WBASE = s.NX*XSLOT
        s.ABASE = s.WBASE + 2*WSLOT
        s.LDS = s.ABASE + 4096

def order(o, hi, cfg):
    if cfg.g==0: return list(range(NST))
    def key(s):
        if s%4==o and s>=cfg.start:
            g = cfg.g2 if ((s>>2)&1)==hi else cfg.g
            if cfg.gv:
                t=cfg.gv.split()[s>>2]; g=int(t[1] if ((s>>2)&1)==hi else t[0])
                if g==0: return s
            return s-g-0.5
        return s
    return sorted(range(NST), key=key)
def table(o,hi,cfg):
    v=0
    for i,s in enumerate(order(o,hi,cfg)): v|=s<<(4*i)
    return v

class Emit:
    def __init__(s): s.L=[]; s.vm=[]
    def __call__(s, x): s.L.append(x)
    def vmem(s, x, tag): s.L.append(x); s.vm.append(tag)
    def waitvm(s, tag, extra=""):
        idx=[i for i,t in enumerate(s.vm) if t==tag]
        n=(len(s.vm)-1-idx[-1]) if idx else 63
        n=min(n,63)
        s.L.append(f"s_waitcnt vmcnt({n}){extra}")
        return n

def stamp(E, cfg, i):
    if cfg.stamps or cfg.enc: E(f"s_memtime s[{60+2*i}:{61+2*i}]")

def header(cfg):
    return f"""; Fused int4-weight dequant + bf16 GEMM: out[2048,3584] = (x*act) @ ((qw-z)*s); one 256x128 tile per workgroup.
; Waves 0-3 multiply (v_mfma 32x32x16, operands from LDS); waves 4-7 stream x into LDS (LDS-DMA) and turn qw into bf16.
; @launch grid=({NWG},1,1) block=(512,1,1) lds={cfg.LDS}
.amdgcn_target "amdgcn-amd-amdhsa--gfx950"
.text
.globl {KN}
.p2align 8
.type {KN},@function
{KN}:
"""
def footer(cfg):
    return f"""
.section .rodata,"a"
.p2align 6
.amdhsa_kernel {KN}
  .amdhsa_next_free_vgpr 256
  .amdhsa_next_free_sgpr 100
  .amdhsa_accum_offset 256
  .amdhsa_group_segment_fixed_size 0
  .amdhsa_kernarg_size 64
  .amdhsa_user_sgpr_count 2
  .amdhsa_user_sgpr_kernarg_segment_ptr 1
  .amdhsa_system_sgpr_workgroup_id_x 1
  .amdhsa_float_denorm_mode_32 3
.end_amdhsa_kernel
"""
def common_prologue(E, cfg):
    if cfg.spin or cfg.enc: E("s_memrealtime s[80:81]")
    if cfg.stamps: E("s_memrealtime s[76:77]")
    stamp(E,cfg,0)
    if cfg.bw: E("s_mov_b32 s86, 0")
    E(f"s_cmp_ge_u32 s2, {NWG}"); E("s_cbranch_scc1 L_exit")
    E("s_load_dwordx4 s[4:7], s[0:1], 0")
    E("s_load_dwordx4 s[12:15], s[0:1], 32")
    E("s_load_dwordx4 s[8:11], s[0:1], 16")
    if cfg.stamps: E("s_load_dwordx2 s[58:59], s[0:1], 56")
    E("v_lshrrev_b32 v1, 6, v0")
    E("v_and_b32 v2, 63, v0")
    E("v_readfirstlane_b32 s28, v1")
    E("s_and_b32 s45, s2, 7")
    E("s_lshr_b32 s47, s2, 3")
    E("s_lshr_b32 s30, s47, 2")
    E("s_lshr_b32 s31, s45, 1"); E("s_mul_i32 s31, s31, 7"); E("s_add_u32 s31, s30, s31")
    E("s_and_b32 s29, s47, 3")
    E("v_and_b32 v3, 31, v0")
    E("v_bfe_u32 v1, v0, 5, 1")
    E("s_cmp_ge_u32 s28, 4")
    E("s_cbranch_scc0 L_consumer")

def bm_full(E):
    E("s_and_b32 s42, s2, 1"); E("s_lshl_b32 s42, s42, 2"); E("s_add_u32 s29, s29, s42")

def build_srd(E, base, ptr, off, size):
    E(f"s_add_u32 s{base}, s{ptr}, s{off}"); E(f"s_addc_u32 s{base+1}, s{ptr+1}, 0")
    E(f"s_sub_u32 s{base+2}, {size}, s{off}"); E(f"s_mov_b32 s{base+3}, 0x20000")

def nextstage(E, cfg, pair, dst):
    if cfg.xrot:
        E(f"s_add_u32 s{dst}, s{pair}, s45"); E(f"s_and_b32 s{dst}, s{dst}, 15")
    else: E(f"s_and_b32 s{dst}, s{pair}, 15")
    E(f"s_lshr_b64 s[{pair}:{pair+1}], s[{pair}:{pair+1}], 4")

def ring_advance(cfg, r):
    return [f"s_add_u32 s{r}, s{r}, {XSLOT}", f"s_cmp_eq_u32 s{r}, {cfg.NX*XSLOT}", f"s_cselect_b32 s{r}, 0, s{r}"]

def loopify(E, phase, j0, n, U, lab):
    E(f"s_mov_b32 s44, {n}")
    bodies=[]
    for it in range(n):
        mark=len(E.L)
        for j in range(j0+it*U,j0+(it+1)*U): phase(j)
        bodies.append(E.L[mark:]); del E.L[mark:]
    assert len(set(len(b) for b in bodies))==1
    merged=[]
    for tup in zip(*bodies):
        if len(set(tup))==1: merged.append(tup[0])
        else:
            assert all(x.startswith("s_waitcnt vmcnt") for x in tup), tup
            merged.append(min(tup,key=lambda x:int(x.split("(")[1].split(")")[0])))
    E(".p2align 6"); E(lab+":")
    E.L.extend(merged)
    E("s_sub_u32 s44, s44, 1"); E("s_cmp_lg_u32 s44, 0"); E(f"s_cbranch_scc1 {lab}")

def producer(E, cfg):
    RAW0 = 64
    OUT, AV, SV, ZV = 32, (48,56), 16, 20
    VQ, VX, vw, va = 200, 208, 7, 9
    def raw(st,e,j): return RAW0 + (st%cfg.RW)*32 + e*4 + j
    tabs=[table(o&3,o>>2,cfg) for o in range(8)]
    first=0
    for o in range(8): first|=(tabs[o]&15)<<(4*o)
    E("s_sub_u32 s31, s28, 4") if False else None
    E("s_add_u32 s46, s29, s30"); E("s_and_b32 s46, s46, 3"); E("s_and_b32 s42, s30, 4"); E("s_or_b32 s46, s46, s42")
    assert cfg.xrot in (0,8) and cfg.XL==2
    E("s_lshl_b32 s42, s46, 2"); E(f"s_lshr_b32 s37, {first:#x}, s42")
    E("s_and_b32 s37, s37, 15")
    if cfg.xrot:
        E("s_and_b32 s45, s2, 1"); E("s_lshl_b32 s45, s45, 3"); E("s_xor_b32 s37, s37, s45")
    E("s_lshl_b32 s33, s31, 9")
    E("s_lshl_b32 s35, s31, 8")
    E("s_sub_u32 s31, s28, 4")
    E("s_lshl_b32 s36, s31, 4")
    E("v_lshl_add_u32 v10, v1, 3, s36")
    E(f"v_mul_u32_u24 v10, {QROW}, v10")
    E(f"v_lshl_add_u32 v{VQ}, v3, 4, v10")
    for e in range(1,8): E(f"v_add_u32 v{VQ+e}, {e*QROW}, v{VQ}")
    E(f"s_mul_i32 s36, s37, {64*QROW}")
    E("s_waitcnt lgkmcnt(0)")
    stamp(E,cfg,1)
    build_srd(E,20,6,33,K*QROW)
    def advance():
        if cfg.LW==2: E("s_lshl_b32 s40, s37, 7")
        E("s_and_b32 s37, s52, 15"); E("s_lshr_b64 s[52:53], s[52:53], 4")
        E(f"s_mul_i32 s36, s37, {64*QROW}")
        if cfg.LW==1: E("s_lshl_b32 s40, s37, 7")
    def ring():
        E(f"s_add_u32 s43, s43, {XSLOT}"); E("s_cmp_eq_u32 s43, s38"); E("s_cselect_b32 s43, s39, s43")
    def wload(st,e):
        r=raw(st,e,0)
        E.vmem(f"buffer_load_dwordx4 v[{r}:{r+3}], v{VQ+e}, s[20:23], s36 offen", ("W",st))
    def xdma(st,i):
        E.vmem(f"buffer_load_dwordx4 v{VX+i}, s[16:19], s40 offen offset:{(i%4)*1024} lds", ("X",st))
    M0A="s_mov_b32 m0, s43"; M0B="s_add_u32 m0, s43, 4096"
    def aread(st):
        a=AV[st%2]
        E(f"v_lshl_add_u32 v12, s40, 1, v{va}")
        E(f"ds_read_b128 v[{a}:{a+3}], v12"); E(f"ds_read_b128 v[{a+4}:{a+7}], v12 offset:16")
    if cfg.diag==2:
        wload(0,0); E("s_waitcnt vmcnt(0)"); stamp(E,cfg,2)
    for e in range(8): wload(0,e)
    if cfg.diag==1: E("s_waitcnt vmcnt(0)"); stamp(E,cfg,2)
    E("v_lshl_add_u32 v10, v3, 3, s35")
    E.vmem("global_load_dwordx2 v[24:25], v10, s[8:9]", "SZ")
    E.vmem("global_load_dwordx2 v[26:27], v10, s[10:11]", "SZ")
    if cfg.diag: E("s_waitcnt vmcnt(0)"); stamp(E,cfg,3)
    bm_full(E); E("s_lshl_b32 s32, s29, 19")
    build_srd(E,16,4,32,M*K*2)
    E("v_lshrrev_b32 v10, 3, v2"); E("v_and_b32 v12, 7, v2"); E("v_lshrrev_b32 v13, 4, v2"); E("v_xor_b32 v12, v12, v13")
    E("v_lshlrev_b32 v12, 4, v12"); E(f"v_lshl_add_u32 v{VX}, v10, 11, v12"); E(f"v_xor_b32 v{VX+1}, 64, v{VX}")
    for i in range(7,1,-1): E(f"v_add_u32 v{VX+i}, {i*16384-(i%4)*1024}, v{VX+i%2}")
    E(f"v_add_u32 v{VX+1}, {16384-1024}, v{VX+1}")
    E("s_lshl_b32 s39, s31, 13"); E("s_lshl_b32 s41, s31, 17"); E(f"s_add_u32 s38, s39, {cfg.NX*XSLOT}"); E("s_mov_b32 s43, s39")
    for i in range(8): E(f"v_add_u32 v{VX+i}, s41, v{VX+i}")
    E("s_lshl_b32 s40, s37, 7")
    for i in range(8):
        if i%4==0: E(M0A if i==0 else M0B); E("s_nop 0")
        xdma(0,i)
    if cfg.diag: E("s_waitcnt vmcnt(0)"); stamp(E,cfg,4)
    ring(); E(M0A)
    E(f"s_mov_b32 s52, {tabs[0]&0xffffffff:#x}"); E(f"s_mov_b32 s53, {tabs[0]>>32:#x}")
    for o in range(1,8):
        if tabs[o]!=tabs[0]:
            E(f"s_cmp_eq_u32 s46, {o}"); E(f"s_cselect_b32 s52, {tabs[o]&0xffffffff:#x}, s52"); E(f"s_cselect_b32 s53, {tabs[o]>>32:#x}, s53")
    if cfg.xrot:
        E("s_mul_i32 s45, s45, 0x11111111"); E("s_xor_b32 s52, s52, s45"); E("s_xor_b32 s53, s53, s45")
    E("s_lshr_b64 s[52:53], s[52:53], 4")
    E("s_lshl_b32 s42, s31, 12"); E(f"s_add_u32 s42, s42, {cfg.WBASE}")
    if not cfg.q4: E(f"v_lshl_add_u32 v{vw}, v2, 4, s42")
    else:
        E("v_and_b32 v12, 15, v3"); E("v_lshlrev_b32 v12, 1, v12"); E("v_bfe_u32 v13, v3, 2, 1"); E("v_xor_b32 v12, v12, v13")
        E("v_lshl_add_u32 v12, v1, 5, v12"); E("v_lshlrev_b32 v12, 4, v12"); E("v_lshrrev_b32 v13, 4, v3"); E("v_lshl_add_u32 v12, v13, 11, v12")
        E(f"v_add_u32 v{vw}, s42, v12"); E(f"v_xor_b32 v8, 16, v{vw}")
    E("s_lshl_b32 s42, s31, 6"); E(f"s_add_u32 s42, s42, {cfg.ABASE}")
    E(f"v_lshl_add_u32 v{va}, v1, 5, s42")
    E("s_mov_b32 s47, s40")
    if cfg.LW==2:
        E("s_and_b32 s37, s52, 15"); E("s_lshr_b64 s[52:53], s[52:53], 4"); E(f"s_mul_i32 s36, s37, {64*QROW}")
        for e in range(8): wload(1,e)
    advance()
    if cfg.LW==1:
        for e in range(cfg.pre): wload(1,e)
    if not cfg.diag: stamp(E,cfg,2)
    E("s_barrier")
    if not cfg.diag: stamp(E,cfg,3)
    E(f"v_lshl_add_u32 v12, s47, 1, v{va}")
    E(f"ds_read_b128 v[{AV[0]}:{AV[0]+3}], v12"); E(f"ds_read_b128 v[{AV[0]+4}:{AV[0]+7}], v12 offset:16")
    E.waitvm("SZ")
    for j in range(4):
        for (src,dst) in ((24,SV),(26,ZV)):
            if j%2==0: E(f"v_lshlrev_b32 v{dst+j}, 16, v{src+j//2}")
            else: E(f"v_and_b32 v{dst+j}, 0xffff0000, v{src+j//2}")
    for j in range(4):
        E(f"v_mul_f32 v{ZV+j}, v{ZV+j}, v{SV+j}")
        if cfg.cvt:
            E(f"v_mul_f32 v{SV+j}, 1.0, v{SV+j}")
        else:
            E(f"v_mul_f32 v{SV+j}, 0x71800000, v{SV+j}")
            E(f"v_mul_f32 v{ZV+j}, 0x27000000, v{ZV+j}")
    if cfg.pprio: E(f"s_setprio {cfg.pprio}")
    def phase(j):
        st=j+1
        xs=j+cfg.XL; ws=st+cfg.LW
        a=AV[st%2]
        xi=[(lambda i=i: (xdma(xs,i), (E(M0B) if i==3 else None))) for i in range(8)] if xs<NST else []
        wi=[(lambda e=e: wload(ws,e)) for e in range(cfg.pre if (j==-1 and cfg.LW==1) else 0,8)] if ws<NST else []
        if cfg.xfirst==1: mem=xi+wi
        elif cfg.xfirst==0: mem=wi+xi
        else:
            mem=[]
            while xi or wi:
                if xi: mem.append(xi.pop(0))
                if wi: mem.append(wi.pop(0))
        for _ in range(cfg.dfirst if j>=0 else 0):
            if mem: mem.pop(0)()
        E.waitvm(("W",st), " lgkmcnt(0)")
        if j==-1 and not cfg.diag: stamp(E,cfg,4)
        if st+1<NST: aread(st+1)
        sl=(st%2)*WSLOT
        work=[]; wr=[]
        for jj in range(4):
            for half in range(2):
                rs=range(4*half,4*half+4)
                if cfg.cvt:
                    for e in rs: r=raw(st,e,jj); work.append(f"v_cvt_f32_i32 v{r}, v{r}")
                for e in rs: r=raw(st,e,jj); work.append(f"v_fma_f32 v{r}, v{r}, v{SV+jj}, -v{ZV+jj}")
                for e in rs: r=raw(st,e,jj); work.append(f"v_mul_f32 v{r}, v{r}, v{a+e}")
                for p in (2*half,2*half+1):
                    work.append(f"v_cvt_pk_bf16_f32 v{OUT+4*jj+p}, v{raw(st,2*p,jj)}, v{raw(st,2*p+1,jj)}")
            if cfg.q4: wr.append(f"ds_write_b128 v{vw if jj<2 else 8}, v[{OUT+4*jj}:{OUT+4*jj+3}] offset:{sl+(jj&1)*1024}")
            else: wr.append(f"ds_write_b128 v{vw}, v[{OUT+4*jj}:{OUT+4*jj+3}] offset:{sl+jj*1024}")
        per=len(work)//4
        pos=[int(x)*per//20 for x in cfg.wpos.split()] if (cfg.wpos and mem) else [per,2*per,3*per,4*per]
        for jj in (3,2,1,0):
            assert pos[jj]>=per*(jj+1)
            work.insert(pos[jj],wr[jj])
        nm=len(mem)-cfg.tailv if len(mem)>cfg.tailv else len(mem)
        nw=len(work); done=0
        for i,w in enumerate(work):
            E(w)
            while done<nm and (i+1)*(nm+1) >= (done+1)*nw: mem.pop(0)(); done+=1
        while mem: mem.pop(0)()
        if xs+1<NST: ring(); E(M0A)
        if ws+1<NST: advance()
        elif xs+1<NST: E("s_lshl_b32 s40, s37, 7")
        E.waitvm(("X",st), " lgkmcnt(0)")
        if cfg.bw: E("s_memtime s[88:89]")
        E("s_barrier")
        if cfg.bw:
            E("s_memtime s[90:91]"); E("s_waitcnt lgkmcnt(0)"); E("s_sub_u32 s90, s90, s88")
            E("s_add_u32 s86, s86, s90")
    U=cfg.U
    assert U%cfg.RW==0 and U%2==0
    last_full = min(NST-1-cfg.XL, NST-2-cfg.LW) - 1
    phase(-1)
    jn=0
    if cfg.loop:
        n=(last_full+1)//U
        if n>=2:
            loopify(E,phase,0,n,U,"L_p_loop"); jn=n*U
    for j in range(jn,NST-1): phase(j)
    finish(E,cfg,False)

def finish(E,cfg,cons):
    if cfg.enc:
        role,a,b=cfg.enc.split(":")
        if (role=="c")==cons:
            E("s_waitcnt vmcnt(0)"); stamp(E,cfg,5); E("s_memrealtime s[82:83]"); E("s_waitcnt lgkmcnt(0)")
            if a=="r": E("s_sub_u32 s84, s82, s80")
            else: E(f"s_sub_u32 s84, s{60+2*int(b)}, s{60+2*int(a)}"); E("s_lshr_b32 s84, s84, 3")
            E("s_add_u32 s84, s84, 4000")
            lab=f"L_enc{len(E.L)}"
            E(lab+":"); E("s_memrealtime s[82:83]"); E("s_waitcnt lgkmcnt(0)"); E("s_sub_u32 s82, s82, s80")
            E(f"s_cmp_lt_u32 s82, s84"); E(f"s_cbranch_scc1 {lab}")
    if cfg.spin:
        lab=f"L_spin{len(E.L)}"
        E("s_waitcnt vmcnt(0)")
        E(lab+":"); E("s_memrealtime s[82:83]"); E("s_waitcnt lgkmcnt(0)"); E("s_sub_u32 s82, s82, s80")
        E(f"s_cmp_lt_u32 s82, {cfg.spin}"); E(f"s_cbranch_scc1 {lab}")
    if cfg.stamps:
        stamp(E,cfg,5)
        E("s_memrealtime s[78:79]")
        E("s_waitcnt lgkmcnt(0)")
        if cfg.bw: E("s_add_u32 s62, s60, s86")
        E("s_mov_b32 s48, s58"); E("s_mov_b32 s49, s59"); E("s_mov_b32 s50, 0x1000000"); E("s_mov_b32 s51, 0x20000")
        E("s_lshl_b32 s52, s2, 3"); E("s_add_u32 s52, s52, s28"); E("s_lshl_b32 s52, s52, 5")
        E("v_mov_b32 v10, s76"); E("v_mov_b32 v11, s78")
        for i,r in enumerate((62,64,66,68,70)):
            E(f"s_sub_u32 s{r}, s{r}, s60"); E(f"v_mov_b32 v{12+i}, s{r}")
        E("s_getreg_b32 s53, hwreg(HW_REG_HW_ID)"); E("v_mov_b32 v17, s53")
        E("v_mov_b32 v9, s52")
        E("s_mov_b64 exec, 1")
        E("buffer_store_dwordx4 v[10:13], v9, s[48:51], 0 offen")
        E("buffer_store_dwordx4 v[14:17], v9, s[48:51], 0 offen offset:16")
        if cfg.stamps==2 and cons:
            E("s_mov_b64 exec, 0xffff"); E("s_lshl_b32 s52, s2, 3"); E("s_add_u32 s52, s52, s28"); E("s_lshl_b32 s52, s52, 6"); E("s_add_u32 s52, s52, 0x10000")
            E("v_and_b32 v9, 63, v0"); E("v_lshlrev_b32 v9, 2, v9"); E("v_add_u32 v9, s52, v9")
            E("buffer_store_dword v254, v9, s[48:51], 0 offen")
    E("s_endpgm")

def consumer(E,cfg):
    ACC=16; XF=(144,152); WF=(160,176)
    vxb=(4,5,6,7); vx=(248,249,250,251); vw=8; vo=9
    T=216
    def acc(b,j): return ACC+(b*4+j)*16
    E("L_consumer:")
    E("v_lshlrev_b32 v10, 3, v0")
    E("s_waitcnt lgkmcnt(0)")
    E.vmem("global_load_dwordx2 v[12:13], v10, s[12:13]","A")
    if cfg.codepf:
        E("s_getpc_b64 s[48:49]"); E("L_pc:")
        E(f"s_sub_u32 s48, s48, L_pc-{KN}"); E("s_subb_u32 s49, s49, 0")
        E(f"s_mov_b32 s50, L_codeend-{KN}"); E("s_mov_b32 s51, 0x20000")
        E("s_lshl_b32 s43, s47, 9"); E("v_lshlrev_b32 v11, 6, v0"); E("v_add_u32 v14, s43, v11")
        E("v_cmp_gt_u32 vcc, 8, v0"); E("s_nop 1"); E("v_cndmask_b32 v11, -1, v14, vcc")
        E.vmem("buffer_load_dword v14, v11, s[48:51], 0 offen","PF")
    if cfg.pf:
        E("s_cmp_ge_u32 s45, 2"); E("s_cbranch_scc1 L_nopf")
        E("s_mul_i32 s36, s45, 28"); E("s_add_u32 s36, s36, s47"); E("s_lshl_b32 s36, s36, 8")
        E("v_add_u32 v11, s36, v0"); E("v_mul_u32_u24 v14, 24967, v11"); E("v_lshrrev_b32 v14, 22, v14")
        E("v_mul_u32_u24 v15, 168, v14"); E("v_sub_u32 v15, v11, v15")
        E(f"v_mul_u32_u24 v11, {QROW}, v14"); E("v_lshl_add_u32 v11, v15, 6, v11")
        E("v_cmp_gt_u32 vcc, 64, v14"); E("s_mov_b32 s20, s6"); E("s_mov_b32 s21, s7"); E("v_cndmask_b32 v11, -1, v11, vcc")
        E(f"s_mov_b32 s22, {K*QROW}"); E("s_mov_b32 s23, 0x20000")
        for st in range(cfg.pf0,cfg.pf0+cfg.pf):
            E(f"s_mov_b32 s36, {st*64*QROW+3584}")
            E(f"buffer_load_dword v{20+st}, v11, s[20:23], s36 offen")
        if cfg.pfw: E("s_waitcnt vmcnt(0)")
        E("L_nopf:")
        E.vm.append("A")
    bm_full(E)
    E(f"s_mul_i32 s34, s29, {256*OROW}"); E("s_lshl_b32 s35, s31, 8"); E("s_add_u32 s34, s34, s35")
    build_srd(E,24,14,34,M*OROW)
    if cfg.tlb&1:
        E("s_lshl_b32 s33, s31, 9"); build_srd(E,20,6,33,K*QROW)
        E("v_lshlrev_b32 v11, 21, v0"); E("v_cmp_gt_u32 vcc, 8, v0"); E("s_nop 1"); E("v_cndmask_b32 v11, -1, v11, vcc")
        E.vmem("buffer_load_dword v15, v11, s[20:23], 0 offen","PF")
    if cfg.tlb&2:
        E(f"v_mul_u32_u24 v11, {63*OROW}, v2"); E(f"s_mul_i32 s36, s28, {64*OROW}"); E("v_add_u32 v11, s36, v11")
        E("v_cmp_gt_u32 vcc, 2, v2"); E("s_nop 1"); E("v_cndmask_b32 v11, -1, v11, vcc")
        E.vmem("buffer_load_dword v15, v11, s[24:27], 0 offen","PF")
    E("v_bfe_u32 v11, v3, 1, 3"); E("v_xor_b32 v11, v11, v1"); E("v_lshlrev_b32 v11, 4, v11")
    E("s_lshl_b32 s36, s28, 13")
    E("v_lshl_add_u32 v11, v3, 7, v11"); E("v_add_u32 v4, s36, v11")
    for u in range(1,4): E(f"v_xor_b32 v{vxb[u]}, {32*u}, v4")
    for u in range(4): E(f"v_mov_b32 v{vx[u]}, v{vxb[u]}")
    if cfg.q4:
        E("v_bfe_u32 v11, v2, 3, 1"); E("v_xor_b32 v11, v11, v2"); E(f"v_lshlrev_b32 v{vw}, 4, v11")
    else: E(f"v_lshlrev_b32 v{vw}, 4, v2")
    E(f"v_add_u32 v{vw}, {cfg.WBASE}, v{vw}")
    E(f"v_lshlrev_b32 v10, 4, v0"); E(f"v_add_u32 v10, {cfg.ABASE}, v10")
    E("s_mov_b32 s38, 0")
    E.waitvm("A")
    E("v_lshlrev_b32 v16, 16, v12"); E("v_and_b32 v17, 0xffff0000, v12"); E("v_lshlrev_b32 v18, 16, v13"); E("v_and_b32 v19, 0xffff0000, v13")
    if not cfg.cvt:
        for i in range(4): E(f"v_mul_f32 v{16+i}, 0x58000000, v{16+i}")
    E("ds_write_b128 v10, v[16:19]")
    E("s_lshl_b32 s36, s28, 6"); E("v_lshl_add_u32 v11, v1, 2, s36"); E(f"v_mul_u32_u24 v11, {OROW}, v11")
    E(f"v_lshl_add_u32 v{vo}, v3, {2 if cfg.q4 else 3}, v11")
    if cfg.srow:
        for b in range(2):
            for r in range(16): E(f"s_mov_b32 s{64+16*b+r}, {(32*b+8*(r>>2)+(r&3))*OROW}")
    if cfg.prio: E(f"s_setprio {cfg.prio}")
    stamp(E,cfg,1)
    if cfg.stamps==2: E("s_mov_b32 s75, 0")
    E("s_waitcnt lgkmcnt(0)")
    E("s_barrier")
    E("s_barrier")
    stamp(E,cfg,2)
    def reads(j,u):
        s=u%2
        xr=lambda b: f"ds_read_b128 v[{XF[s]+4*b}:{XF[s]+4*b+3}], v{vx[u]} offset:{b*4096}"
        wr=lambda jj: f"ds_read_b128 v[{WF[s]+4*jj}:{WF[s]+4*jj+3}], v{vw} offset:{(j%2)*WSLOT+(u*4+jj)*1024}"
        return [xr(0)]+[wr(jj) for jj in range(4)]+[xr(1)]
    def mfma(a,xa,wa,first=False):
        c = "0" if first else f"v[{a}:{a+15}]"
        E(f"v_mfma_f32_32x32x16_bf16 v[{a}:{a+15}], v[{xa}:{xa+3}], v[{wa}:{wa+3}], {c}")
    def mfmas(s,first,inter,per=1,pend=0,bar=99):
        inter=list(inter); issued=0; g=0
        need=[2,3,4,5,6,6,6,6]
        for b in range(2):
            for jj in (range(4) if (b==0 or not cfg.snake) else range(3,-1,-1)):
                if pend and g<5: E(f"s_waitcnt lgkmcnt({pend-need[g]+issued})")
                mfma(acc(b,jj),XF[s]+4*b,WF[s]+4*jj,first)
                for _ in range(per):
                    if inter:
                        x=inter.pop(0); E(x)
                        if x.startswith("ds_read"): issued+=1
                g+=1
                if g==bar:
                    assert not any(x.startswith("ds_read") for x in inter)
                    E("s_waitcnt lgkmcnt(0)"); E("s_barrier")
        for x in inter: E(x)
    def bump():
        return ring_advance(cfg,38)+[f"v_add_u32 v{vx[u]}, s38, v{vxb[u]}" for u in range(4)]
    def pstamp():
        if cfg.stamps==2:
            E("s_sub_u32 s72, s72, s60"); E("v_mov_b32 v255, s72"); E("v_cmp_eq_u32 vcc, s75, v2"); E("s_add_u32 s75, s75, 1"); E("s_nop 0"); E("v_cndmask_b32 v254, v254, v255, vcc")
    def phase(j):
        if cfg.stamps==2: E("s_memtime s[72:73]")
        cw = cfg.cw and cfg.stamps!=2
        if j==0:
            for r in reads(0,0): E(r)
        else: mfmas(1,False,reads(j,0),cfg.rd2)
        if not cw: E("s_waitcnt lgkmcnt(0)")
        pstamp()
        mfmas(0,j==0,reads(j,1),cfg.rd2,6 if cw else 0)
        if not cw: E("s_waitcnt lgkmcnt(0)")
        mfmas(1,False,reads(j,2),cfg.rd2,6 if cw else 0)
        if not cw: E("s_waitcnt lgkmcnt(0)")
        early = cfg.bpos<8 and not cfg.bw
        mfmas(0,False,reads(j,3)+bump(),2,6 if cw else 0, cfg.bpos if early else 99)
        if early: return
        E("s_waitcnt lgkmcnt(0)")
        if cfg.bw: E("s_memtime s[88:89]")
        if j<NST-1: E("s_barrier")
        if cfg.bw:
            E("s_memtime s[90:91]"); E("s_waitcnt lgkmcnt(0)"); E("s_sub_u32 s90, s90, s88")
            E("s_add_u32 s86, s86, s90")
    def store_ops(b,h2=None):
        ops=[]
        for r in range(16):
            row=32*b+8*(r>>2)+(r&3)
            pol=cfg.stpol
            so=f"s{64+16*b+r}" if cfg.srow else "s36"
            if cfg.q4:
                for h in ((0,1) if h2 is None else (h2,)):
                    t=T+(2*r+h if h2 is None else r+16*(h2&1))
                    ops.append(f"v_cvt_pk_bf16_f32 v{t}, v{acc(b,2*h)+r}, v{acc(b,2*h+1)+r}")
                    if not cfg.srow: ops.append(f"s_mov_b32 s36, {row*OROW}")
                    ops.append(f"buffer_store_dword v{t}, v{vo}, s[24:27], {so} offen offset:{128*h} {pol}")
            else:
                t=T+2*r
                ops.append(f"v_cvt_pk_bf16_f32 v{t}, v{acc(b,0)+r}, v{acc(b,1)+r}")
                ops.append(f"v_cvt_pk_bf16_f32 v{t+1}, v{acc(b,2)+r}, v{acc(b,3)+r}")
                if not cfg.srow: ops.append(f"s_mov_b32 s36, {row*OROW}")
                ops.append(f"buffer_store_dwordx2 v[{t}:{t+1}], v{vo}, s[24:27], {so} offen {pol}")
        return ops
    phase(0)
    last = NST-2 if cfg.tail else NST
    if cfg.loop:
        n=(last-1)//2
        loopify(E,phase,1,n,2,"L_c_loop")
        for j in range(1+2*n,last): phase(j)
    else:
        for j in range(1,last): phase(j)
    if not cfg.tail:
        mfmas(1,False,[])
        stamp(E,cfg,3)
        E("s_nop 7"); E("s_nop 7")
        for b in range(2):
            for x in store_ops(b): E(x)
    elif cfg.q4 and cfg.tail==2:
        U4=range(4); qp=cfg.qpre; D=cfg.qd
        seq=[(14,0,0,u) for u in U4]+[(14,0,1,u) for u in U4]+[(14,1,0,u) for u in range(qp)]
        seq+=[(15,0,0,u) for u in U4]+[(15,0,1,u) for u in U4]+[(14,1,0,u) for u in range(qp,4)]+[(15,1,0,u) for u in U4]
        seq+=[(14,1,1,u) for u in U4]+[(15,1,1,u) for u in U4]
        assert len(seq)==32
        first15=[i for i,h in enumerate(seq) if h[0]==15][0]
        SET=[(144,148,160),(164,168,172),(192,196,200),(204,208,212),(152,156,176),(180,184,188)]
        NS=D+1; assert NS<=6 and D<=4
        s15=(15%cfg.NX)*XSLOT
        def qreads(i):
            (st,b,h,u)=seq[i]; x,w0,w1=SET[i%NS]
            xa = vx[u] if st==14 else vxb[u]
            return [f"ds_read_b128 v[{x}:{x+3}], v{xa} offset:{b*4096+(0 if st==14 else s15)}"]+[f"ds_read_b128 v[{w}:{w+3}], v{vw} offset:{(st%2)*WSLOT+(u*4+2*h+k)*1024}" for k,w in enumerate((w0,w1))]
        done={}
        for i,(st,b,h,u) in enumerate(seq): done[(b,h)]=i
        if cfg.stamps==2: E("s_memtime s[72:73]")
        pre=[]
        for i in range(D): pre+=qreads(i)
        mfmas(1,False,pre,2)
        so=[]
        for i,(st,b,h,u) in enumerate(seq):
            x,w0,w1=SET[i%NS]
            ahead=min(D-1,len(seq)-1-i)
            E(f"s_waitcnt lgkmcnt({3*ahead})")
            if i+D==first15: E("s_barrier")
            if i==0: pstamp()
            nxt=qreads(i+D) if i+D<len(seq) else []
            for q,di in done.items():
                if di+3==i: so+=store_ops(q[0],q[1])
            left=len(seq)-i
            for k,w in enumerate((w0,w1)):
                mfma(acc(b,2*h+k),x,w)
                for _ in range(2 if k==0 else 1):
                    if nxt: E(nxt.pop(0))
                if so:
                    n=min(cfg.qmax, len(so)) if left*2-k>cfg.qend else -(-len(so)//(left*2-k))
                    for _ in range(n):
                        if so: E(so.pop(0))
        assert not so
        stamp(E,cfg,3)
        E("s_nop 7"); E("s_nop 7")
        for x in store_ops(1,1): E(x)
    else:
        seq=[(14,0,u) for u in range(4)]+[(14,1,0)]+[(15,0,u) for u in range(4)]+[(14,1,u) for u in range(1,4)]+[(15,1,u) for u in range(4)]
        if cfg.tb==4: seq=[(14,0,u) for u in range(4)]+[(15,0,u) for u in range(4)]+[(14,1,u) for u in range(4)]+[(15,1,u) for u in range(4)]
        if cfg.tb==6: seq=[(14,0,u) for u in range(4)]+[(14,1,0),(14,1,1)]+[(15,0,u) for u in range(4)]+[(14,1,u) for u in range(2,4)]+[(15,1,u) for u in range(4)]
        first15=[i for i,h in enumerate(seq) if h[0]==15][0]
        doneb0=max(i for i,h in enumerate(seq) if h[1]==0)
        SX=(XF[0],196,XF[1]); SW=(WF[0],200,WF[1])
        s15=(15%cfg.NX)*XSLOT
        def hreads(i):
            (st,b,u)=seq[i]; k=i%3
            xa = vx[u] if st==14 else vxb[u]
            R=[f"ds_read_b128 v[{SX[k]}:{SX[k]+3}], v{xa} offset:{b*4096+(0 if st==14 else s15)}"]
            R+=[f"ds_read_b128 v[{SW[k]+4*jj}:{SW[k]+4*jj+3}], v{vw} offset:{(st%2)*WSLOT+(u*4+jj)*1024}" for jj in range(4)]
            return R
        assert s15+4096+0<65536
        if cfg.stamps==2: E("s_memtime s[72:73]")
        mfmas(1,False,hreads(0)+hreads(1),2)
        so=[]
        for i,(st,b,u) in enumerate(seq):
            k=i%3
            if i+2==first15:
                E("s_waitcnt lgkmcnt(5)"); E("s_barrier")
            elif i+1<len(seq): E(f"s_waitcnt lgkmcnt(5)")
            else: E("s_waitcnt lgkmcnt(0)")
            if i==0: pstamp()
            nxt=hreads(i+2) if i+2<len(seq) else []
            if i==doneb0+2: so=store_ops(0)
            left=len(seq)-i
            for jj in range(4):
                mfma(acc(b,jj),SX[k],SW[k]+4*jj)
                for _ in range(2 if jj==0 else 1):
                    if nxt: E(nxt.pop(0))
                if so:
                    slots=(left*4-jj)
                    n=-(-len(so)//slots)
                    for _ in range(n):
                        if so: E(so.pop(0))
            assert not nxt
        assert not so
        stamp(E,cfg,3)
        E("s_nop 7"); E("s_nop 7")
        for x in store_ops(1): E(x)
    if cfg.stamps or cfg.enc: stamp(E,cfg,4); E("s_waitcnt vmcnt(0)")
    finish(E,cfg,True)

def ablate(L,cfg):
    R=[]
    if 'H' in cfg.abl or 'G' in cfg.abl:
        idx=[i for i,x in enumerate(L) if x.startswith("buffer_store") and "s[24:27]" in x]
        drop=set(idx[-8:] if 'H' in cfg.abl else idx[-16:])
        L=[x for i,x in enumerate(L) if i not in drop]
    for x in L:
        if 'V' in cfg.abl and (x.startswith("v_fma_f32") or (x.startswith("v_mul_f32") and "0x" not in x and int(x.split()[1][1:-1])>=64) or (x.startswith("v_cvt_pk") and int(x.split()[1][1:-1])<64)): continue
        if 'X' in cfg.abl and x.endswith(" lds"): continue
        if 'W' in cfg.abl and x.startswith("buffer_load") and "s[20:23]" in x: continue
        if 'M' in cfg.abl and x.startswith("v_mfma"): continue
        if 'D' in cfg.abl and x.startswith("ds_write") and "v10," not in x: continue
        if 'R' in cfg.abl and x.startswith("ds_read") and int(x.split()[1][2:].split(":")[0])>=128: continue
        if 'S' in cfg.abl and x.startswith("buffer_store") and "s[24:27]" in x: continue
        R.append(x)
    return R
def generate(cfg):
    out=[header(cfg)]
    E=Emit(); common_prologue(E,cfg); out+=E.L
    E=Emit(); producer(E,cfg); out+=E.L
    E=Emit(); consumer(E,cfg); out+=E.L
    out.append("L_exit:"); out.append("s_endpgm"); out.append("L_codeend:")
    return "\n".join(ablate(out,cfg))+footer(cfg)

if __name__=="__main__":
    kw={}
    for a in sys.argv[2:]:
        k,v=a.split("="); kw[k]=v.replace("_"," ") if k in ("stpol","abl","wpos","enc","gv","stpol2","off") else int(v)
    open(sys.argv[1],"w").write(generate(Cfg(**kw)))
```

```python
import sys
KN = "standalone__weight_only_int_omniquant__prompt_kernel"
M, K, N = 2048, 1024, 3584
QROW = N*4
OROW = N*2
NST = 16
XSLOT = 32768
WSLOT = 16384
NWG = 224

class Cfg:
    def __init__(s, **kw):
        s.NX = 3; s.XL = 2
        s.RW = 2; s.LW = 1; s.U = 2
        s.stamps = 0; s.prio = 1; s.pprio = 2; s.codepf = 1; s.loop = 1
        s.spin = 0; s.stpol = 'sc1'; s.abl = ''
        s.g = 1; s.g2 = 2; s.start = 0; s.xrot = 8; s.dfirst = 2; s.xfirst = 0; s.tailv = 6
        s.wpos = '60 66 73 80'; s.snake = 1; s.tail = 1; s.tb = 5; s.cvt = 0; s.enc = ''; s.tlb = 0; s.pf = 0; s.pf0 = 0; s.pfw = 0; s.cw = 1; s.rd2 = 1; s.bw = 0; s.gv = ''; s.stpol2 = None; s.pre = 0; s.szf = 0; s.diag = 0; s.bpos = 8; s.off = ''
        s.__dict__.update(kw)
        s.WBASE = s.NX*XSLOT
        s.ABASE = s.WBASE + 2*WSLOT
        s.LDS = s.ABASE + 4096

def order(o, hi, cfg):
    if cfg.g==0: return list(range(NST))
    def key(s):
        if s%4==o and s>=cfg.start:
            g = cfg.g2 if ((s>>2)&1)==hi else cfg.g
            if cfg.gv:
                t=cfg.gv.split()[s>>2]; g=int(t[1] if ((s>>2)&1)==hi else t[0])
                if g==0: return s
            return s-g-0.5
        return s
    return sorted(range(NST), key=key)
def table(o,hi,cfg):
    v=0
    for i,s in enumerate(order(o,hi,cfg)): v|=s<<(4*i)
    return v

class Emit:
    def __init__(s): s.L=[]; s.vm=[]
    def __call__(s, x): s.L.append(x)
    def vmem(s, x, tag): s.L.append(x); s.vm.append(tag)
    def waitvm(s, tag, extra=""):
        idx=[i for i,t in enumerate(s.vm) if t==tag]
        n=(len(s.vm)-1-idx[-1]) if idx else 63
        n=min(n,63)
        s.L.append(f"s_waitcnt vmcnt({n}){extra}")
        return n

def stamp(E, cfg, i):
    if cfg.stamps or cfg.enc: E(f"s_memtime s[{60+2*i}:{61+2*i}]")

def header(cfg):
    return f"""; Fused int4-weight dequant + bf16 GEMM: out[2048,3584] = (x*act) @ ((qw-z)*s); one 256x128 tile per workgroup.
; Waves 0-3 multiply (v_mfma 32x32x16, operands from LDS); waves 4-7 stream x into LDS (LDS-DMA) and turn qw into bf16.
; @launch grid=({NWG},1,1) block=(512,1,1) lds={cfg.LDS}
.amdgcn_target "amdgcn-amd-amdhsa--gfx950"
.text
.globl {KN}
.p2align 8
.type {KN},@function
{KN}:
"""
def footer(cfg):
    return f"""
.section .rodata,"a"
.p2align 6
.amdhsa_kernel {KN}
  .amdhsa_next_free_vgpr 256
  .amdhsa_next_free_sgpr 96
  .amdhsa_accum_offset 256
  .amdhsa_group_segment_fixed_size 0
  .amdhsa_kernarg_size 64
  .amdhsa_user_sgpr_count 2
  .amdhsa_user_sgpr_kernarg_segment_ptr 1
  .amdhsa_system_sgpr_workgroup_id_x 1
  .amdhsa_float_denorm_mode_32 3
.end_amdhsa_kernel
"""
def common_prologue(E, cfg):
    if cfg.spin or cfg.enc: E("s_memrealtime s[80:81]")
    if cfg.stamps: E("s_memrealtime s[76:77]")
    stamp(E,cfg,0)
    if cfg.bw: E("s_mov_b32 s86, 0")
    E(f"s_cmp_ge_u32 s2, {NWG}"); E("s_cbranch_scc1 L_exit")
    E("s_load_dwordx4 s[4:7], s[0:1], 0")
    E("s_load_dwordx4 s[12:15], s[0:1], 32")
    E("s_load_dwordx4 s[8:11], s[0:1], 16")
    if cfg.stamps: E("s_load_dwordx2 s[58:59], s[0:1], 56")
    E("v_lshrrev_b32 v1, 6, v0")
    E("v_and_b32 v2, 63, v0")
    E("v_readfirstlane_b32 s28, v1")
    E("s_and_b32 s45, s2, 7")
    E("s_lshr_b32 s47, s2, 3")
    E("s_lshr_b32 s30, s47, 2")
    E("s_lshr_b32 s31, s45, 1"); E("s_mul_i32 s31, s31, 7"); E("s_add_u32 s31, s30, s31")
    E("s_and_b32 s29, s47, 3")
    E("v_and_b32 v3, 31, v0")
    E("v_bfe_u32 v1, v0, 5, 1")
    E("s_cmp_ge_u32 s28, 4")
    E("s_cbranch_scc0 L_consumer")

def bm_full(E):
    E("s_and_b32 s42, s2, 1"); E("s_lshl_b32 s42, s42, 2"); E("s_add_u32 s29, s29, s42")

def build_srd(E, base, ptr, off, size):
    E(f"s_add_u32 s{base}, s{ptr}, s{off}"); E(f"s_addc_u32 s{base+1}, s{ptr+1}, 0")
    E(f"s_sub_u32 s{base+2}, {size}, s{off}"); E(f"s_mov_b32 s{base+3}, 0x20000")

def nextstage(E, cfg, pair, dst):
    if cfg.xrot:
        E(f"s_add_u32 s{dst}, s{pair}, s45"); E(f"s_and_b32 s{dst}, s{dst}, 15")
    else: E(f"s_and_b32 s{dst}, s{pair}, 15")
    E(f"s_lshr_b64 s[{pair}:{pair+1}], s[{pair}:{pair+1}], 4")

def ring_advance(cfg, r):
    return [f"s_add_u32 s{r}, s{r}, {XSLOT}", f"s_cmp_eq_u32 s{r}, {cfg.NX*XSLOT}", f"s_cselect_b32 s{r}, 0, s{r}"]

def loopify(E, phase, j0, n, U, lab):
    E(f"s_mov_b32 s44, {n}")
    bodies=[]
    for it in range(n):
        mark=len(E.L)
        for j in range(j0+it*U,j0+(it+1)*U): phase(j)
        bodies.append(E.L[mark:]); del E.L[mark:]
    assert len(set(len(b) for b in bodies))==1
    merged=[]
    for tup in zip(*bodies):
        if len(set(tup))==1: merged.append(tup[0])
        else:
            assert all(x.startswith("s_waitcnt vmcnt") for x in tup), tup
            merged.append(min(tup,key=lambda x:int(x.split("(")[1].split(")")[0])))
    E(".p2align 6"); E(lab+":")
    E.L.extend(merged)
    E("s_sub_u32 s44, s44, 1"); E("s_cmp_lg_u32 s44, 0"); E(f"s_cbranch_scc1 {lab}")

def producer(E, cfg):
    RAW0 = 64
    OUT, AV, SV, ZV = 32, (48,56), 16, 20
    VQ, VX, vw, va = 200, 208, 7, 9
    def raw(st,e,j): return RAW0 + (st%cfg.RW)*32 + e*4 + j
    tabs=[table(o&3,o>>2,cfg) for o in range(8)]
    first=0
    for o in range(8): first|=(tabs[o]&15)<<(4*o)
    E("s_sub_u32 s31, s28, 4") if False else None
    E("s_add_u32 s46, s29, s30"); E("s_and_b32 s46, s46, 3"); E("s_and_b32 s42, s30, 4"); E("s_or_b32 s46, s46, s42")
    assert cfg.xrot in (0,8) and cfg.XL==2
    E("s_lshl_b32 s42, s46, 2"); E(f"s_lshr_b32 s37, {first:#x}, s42")
    E("s_and_b32 s37, s37, 15")
    if cfg.xrot:
        E("s_and_b32 s45, s2, 1"); E("s_lshl_b32 s45, s45, 3"); E("s_xor_b32 s37, s37, s45")
    E("s_lshl_b32 s33, s31, 9")
    E("s_lshl_b32 s35, s31, 8")
    E("s_sub_u32 s31, s28, 4")
    E("s_lshl_b32 s36, s31, 4")
    E("v_lshl_add_u32 v10, v1, 3, s36")
    E(f"v_mul_u32_u24 v10, {QROW}, v10")
    E(f"v_lshl_add_u32 v{VQ}, v3, 4, v10")
    for e in range(1,8): E(f"v_add_u32 v{VQ+e}, {e*QROW}, v{VQ}")
    E(f"s_mul_i32 s36, s37, {64*QROW}")
    E("s_waitcnt lgkmcnt(0)")
    stamp(E,cfg,1)
    build_srd(E,20,6,33,K*QROW)
    def advance():
        if cfg.LW==2: E("s_lshl_b32 s40, s37, 7")
        E("s_and_b32 s37, s52, 15"); E("s_lshr_b64 s[52:53], s[52:53], 4")
        E(f"s_mul_i32 s36, s37, {64*QROW}")
        if cfg.LW==1: E("s_lshl_b32 s40, s37, 7")
    def ring():
        E(f"s_add_u32 s43, s43, {XSLOT}"); E("s_cmp_eq_u32 s43, s38"); E("s_cselect_b32 s43, s39, s43")
    def wload(st,e):
        r=raw(st,e,0)
        E.vmem(f"buffer_load_dwordx4 v[{r}:{r+3}], v{VQ+e}, s[20:23], s36 offen", ("W",st))
    def xdma(st,i):
        E.vmem(f"buffer_load_dwordx4 v{VX+i}, s[16:19], s40 offen offset:{(i%4)*1024} lds", ("X",st))
    M0A="s_mov_b32 m0, s43"; M0B="s_add_u32 m0, s43, 4096"
    def aread(st):
        a=AV[st%2]
        E(f"v_lshl_add_u32 v12, s40, 1, v{va}")
        E(f"ds_read_b128 v[{a}:{a+3}], v12"); E(f"ds_read_b128 v[{a+4}:{a+7}], v12 offset:16")
    if cfg.diag==2:
        wload(0,0); E("s_waitcnt vmcnt(0)"); stamp(E,cfg,2)
    for e in range(8): wload(0,e)
    if cfg.diag==1: E("s_waitcnt vmcnt(0)"); stamp(E,cfg,2)
    E("v_lshl_add_u32 v10, v3, 3, s35")
    E.vmem("global_load_dwordx2 v[24:25], v10, s[8:9]", "SZ")
    E.vmem("global_load_dwordx2 v[26:27], v10, s[10:11]", "SZ")
    if cfg.diag: E("s_waitcnt vmcnt(0)"); stamp(E,cfg,3)
    bm_full(E); E("s_lshl_b32 s32, s29, 19")
    build_srd(E,16,4,32,M*K*2)
    E("v_lshrrev_b32 v10, 3, v2"); E("v_and_b32 v12, 7, v2"); E("v_lshrrev_b32 v13, 4, v2"); E("v_xor_b32 v12, v12, v13")
    E("v_lshlrev_b32 v12, 4, v12"); E(f"v_lshl_add_u32 v{VX}, v10, 11, v12"); E(f"v_xor_b32 v{VX+1}, 64, v{VX}")
    for i in range(7,1,-1): E(f"v_add_u32 v{VX+i}, {i*16384-(i%4)*1024}, v{VX+i%2}")
    E(f"v_add_u32 v{VX+1}, {16384-1024}, v{VX+1}")
    E("s_lshl_b32 s39, s31, 13"); E("s_lshl_b32 s41, s31, 17"); E(f"s_add_u32 s38, s39, {cfg.NX*XSLOT}"); E("s_mov_b32 s43, s39")
    for i in range(8): E(f"v_add_u32 v{VX+i}, s41, v{VX+i}")
    E("s_lshl_b32 s40, s37, 7")
    for i in range(8):
        if i%4==0: E(M0A if i==0 else M0B); E("s_nop 0")
        xdma(0,i)
    if cfg.diag: E("s_waitcnt vmcnt(0)"); stamp(E,cfg,4)
    ring(); E(M0A)
    E(f"s_mov_b32 s52, {tabs[0]&0xffffffff:#x}"); E(f"s_mov_b32 s53, {tabs[0]>>32:#x}")
    for o in range(1,8):
        if tabs[o]!=tabs[0]:
            E(f"s_cmp_eq_u32 s46, {o}"); E(f"s_cselect_b32 s52, {tabs[o]&0xffffffff:#x}, s52"); E(f"s_cselect_b32 s53, {tabs[o]>>32:#x}, s53")
    if cfg.xrot:
        E("s_mul_i32 s45, s45, 0x11111111"); E("s_xor_b32 s52, s52, s45"); E("s_xor_b32 s53, s53, s45")
    E("s_lshr_b64 s[52:53], s[52:53], 4")
    E("s_lshl_b32 s42, s31, 12"); E(f"s_add_u32 s42, s42, {cfg.WBASE}")
    E(f"v_lshl_add_u32 v{vw}, v2, 4, s42")
    E("s_lshl_b32 s42, s31, 6"); E(f"s_add_u32 s42, s42, {cfg.ABASE}")
    E(f"v_lshl_add_u32 v{va}, v1, 5, s42")
    E("s_mov_b32 s47, s40")
    if cfg.LW==2:
        E("s_and_b32 s37, s52, 15"); E("s_lshr_b64 s[52:53], s[52:53], 4"); E(f"s_mul_i32 s36, s37, {64*QROW}")
        for e in range(8): wload(1,e)
    advance()
    if cfg.LW==1:
        for e in range(cfg.pre): wload(1,e)
    if not cfg.diag: stamp(E,cfg,2)
    E("s_barrier")
    if not cfg.diag: stamp(E,cfg,3)
    E(f"v_lshl_add_u32 v12, s47, 1, v{va}")
    E(f"ds_read_b128 v[{AV[0]}:{AV[0]+3}], v12"); E(f"ds_read_b128 v[{AV[0]+4}:{AV[0]+7}], v12 offset:16")
    E.waitvm("SZ")
    for j in range(4):
        for (src,dst) in ((24,SV),(26,ZV)):
            if j%2==0: E(f"v_lshlrev_b32 v{dst+j}, 16, v{src+j//2}")
            else: E(f"v_and_b32 v{dst+j}, 0xffff0000, v{src+j//2}")
    for j in range(4):
        E(f"v_mul_f32 v{ZV+j}, v{ZV+j}, v{SV+j}")
        if cfg.cvt:
            E(f"v_mul_f32 v{SV+j}, 1.0, v{SV+j}")
        else:
            E(f"v_mul_f32 v{SV+j}, 0x71800000, v{SV+j}")
            E(f"v_mul_f32 v{ZV+j}, 0x27000000, v{ZV+j}")
    if cfg.pprio: E(f"s_setprio {cfg.pprio}")
    def phase(j):
        st=j+1
        xs=j+cfg.XL; ws=st+cfg.LW
        a=AV[st%2]
        xi=[(lambda i=i: (xdma(xs,i), (E(M0B) if i==3 else None))) for i in range(8)] if xs<NST else []
        wi=[(lambda e=e: wload(ws,e)) for e in range(cfg.pre if (j==-1 and cfg.LW==1) else 0,8)] if ws<NST else []
        if cfg.xfirst==1: mem=xi+wi
        elif cfg.xfirst==0: mem=wi+xi
        else:
            mem=[]
            while xi or wi:
                if xi: mem.append(xi.pop(0))
                if wi: mem.append(wi.pop(0))
        for _ in range(cfg.dfirst if j>=0 else 0):
            if mem: mem.pop(0)()
        E.waitvm(("W",st), " lgkmcnt(0)")
        if j==-1 and not cfg.diag: stamp(E,cfg,4)
        if st+1<NST: aread(st+1)
        sl=(st%2)*WSLOT
        work=[]; wr=[]
        for jj in range(4):
            for half in range(2):
                rs=range(4*half,4*half+4)
                if cfg.cvt:
                    for e in rs: r=raw(st,e,jj); work.append(f"v_cvt_f32_i32 v{r}, v{r}")
                for e in rs: r=raw(st,e,jj); work.append(f"v_fma_f32 v{r}, v{r}, v{SV+jj}, -v{ZV+jj}")
                for e in rs: r=raw(st,e,jj); work.append(f"v_mul_f32 v{r}, v{r}, v{a+e}")
                for p in (2*half,2*half+1):
                    work.append(f"v_cvt_pk_bf16_f32 v{OUT+4*jj+p}, v{raw(st,2*p,jj)}, v{raw(st,2*p+1,jj)}")
            wr.append(f"ds_write_b128 v{vw}, v[{OUT+4*jj}:{OUT+4*jj+3}] offset:{sl+jj*1024}")
        per=len(work)//4
        pos=[int(x)*per//20 for x in cfg.wpos.split()] if (cfg.wpos and mem) else [per,2*per,3*per,4*per]
        for jj in (3,2,1,0):
            assert pos[jj]>=per*(jj+1)
            work.insert(pos[jj],wr[jj])
        nm=len(mem)-cfg.tailv if len(mem)>cfg.tailv else len(mem)
        nw=len(work); done=0
        for i,w in enumerate(work):
            E(w)
            while done<nm and (i+1)*(nm+1) >= (done+1)*nw: mem.pop(0)(); done+=1
        while mem: mem.pop(0)()
        if xs+1<NST: ring(); E(M0A)
        if ws+1<NST: advance()
        elif xs+1<NST: E("s_lshl_b32 s40, s37, 7")
        E.waitvm(("X",st), " lgkmcnt(0)")
        if cfg.bw: E("s_memtime s[88:89]")
        E("s_barrier")
        if cfg.bw:
            E("s_memtime s[90:91]"); E("s_waitcnt lgkmcnt(0)"); E("s_sub_u32 s90, s90, s88")
            E("s_add_u32 s86, s86, s90")
    U=cfg.U
    assert U%cfg.RW==0 and U%2==0
    last_full = min(NST-1-cfg.XL, NST-2-cfg.LW) - 1
    phase(-1)
    jn=0
    if cfg.loop:
        n=(last_full+1)//U
        if n>=2:
            loopify(E,phase,0,n,U,"L_p_loop"); jn=n*U
    for j in range(jn,NST-1): phase(j)
    finish(E,cfg,False)

def finish(E,cfg,cons):
    if cfg.enc:
        role,a,b=cfg.enc.split(":")
        if (role=="c")==cons:
            E("s_waitcnt vmcnt(0)"); stamp(E,cfg,5); E("s_memrealtime s[82:83]"); E("s_waitcnt lgkmcnt(0)")
            if a=="r": E("s_sub_u32 s84, s82, s80")
            else: E(f"s_sub_u32 s84, s{60+2*int(b)}, s{60+2*int(a)}"); E("s_lshr_b32 s84, s84, 3")
            E("s_add_u32 s84, s84, 4000")
            lab=f"L_enc{len(E.L)}"
            E(lab+":"); E("s_memrealtime s[82:83]"); E("s_waitcnt lgkmcnt(0)"); E("s_sub_u32 s82, s82, s80")
            E(f"s_cmp_lt_u32 s82, s84"); E(f"s_cbranch_scc1 {lab}")
    if cfg.spin:
        lab=f"L_spin{len(E.L)}"
        E("s_waitcnt vmcnt(0)")
        E(lab+":"); E("s_memrealtime s[82:83]"); E("s_waitcnt lgkmcnt(0)"); E("s_sub_u32 s82, s82, s80")
        E(f"s_cmp_lt_u32 s82, {cfg.spin}"); E(f"s_cbranch_scc1 {lab}")
    if cfg.stamps:
        stamp(E,cfg,5)
        E("s_memrealtime s[78:79]")
        E("s_waitcnt lgkmcnt(0)")
        if cfg.bw: E("s_add_u32 s62, s60, s86")
        E("s_mov_b32 s48, s58"); E("s_mov_b32 s49, s59"); E("s_mov_b32 s50, 0x1000000"); E("s_mov_b32 s51, 0x20000")
        E("s_lshl_b32 s52, s2, 3"); E("s_add_u32 s52, s52, s28"); E("s_lshl_b32 s52, s52, 5")
        E("v_mov_b32 v10, s76"); E("v_mov_b32 v11, s78")
        for i,r in enumerate((62,64,66,68,70)):
            E(f"s_sub_u32 s{r}, s{r}, s60"); E(f"v_mov_b32 v{12+i}, s{r}")
        E("s_getreg_b32 s53, hwreg(HW_REG_HW_ID)"); E("v_mov_b32 v17, s53")
        E("v_mov_b32 v9, s52")
        E("s_mov_b64 exec, 1")
        E("buffer_store_dwordx4 v[10:13], v9, s[48:51], 0 offen")
        E("buffer_store_dwordx4 v[14:17], v9, s[48:51], 0 offen offset:16")
        if cfg.stamps==2 and cons:
            E("s_mov_b64 exec, 0xffff"); E("s_lshl_b32 s52, s2, 3"); E("s_add_u32 s52, s52, s28"); E("s_lshl_b32 s52, s52, 6"); E("s_add_u32 s52, s52, 0x10000")
            E("v_and_b32 v9, 63, v0"); E("v_lshlrev_b32 v9, 2, v9"); E("v_add_u32 v9, s52, v9")
            E("buffer_store_dword v250, v9, s[48:51], 0 offen")
    E("s_endpgm")

def consumer(E,cfg):
    ACC=16; XF=(144,152); WF=(160,176)
    vxb=(4,5,6,7); vx=(192,193,194,195); vw=8; vo=9
    T=216
    def acc(b,j): return ACC+(b*4+j)*16
    E("L_consumer:")
    E("v_lshlrev_b32 v10, 3, v0")
    E("s_waitcnt lgkmcnt(0)")
    E.vmem("global_load_dwordx2 v[12:13], v10, s[12:13]","A")
    if cfg.codepf:
        E("s_getpc_b64 s[48:49]"); E("L_pc:")
        E(f"s_sub_u32 s48, s48, L_pc-{KN}"); E("s_subb_u32 s49, s49, 0")
        E(f"s_mov_b32 s50, L_codeend-{KN}"); E("s_mov_b32 s51, 0x20000")
        E("s_lshl_b32 s43, s47, 9"); E("v_lshlrev_b32 v11, 6, v0"); E("v_add_u32 v14, s43, v11")
        E("v_cmp_gt_u32 vcc, 8, v0"); E("s_nop 1"); E("v_cndmask_b32 v11, -1, v14, vcc")
        E.vmem("buffer_load_dword v14, v11, s[48:51], 0 offen","PF")
    if cfg.pf:
        E("s_cmp_ge_u32 s45, 2"); E("s_cbranch_scc1 L_nopf")
        E("s_mul_i32 s36, s45, 28"); E("s_add_u32 s36, s36, s47"); E("s_lshl_b32 s36, s36, 8")
        E("v_add_u32 v11, s36, v0"); E("v_mul_u32_u24 v14, 24967, v11"); E("v_lshrrev_b32 v14, 22, v14")
        E("v_mul_u32_u24 v15, 168, v14"); E("v_sub_u32 v15, v11, v15")
        E(f"v_mul_u32_u24 v11, {QROW}, v14"); E("v_lshl_add_u32 v11, v15, 6, v11")
        E("v_cmp_gt_u32 vcc, 64, v14"); E("s_mov_b32 s20, s6"); E("s_mov_b32 s21, s7"); E("v_cndmask_b32 v11, -1, v11, vcc")
        E(f"s_mov_b32 s22, {K*QROW}"); E("s_mov_b32 s23, 0x20000")
        for st in range(cfg.pf0,cfg.pf0+cfg.pf):
            E(f"s_mov_b32 s36, {st*64*QROW+3584}")
            E(f"buffer_load_dword v{20+st}, v11, s[20:23], s36 offen")
        if cfg.pfw: E("s_waitcnt vmcnt(0)")
        E("L_nopf:")
        E.vm.append("A")
    bm_full(E)
    E(f"s_mul_i32 s34, s29, {256*OROW}"); E("s_lshl_b32 s35, s31, 8"); E("s_add_u32 s34, s34, s35")
    build_srd(E,24,14,34,M*OROW)
    if cfg.tlb&1:
        E("s_lshl_b32 s33, s31, 9"); build_srd(E,20,6,33,K*QROW)
        E("v_lshlrev_b32 v11, 21, v0"); E("v_cmp_gt_u32 vcc, 8, v0"); E("s_nop 1"); E("v_cndmask_b32 v11, -1, v11, vcc")
        E.vmem("buffer_load_dword v15, v11, s[20:23], 0 offen","PF")
    if cfg.tlb&2:
        E(f"v_mul_u32_u24 v11, {63*OROW}, v2"); E(f"s_mul_i32 s36, s28, {64*OROW}"); E("v_add_u32 v11, s36, v11")
        E("v_cmp_gt_u32 vcc, 2, v2"); E("s_nop 1"); E("v_cndmask_b32 v11, -1, v11, vcc")
        E.vmem("buffer_load_dword v15, v11, s[24:27], 0 offen","PF")
    E("v_bfe_u32 v11, v3, 1, 3"); E("v_xor_b32 v11, v11, v1"); E("v_lshlrev_b32 v11, 4, v11")
    E("s_lshl_b32 s36, s28, 13")
    E("v_lshl_add_u32 v11, v3, 7, v11"); E("v_add_u32 v4, s36, v11")
    for u in range(1,4): E(f"v_xor_b32 v{vxb[u]}, {32*u}, v4")
    for u in range(4): E(f"v_mov_b32 v{vx[u]}, v{vxb[u]}")
    E(f"v_lshlrev_b32 v{vw}, 4, v2"); E(f"v_add_u32 v{vw}, {cfg.WBASE}, v{vw}")
    E(f"v_lshlrev_b32 v10, 4, v0"); E(f"v_add_u32 v10, {cfg.ABASE}, v10")
    E("s_mov_b32 s38, 0")
    E.waitvm("A")
    E("v_lshlrev_b32 v16, 16, v12"); E("v_and_b32 v17, 0xffff0000, v12"); E("v_lshlrev_b32 v18, 16, v13"); E("v_and_b32 v19, 0xffff0000, v13")
    if not cfg.cvt:
        for i in range(4): E(f"v_mul_f32 v{16+i}, 0x58000000, v{16+i}")
    E("ds_write_b128 v10, v[16:19]")
    E("s_lshl_b32 s36, s28, 6"); E("v_lshl_add_u32 v11, v1, 2, s36"); E(f"v_mul_u32_u24 v11, {OROW}, v11")
    E(f"v_lshl_add_u32 v{vo}, v3, 3, v11")
    if cfg.prio: E(f"s_setprio {cfg.prio}")
    stamp(E,cfg,1)
    if cfg.stamps==2: E("s_mov_b32 s75, 0")
    E("s_waitcnt lgkmcnt(0)")
    E("s_barrier")
    E("s_barrier")
    stamp(E,cfg,2)
    def reads(j,u):
        s=u%2
        xr=lambda b: f"ds_read_b128 v[{XF[s]+4*b}:{XF[s]+4*b+3}], v{vx[u]} offset:{b*4096}"
        wr=lambda jj: f"ds_read_b128 v[{WF[s]+4*jj}:{WF[s]+4*jj+3}], v{vw} offset:{(j%2)*WSLOT+(u*4+jj)*1024}"
        return [xr(0)]+[wr(jj) for jj in range(4)]+[xr(1)]
    def mfma(a,xa,wa,first=False):
        c = "0" if first else f"v[{a}:{a+15}]"
        E(f"v_mfma_f32_32x32x16_bf16 v[{a}:{a+15}], v[{xa}:{xa+3}], v[{wa}:{wa+3}], {c}")
    def mfmas(s,first,inter,per=1,pend=0,bar=99):
        inter=list(inter); issued=0; g=0
        need=[2,3,4,5,6,6,6,6]
        for b in range(2):
            for jj in (range(4) if (b==0 or not cfg.snake) else range(3,-1,-1)):
                if pend and g<5: E(f"s_waitcnt lgkmcnt({pend-need[g]+issued})")
                mfma(acc(b,jj),XF[s]+4*b,WF[s]+4*jj,first)
                for _ in range(per):
                    if inter:
                        x=inter.pop(0); E(x)
                        if x.startswith("ds_read"): issued+=1
                g+=1
                if g==bar:
                    assert not any(x.startswith("ds_read") for x in inter)
                    E("s_waitcnt lgkmcnt(0)"); E("s_barrier")
        for x in inter: E(x)
    def bump():
        return ring_advance(cfg,38)+[f"v_add_u32 v{vx[u]}, s38, v{vxb[u]}" for u in range(4)]
    def pstamp():
        if cfg.stamps==2:
            E("s_sub_u32 s72, s72, s60"); E("v_mov_b32 v251, s72"); E("v_cmp_eq_u32 vcc, s75, v2"); E("s_add_u32 s75, s75, 1"); E("s_nop 0"); E("v_cndmask_b32 v250, v250, v251, vcc")
    def phase(j):
        if cfg.stamps==2: E("s_memtime s[72:73]")
        cw = cfg.cw and cfg.stamps!=2
        if j==0:
            for r in reads(0,0): E(r)
        else: mfmas(1,False,reads(j,0),cfg.rd2)
        if not cw: E("s_waitcnt lgkmcnt(0)")
        pstamp()
        mfmas(0,j==0,reads(j,1),cfg.rd2,6 if cw else 0)
        if not cw: E("s_waitcnt lgkmcnt(0)")
        mfmas(1,False,reads(j,2),cfg.rd2,6 if cw else 0)
        if not cw: E("s_waitcnt lgkmcnt(0)")
        early = cfg.bpos<8 and not cfg.bw
        mfmas(0,False,reads(j,3)+bump(),2,6 if cw else 0, cfg.bpos if early else 99)
        if early: return
        E("s_waitcnt lgkmcnt(0)")
        if cfg.bw: E("s_memtime s[88:89]")
        if j<NST-1: E("s_barrier")
        if cfg.bw:
            E("s_memtime s[90:91]"); E("s_waitcnt lgkmcnt(0)"); E("s_sub_u32 s90, s90, s88")
            E("s_add_u32 s86, s86, s90")
    def store_ops(b):
        ops=[]
        for r in range(16):
            t=T+2*r
            if cfg.off:
                import struct
                h=struct.unpack("<I",struct.pack("<f",float(cfg.off)))[0]
                for jj in range(4): ops.append(f"v_add_f32 v{acc(b,jj)+r}, {h:#x}, v{acc(b,jj)+r}")
            ops.append(f"v_cvt_pk_bf16_f32 v{t}, v{acc(b,0)+r}, v{acc(b,1)+r}")
            ops.append(f"v_cvt_pk_bf16_f32 v{t+1}, v{acc(b,2)+r}, v{acc(b,3)+r}")
            row=32*b+8*(r>>2)+(r&3)
            ops.append(f"s_mov_b32 s36, {row*OROW}")
            ops.append(f"buffer_store_dwordx2 v[{t}:{t+1}], v{vo}, s[24:27], s36 offen {cfg.stpol if (b==0 or cfg.stpol2 is None) else cfg.stpol2}")
        return ops
    phase(0)
    last = NST-2 if cfg.tail else NST
    if cfg.loop:
        n=(last-1)//2
        loopify(E,phase,1,n,2,"L_c_loop")
        for j in range(1+2*n,last): phase(j)
    else:
        for j in range(1,last): phase(j)
    if not cfg.tail:
        mfmas(1,False,[])
        stamp(E,cfg,3)
        E("s_nop 7"); E("s_nop 7")
        for b in range(2):
            for x in store_ops(b): E(x)
    else:
        seq=[(14,0,u) for u in range(4)]+[(14,1,0)]+[(15,0,u) for u in range(4)]+[(14,1,u) for u in range(1,4)]+[(15,1,u) for u in range(4)]
        if cfg.tb==4: seq=[(14,0,u) for u in range(4)]+[(15,0,u) for u in range(4)]+[(14,1,u) for u in range(4)]+[(15,1,u) for u in range(4)]
        if cfg.tb==6: seq=[(14,0,u) for u in range(4)]+[(14,1,0),(14,1,1)]+[(15,0,u) for u in range(4)]+[(14,1,u) for u in range(2,4)]+[(15,1,u) for u in range(4)]
        first15=[i for i,h in enumerate(seq) if h[0]==15][0]
        doneb0=max(i for i,h in enumerate(seq) if h[1]==0)
        SX=(XF[0],196,XF[1]); SW=(WF[0],200,WF[1])
        s15=(15%cfg.NX)*XSLOT
        def hreads(i):
            (st,b,u)=seq[i]; k=i%3
            xa = vx[u] if st==14 else vxb[u]
            R=[f"ds_read_b128 v[{SX[k]}:{SX[k]+3}], v{xa} offset:{b*4096+(0 if st==14 else s15)}"]
            R+=[f"ds_read_b128 v[{SW[k]+4*jj}:{SW[k]+4*jj+3}], v{vw} offset:{(st%2)*WSLOT+(u*4+jj)*1024}" for jj in range(4)]
            return R
        assert s15+4096+0<65536
        if cfg.stamps==2: E("s_memtime s[72:73]")
        mfmas(1,False,hreads(0)+hreads(1),2)
        so=[]
        for i,(st,b,u) in enumerate(seq):
            k=i%3
            if i+2==first15:
                E("s_waitcnt lgkmcnt(5)"); E("s_barrier")
            elif i+1<len(seq): E(f"s_waitcnt lgkmcnt(5)")
            else: E("s_waitcnt lgkmcnt(0)")
            if i==0: pstamp()
            nxt=hreads(i+2) if i+2<len(seq) else []
            if i==doneb0+2: so=store_ops(0)
            left=len(seq)-i
            for jj in range(4):
                mfma(acc(b,jj),SX[k],SW[k]+4*jj)
                for _ in range(2 if jj==0 else 1):
                    if nxt: E(nxt.pop(0))
                if so:
                    slots=(left*4-jj)
                    n=-(-len(so)//slots)
                    for _ in range(n):
                        if so: E(so.pop(0))
            assert not nxt
        assert not so
        stamp(E,cfg,3)
        E("s_nop 7"); E("s_nop 7")
        for x in store_ops(1): E(x)
    if cfg.stamps or cfg.enc: stamp(E,cfg,4); E("s_waitcnt vmcnt(0)")
    finish(E,cfg,True)

def ablate(L,cfg):
    R=[]
    if 'H' in cfg.abl or 'G' in cfg.abl:
        idx=[i for i,x in enumerate(L) if x.startswith("buffer_store") and "s[24:27]" in x]
        drop=set(idx[-8:] if 'H' in cfg.abl else idx[-16:])
        L=[x for i,x in enumerate(L) if i not in drop]
    for x in L:
        if 'V' in cfg.abl and (x.startswith("v_fma_f32") or (x.startswith("v_mul_f32") and "0x" not in x and int(x.split()[1][1:-1])>=64) or (x.startswith("v_cvt_pk") and int(x.split()[1][1:-1])<64)): continue
        if 'X' in cfg.abl and x.endswith(" lds"): continue
        if 'W' in cfg.abl and x.startswith("buffer_load") and "s[20:23]" in x: continue
        if 'M' in cfg.abl and x.startswith("v_mfma"): continue
        if 'D' in cfg.abl and x.startswith("ds_write") and "v10," not in x: continue
        if 'R' in cfg.abl and x.startswith("ds_read") and int(x.split()[1][2:].split(":")[0])>=128: continue
        if 'S' in cfg.abl and x.startswith("buffer_store") and "s[24:27]" in x: continue
        R.append(x)
    return R
def generate(cfg):
    out=[header(cfg)]
    E=Emit(); common_prologue(E,cfg); out+=E.L
    E=Emit(); producer(E,cfg); out+=E.L
    E=Emit(); consumer(E,cfg); out+=E.L
    out.append("L_exit:"); out.append("s_endpgm"); out.append("L_codeend:")
    return "\n".join(ablate(out,cfg))+footer(cfg)

if __name__=="__main__":
    kw={}
    for a in sys.argv[2:]:
        k,v=a.split("="); kw[k]=v.replace("_"," ") if k in ("stpol","abl","wpos","enc","gv","stpol2","off") else int(v)
    open(sys.argv[1],"w").write(generate(Cfg(**kw)))
```

```python
import sys
KN = "standalone__weight_only_int_omniquant__prompt_kernel"
M, K, N = 2048, 1024, 3584
QROW = N*4
OROW = N*2
NST = 16
XSLOT = 32768
WSLOT = 16384
NWG = 224

class Cfg:
    def __init__(s, **kw):
        s.NX = 3; s.XL = 2
        s.RW = 2; s.LW = 1; s.U = 2
        s.stamps = 0; s.prio = 1; s.pprio = 2; s.codepf = 1; s.loop = 1
        s.spin = 0; s.stpol = 'sc1'; s.abl = ''
        s.g = 1; s.g2 = 2; s.start = 0; s.xrot = 8; s.dfirst = 2; s.xfirst = 0; s.tailv = 6
        s.wpos = '60 66 73 80'; s.snake = 1; s.tail = 1; s.tb = 5; s.cvt = 0; s.enc = ''; s.tlb = 0; s.pf = 0; s.pf0 = 0; s.pfw = 0; s.cw = 1; s.rd2 = 1; s.bw = 0; s.gv = ''; s.stpol2 = None; s.pre = 0; s.szf = 0; s.diag = 0; s.bpos = 8; s.off = ''; s.cmode = 0; s.helper = 0; s.hstart = 3; s.hend = 8; s.hx = 0
        s.__dict__.update(kw)
        s.WBASE = s.NX*XSLOT
        s.ABASE = s.WBASE + 2*WSLOT
        s.LDS = s.ABASE + 4096

def order(o, hi, cfg):
    if cfg.g==0: return list(range(NST))
    def key(s):
        if s%4==o and s>=cfg.start:
            g = cfg.g2 if ((s>>2)&1)==hi else cfg.g
            if cfg.gv:
                t=cfg.gv.split()[s>>2]; g=int(t[1] if ((s>>2)&1)==hi else t[0])
                if g==0: return s
            return s-g-0.5
        return s
    return sorted(range(NST), key=key)
def table(o,hi,cfg):
    v=0
    for i,s in enumerate(order(o,hi,cfg)): v|=s<<(4*i)
    return v

class Emit:
    def __init__(s): s.L=[]; s.vm=[]
    def __call__(s, x): s.L.append(x)
    def vmem(s, x, tag): s.L.append(x); s.vm.append(tag)
    def waitvm(s, tag, extra=""):
        idx=[i for i,t in enumerate(s.vm) if t==tag]
        n=(len(s.vm)-1-idx[-1]) if idx else 63
        n=min(n,63)
        s.L.append(f"s_waitcnt vmcnt({n}){extra}")
        return n

def stamp(E, cfg, i):
    if cfg.stamps or cfg.enc: E(f"s_memtime s[{60+2*i}:{61+2*i}]")

def header(cfg):
    return f"""; Fused int4-weight dequant + bf16 GEMM: out[2048,3584] = (x*act) @ ((qw-z)*s); one 256x128 tile per workgroup.
; Waves 0-3 multiply (v_mfma 32x32x16, operands from LDS); waves 4-7 stream x into LDS (LDS-DMA) and turn qw into bf16.
; @launch grid=({256 if cfg.helper else NWG},1,1) block=(512,1,1) lds={cfg.LDS}
.amdgcn_target "amdgcn-amd-amdhsa--gfx950"
.text
.globl {KN}
.p2align 8
.type {KN},@function
{KN}:
"""
def footer(cfg):
    return f"""
.section .rodata,"a"
.p2align 6
.amdhsa_kernel {KN}
  .amdhsa_next_free_vgpr 256
  .amdhsa_next_free_sgpr 96
  .amdhsa_accum_offset 256
  .amdhsa_group_segment_fixed_size 0
  .amdhsa_kernarg_size 64
  .amdhsa_user_sgpr_count 2
  .amdhsa_user_sgpr_kernarg_segment_ptr 1
  .amdhsa_system_sgpr_workgroup_id_x 1
  .amdhsa_float_denorm_mode_32 3
.end_amdhsa_kernel
"""
def common_prologue(E, cfg):
    if cfg.spin or cfg.enc: E("s_memrealtime s[80:81]")
    if cfg.stamps: E("s_memrealtime s[76:77]")
    stamp(E,cfg,0)
    if cfg.bw: E("s_mov_b32 s86, 0")
    E(f"s_cmp_ge_u32 s2, {256 if cfg.helper else NWG}"); E("s_cbranch_scc1 L_exit")
    E("s_load_dwordx4 s[4:7], s[0:1], 0")
    E("s_load_dwordx4 s[12:15], s[0:1], 32")
    E("s_load_dwordx4 s[8:11], s[0:1], 16")
    if cfg.stamps: E("s_load_dwordx2 s[58:59], s[0:1], 56")
    E("v_lshrrev_b32 v1, 6, v0")
    E("v_and_b32 v2, 63, v0")
    E("v_readfirstlane_b32 s28, v1")
    E("s_and_b32 s45, s2, 7")
    E("s_lshr_b32 s47, s2, 3")
    E("s_lshr_b32 s30, s47, 2")
    E("s_lshr_b32 s31, s45, 1"); E("s_mul_i32 s31, s31, 7"); E("s_add_u32 s31, s30, s31")
    E("s_and_b32 s29, s47, 3")
    E("v_and_b32 v3, 31, v0")
    E("v_bfe_u32 v1, v0, 5, 1")
    if cfg.helper: E(f"s_cmp_ge_u32 s2, {NWG}"); E("s_cbranch_scc1 L_helper")
    E("s_cmp_ge_u32 s28, 4")
    E("s_cbranch_scc0 L_consumer")

def bm_full(E):
    E("s_and_b32 s42, s2, 1"); E("s_lshl_b32 s42, s42, 2"); E("s_add_u32 s29, s29, s42")

def build_srd(E, base, ptr, off, size):
    E(f"s_add_u32 s{base}, s{ptr}, s{off}"); E(f"s_addc_u32 s{base+1}, s{ptr+1}, 0")
    E(f"s_sub_u32 s{base+2}, {size}, s{off}"); E(f"s_mov_b32 s{base+3}, 0x20000")

def nextstage(E, cfg, pair, dst):
    if cfg.xrot:
        E(f"s_add_u32 s{dst}, s{pair}, s45"); E(f"s_and_b32 s{dst}, s{dst}, 15")
    else: E(f"s_and_b32 s{dst}, s{pair}, 15")
    E(f"s_lshr_b64 s[{pair}:{pair+1}], s[{pair}:{pair+1}], 4")

def ring_advance(cfg, r):
    return [f"s_add_u32 s{r}, s{r}, {XSLOT}", f"s_cmp_eq_u32 s{r}, {cfg.NX*XSLOT}", f"s_cselect_b32 s{r}, 0, s{r}"]

def loopify(E, phase, j0, n, U, lab):
    E(f"s_mov_b32 s44, {n}")
    bodies=[]
    for it in range(n):
        mark=len(E.L)
        for j in range(j0+it*U,j0+(it+1)*U): phase(j)
        bodies.append(E.L[mark:]); del E.L[mark:]
    assert len(set(len(b) for b in bodies))==1
    merged=[]
    for tup in zip(*bodies):
        if len(set(tup))==1: merged.append(tup[0])
        else:
            assert all(x.startswith("s_waitcnt vmcnt") for x in tup), tup
            merged.append(min(tup,key=lambda x:int(x.split("(")[1].split(")")[0])))
    E(".p2align 6"); E(lab+":")
    E.L.extend(merged)
    E("s_sub_u32 s44, s44, 1"); E("s_cmp_lg_u32 s44, 0"); E(f"s_cbranch_scc1 {lab}")

def producer(E, cfg):
    RAW0 = 64
    OUT, AV, SV, ZV = 32, (48,56), 16, 20
    VQ, VX, vw, va = 200, 208, 7, 9
    def raw(st,e,j): return RAW0 + (st%cfg.RW)*32 + e*4 + j
    tabs=[table(o&3,o>>2,cfg) for o in range(8)]
    first=0
    for o in range(8): first|=(tabs[o]&15)<<(4*o)
    E("s_sub_u32 s31, s28, 4") if False else None
    if cfg.cmode==0:
        E("s_add_u32 s46, s29, s30"); E("s_and_b32 s46, s46, 3"); E("s_and_b32 s42, s30, 4"); E("s_or_b32 s46, s46, s42")
    elif cfg.cmode in (1,4):
        E("s_lshr_b32 s46, s30, 1"); E("s_add_u32 s46, s46, s29"); E("s_and_b32 s46, s46, 3")
        if cfg.cmode==4: E("s_and_b32 s42, s30, 1"); E("s_lshl_b32 s42, s42, 2"); E("s_or_b32 s46, s46, s42")
    elif cfg.cmode in (2,5):
        E("s_mov_b32 s46, s29")
        if cfg.cmode==5: E("s_and_b32 s42, s30, 1"); E("s_lshl_b32 s42, s42, 2"); E("s_or_b32 s46, s46, s42")
    elif cfg.cmode==3:
        E("s_lshr_b32 s46, s30, 2"); E("s_add_u32 s46, s46, s29"); E("s_and_b32 s46, s46, 3")
    assert cfg.xrot in (0,8) and cfg.XL==2
    E("s_lshl_b32 s42, s46, 2"); E(f"s_lshr_b32 s37, {first:#x}, s42")
    E("s_and_b32 s37, s37, 15")
    if cfg.xrot:
        E("s_and_b32 s45, s2, 1"); E("s_lshl_b32 s45, s45, 3"); E("s_xor_b32 s37, s37, s45")
    E("s_lshl_b32 s33, s31, 9")
    E("s_lshl_b32 s35, s31, 8")
    E("s_sub_u32 s31, s28, 4")
    E("s_lshl_b32 s36, s31, 4")
    E("v_lshl_add_u32 v10, v1, 3, s36")
    E(f"v_mul_u32_u24 v10, {QROW}, v10")
    E(f"v_lshl_add_u32 v{VQ}, v3, 4, v10")
    for e in range(1,8): E(f"v_add_u32 v{VQ+e}, {e*QROW}, v{VQ}")
    E(f"s_mul_i32 s36, s37, {64*QROW}")
    E("s_waitcnt lgkmcnt(0)")
    stamp(E,cfg,1)
    build_srd(E,20,6,33,K*QROW)
    def advance():
        if cfg.LW==2: E("s_lshl_b32 s40, s37, 7")
        E("s_and_b32 s37, s52, 15"); E("s_lshr_b64 s[52:53], s[52:53], 4")
        E(f"s_mul_i32 s36, s37, {64*QROW}")
        if cfg.LW==1: E("s_lshl_b32 s40, s37, 7")
    def ring():
        E(f"s_add_u32 s43, s43, {XSLOT}"); E("s_cmp_eq_u32 s43, s38"); E("s_cselect_b32 s43, s39, s43")
    def wload(st,e):
        r=raw(st,e,0)
        E.vmem(f"buffer_load_dwordx4 v[{r}:{r+3}], v{VQ+e}, s[20:23], s36 offen", ("W",st))
    def xdma(st,i):
        E.vmem(f"buffer_load_dwordx4 v{VX+i}, s[16:19], s40 offen offset:{(i%4)*1024} lds", ("X",st))
    M0A="s_mov_b32 m0, s43"; M0B="s_add_u32 m0, s43, 4096"
    def aread(st):
        a=AV[st%2]
        E(f"v_lshl_add_u32 v12, s40, 1, v{va}")
        E(f"ds_read_b128 v[{a}:{a+3}], v12"); E(f"ds_read_b128 v[{a+4}:{a+7}], v12 offset:16")
    if cfg.diag==2:
        wload(0,0); E("s_waitcnt vmcnt(0)"); stamp(E,cfg,2)
    for e in range(8): wload(0,e)
    if cfg.diag==1: E("s_waitcnt vmcnt(0)"); stamp(E,cfg,2)
    E("v_lshl_add_u32 v10, v3, 3, s35")
    E.vmem("global_load_dwordx2 v[24:25], v10, s[8:9]", "SZ")
    E.vmem("global_load_dwordx2 v[26:27], v10, s[10:11]", "SZ")
    if cfg.diag: E("s_waitcnt vmcnt(0)"); stamp(E,cfg,3)
    bm_full(E); E("s_lshl_b32 s32, s29, 19")
    build_srd(E,16,4,32,M*K*2)
    E("v_lshrrev_b32 v10, 3, v2"); E("v_and_b32 v12, 7, v2"); E("v_lshrrev_b32 v13, 4, v2"); E("v_xor_b32 v12, v12, v13")
    E("v_lshlrev_b32 v12, 4, v12"); E(f"v_lshl_add_u32 v{VX}, v10, 11, v12"); E(f"v_xor_b32 v{VX+1}, 64, v{VX}")
    for i in range(7,1,-1): E(f"v_add_u32 v{VX+i}, {i*16384-(i%4)*1024}, v{VX+i%2}")
    E(f"v_add_u32 v{VX+1}, {16384-1024}, v{VX+1}")
    E("s_lshl_b32 s39, s31, 13"); E("s_lshl_b32 s41, s31, 17"); E(f"s_add_u32 s38, s39, {cfg.NX*XSLOT}"); E("s_mov_b32 s43, s39")
    for i in range(8): E(f"v_add_u32 v{VX+i}, s41, v{VX+i}")
    E("s_lshl_b32 s40, s37, 7")
    for i in range(8):
        if i%4==0: E(M0A if i==0 else M0B); E("s_nop 0")
        xdma(0,i)
    if cfg.diag: E("s_waitcnt vmcnt(0)"); stamp(E,cfg,4)
    ring(); E(M0A)
    E(f"s_mov_b32 s52, {tabs[0]&0xffffffff:#x}"); E(f"s_mov_b32 s53, {tabs[0]>>32:#x}")
    for o in range(1,8):
        if tabs[o]!=tabs[0]:
            E(f"s_cmp_eq_u32 s46, {o}"); E(f"s_cselect_b32 s52, {tabs[o]&0xffffffff:#x}, s52"); E(f"s_cselect_b32 s53, {tabs[o]>>32:#x}, s53")
    if cfg.xrot:
        E("s_mul_i32 s45, s45, 0x11111111"); E("s_xor_b32 s52, s52, s45"); E("s_xor_b32 s53, s53, s45")
    E("s_lshr_b64 s[52:53], s[52:53], 4")
    E("s_lshl_b32 s42, s31, 12"); E(f"s_add_u32 s42, s42, {cfg.WBASE}")
    E(f"v_lshl_add_u32 v{vw}, v2, 4, s42")
    E("s_lshl_b32 s42, s31, 6"); E(f"s_add_u32 s42, s42, {cfg.ABASE}")
    E(f"v_lshl_add_u32 v{va}, v1, 5, s42")
    E("s_mov_b32 s47, s40")
    if cfg.LW==2:
        E("s_and_b32 s37, s52, 15"); E("s_lshr_b64 s[52:53], s[52:53], 4"); E(f"s_mul_i32 s36, s37, {64*QROW}")
        for e in range(8): wload(1,e)
    advance()
    if cfg.LW==1:
        for e in range(cfg.pre): wload(1,e)
    if not cfg.diag: stamp(E,cfg,2)
    E("s_barrier")
    if not cfg.diag: stamp(E,cfg,3)
    E(f"v_lshl_add_u32 v12, s47, 1, v{va}")
    E(f"ds_read_b128 v[{AV[0]}:{AV[0]+3}], v12"); E(f"ds_read_b128 v[{AV[0]+4}:{AV[0]+7}], v12 offset:16")
    E.waitvm("SZ")
    for j in range(4):
        for (src,dst) in ((24,SV),(26,ZV)):
            if j%2==0: E(f"v_lshlrev_b32 v{dst+j}, 16, v{src+j//2}")
            else: E(f"v_and_b32 v{dst+j}, 0xffff0000, v{src+j//2}")
    for j in range(4):
        E(f"v_mul_f32 v{ZV+j}, v{ZV+j}, v{SV+j}")
        if cfg.cvt:
            E(f"v_mul_f32 v{SV+j}, 1.0, v{SV+j}")
        else:
            E(f"v_mul_f32 v{SV+j}, 0x71800000, v{SV+j}")
            E(f"v_mul_f32 v{ZV+j}, 0x27000000, v{ZV+j}")
    if cfg.pprio: E(f"s_setprio {cfg.pprio}")
    def phase(j):
        st=j+1
        xs=j+cfg.XL; ws=st+cfg.LW
        a=AV[st%2]
        xi=[(lambda i=i: (xdma(xs,i), (E(M0B) if i==3 else None))) for i in range(8)] if xs<NST else []
        wi=[(lambda e=e: wload(ws,e)) for e in range(cfg.pre if (j==-1 and cfg.LW==1) else 0,8)] if ws<NST else []
        if cfg.xfirst==1: mem=xi+wi
        elif cfg.xfirst==0: mem=wi+xi
        else:
            mem=[]
            while xi or wi:
                if xi: mem.append(xi.pop(0))
                if wi: mem.append(wi.pop(0))
        for _ in range(cfg.dfirst if j>=0 else 0):
            if mem: mem.pop(0)()
        E.waitvm(("W",st), " lgkmcnt(0)")
        if j==-1 and not cfg.diag: stamp(E,cfg,4)
        if st+1<NST: aread(st+1)
        sl=(st%2)*WSLOT
        work=[]; wr=[]
        for jj in range(4):
            for half in range(2):
                rs=range(4*half,4*half+4)
                if cfg.cvt:
                    for e in rs: r=raw(st,e,jj); work.append(f"v_cvt_f32_i32 v{r}, v{r}")
                for e in rs: r=raw(st,e,jj); work.append(f"v_fma_f32 v{r}, v{r}, v{SV+jj}, -v{ZV+jj}")
                for e in rs: r=raw(st,e,jj); work.append(f"v_mul_f32 v{r}, v{r}, v{a+e}")
                for p in (2*half,2*half+1):
                    work.append(f"v_cvt_pk_bf16_f32 v{OUT+4*jj+p}, v{raw(st,2*p,jj)}, v{raw(st,2*p+1,jj)}")
            wr.append(f"ds_write_b128 v{vw}, v[{OUT+4*jj}:{OUT+4*jj+3}] offset:{sl+jj*1024}")
        per=len(work)//4
        pos=[int(x)*per//20 for x in cfg.wpos.split()] if (cfg.wpos and mem) else [per,2*per,3*per,4*per]
        for jj in (3,2,1,0):
            assert pos[jj]>=per*(jj+1)
            work.insert(pos[jj],wr[jj])
        nm=len(mem)-cfg.tailv if len(mem)>cfg.tailv else len(mem)
        nw=len(work); done=0
        for i,w in enumerate(work):
            E(w)
            while done<nm and (i+1)*(nm+1) >= (done+1)*nw: mem.pop(0)(); done+=1
        while mem: mem.pop(0)()
        if xs+1<NST: ring(); E(M0A)
        if ws+1<NST: advance()
        elif xs+1<NST: E("s_lshl_b32 s40, s37, 7")
        E.waitvm(("X",st), " lgkmcnt(0)")
        if cfg.bw: E("s_memtime s[88:89]")
        E("s_barrier")
        if cfg.bw:
            E("s_memtime s[90:91]"); E("s_waitcnt lgkmcnt(0)"); E("s_sub_u32 s90, s90, s88")
            E("s_add_u32 s86, s86, s90")
    U=cfg.U
    assert U%cfg.RW==0 and U%2==0
    last_full = min(NST-1-cfg.XL, NST-2-cfg.LW) - 1
    phase(-1)
    jn=0
    if cfg.loop:
        n=(last_full+1)//U
        if n>=2:
            loopify(E,phase,0,n,U,"L_p_loop"); jn=n*U
    for j in range(jn,NST-1): phase(j)
    finish(E,cfg,False)

def helper(E,cfg):
    E("L_helper:")
    E("s_sub_u32 s47, s47, 28")
    E("s_bfe_u32 s33, s2, 0x20001"); E("s_mul_i32 s33, s33, 3584")
    E("s_lshl_b32 s31, s47, 4"); E("v_lshrrev_b32 v6, 5, v0"); E("v_add_u32 v6, s31, v6"); E(f"v_mul_u32_u24 v6, {QROW}, v6")
    E("v_and_b32 v7, 31, v0"); E("v_lshl_add_u32 v6, v7, 6, v6")
    E("v_add_u32 v8, 2048, v6"); E("v_cmp_gt_u32 vcc, 24, v7"); E("s_and_b32 s45, s2, 1"); E("s_lshl_b32 s45, s45, 3"); E("v_cndmask_b32 v7, -1, v8, vcc")
    if not cfg.xrot: E("s_mov_b32 s45, 0")
    E("s_waitcnt lgkmcnt(0)")
    build_srd(E,20,6,33,K*QROW)
    r=0
    for s in range(cfg.hstart,cfg.hend):
        E(f"s_xor_b32 s40, s45, {s}"); E(f"s_mul_i32 s41, s40, {64*QROW}")
        E(f"buffer_load_dword v{16+r}, v6, s[20:23], s41 offen"); r+=1
        E(f"buffer_load_dword v{16+r}, v7, s[20:23], s41 offen"); r+=1
    E("s_endpgm")

def finish(E,cfg,cons):
    if cfg.enc:
        role,a,b=cfg.enc.split(":")
        if (role=="c")==cons:
            E("s_waitcnt vmcnt(0)"); stamp(E,cfg,5); E("s_memrealtime s[82:83]"); E("s_waitcnt lgkmcnt(0)")
            if a=="r": E("s_sub_u32 s84, s82, s80")
            else: E(f"s_sub_u32 s84, s{60+2*int(b)}, s{60+2*int(a)}"); E("s_lshr_b32 s84, s84, 3")
            E("s_add_u32 s84, s84, 4000")
            lab=f"L_enc{len(E.L)}"
            E(lab+":"); E("s_memrealtime s[82:83]"); E("s_waitcnt lgkmcnt(0)"); E("s_sub_u32 s82, s82, s80")
            E(f"s_cmp_lt_u32 s82, s84"); E(f"s_cbranch_scc1 {lab}")
    if cfg.spin:
        lab=f"L_spin{len(E.L)}"
        E("s_waitcnt vmcnt(0)")
        E(lab+":"); E("s_memrealtime s[82:83]"); E("s_waitcnt lgkmcnt(0)"); E("s_sub_u32 s82, s82, s80")
        E(f"s_cmp_lt_u32 s82, {cfg.spin}"); E(f"s_cbranch_scc1 {lab}")
    if cfg.stamps:
        stamp(E,cfg,5)
        E("s_memrealtime s[78:79]")
        E("s_waitcnt lgkmcnt(0)")
        if cfg.bw: E("s_add_u32 s62, s60, s86")
        E("s_mov_b32 s48, s58"); E("s_mov_b32 s49, s59"); E("s_mov_b32 s50, 0x1000000"); E("s_mov_b32 s51, 0x20000")
        E("s_lshl_b32 s52, s2, 3"); E("s_add_u32 s52, s52, s28"); E("s_lshl_b32 s52, s52, 5")
        E("v_mov_b32 v10, s76"); E("v_mov_b32 v11, s78")
        for i,r in enumerate((62,64,66,68,70)):
            E(f"s_sub_u32 s{r}, s{r}, s60"); E(f"v_mov_b32 v{12+i}, s{r}")
        E("s_getreg_b32 s53, hwreg(HW_REG_HW_ID)"); E("v_mov_b32 v17, s53")
        E("v_mov_b32 v9, s52")
        E("s_mov_b64 exec, 1")
        E("buffer_store_dwordx4 v[10:13], v9, s[48:51], 0 offen")
        E("buffer_store_dwordx4 v[14:17], v9, s[48:51], 0 offen offset:16")
        if cfg.stamps==2 and cons:
            E("s_mov_b64 exec, 0xffff"); E("s_lshl_b32 s52, s2, 3"); E("s_add_u32 s52, s52, s28"); E("s_lshl_b32 s52, s52, 6"); E("s_add_u32 s52, s52, 0x10000")
            E("v_and_b32 v9, 63, v0"); E("v_lshlrev_b32 v9, 2, v9"); E("v_add_u32 v9, s52, v9")
            E("buffer_store_dword v250, v9, s[48:51], 0 offen")
    E("s_endpgm")

def consumer(E,cfg):
    ACC=16; XF=(144,152); WF=(160,176)
    vxb=(4,5,6,7); vx=(192,193,194,195); vw=8; vo=9
    T=216
    def acc(b,j): return ACC+(b*4+j)*16
    E("L_consumer:")
    E("v_lshlrev_b32 v10, 3, v0")
    E("s_waitcnt lgkmcnt(0)")
    E.vmem("global_load_dwordx2 v[12:13], v10, s[12:13]","A")
    if cfg.codepf:
        E("s_getpc_b64 s[48:49]"); E("L_pc:")
        E(f"s_sub_u32 s48, s48, L_pc-{KN}"); E("s_subb_u32 s49, s49, 0")
        E(f"s_mov_b32 s50, L_codeend-{KN}"); E("s_mov_b32 s51, 0x20000")
        E("s_lshl_b32 s43, s47, 9"); E("v_lshlrev_b32 v11, 6, v0"); E("v_add_u32 v14, s43, v11")
        E("v_cmp_gt_u32 vcc, 8, v0"); E("s_nop 1"); E("v_cndmask_b32 v11, -1, v14, vcc")
        E.vmem("buffer_load_dword v14, v11, s[48:51], 0 offen","PF")
    if cfg.pf:
        E("s_cmp_ge_u32 s45, 2"); E("s_cbranch_scc1 L_nopf")
        E("s_mul_i32 s36, s45, 28"); E("s_add_u32 s36, s36, s47"); E("s_lshl_b32 s36, s36, 8")
        E("v_add_u32 v11, s36, v0"); E("v_mul_u32_u24 v14, 24967, v11"); E("v_lshrrev_b32 v14, 22, v14")
        E("v_mul_u32_u24 v15, 168, v14"); E("v_sub_u32 v15, v11, v15")
        E(f"v_mul_u32_u24 v11, {QROW}, v14"); E("v_lshl_add_u32 v11, v15, 6, v11")
        E("v_cmp_gt_u32 vcc, 64, v14"); E("s_mov_b32 s20, s6"); E("s_mov_b32 s21, s7"); E("v_cndmask_b32 v11, -1, v11, vcc")
        E(f"s_mov_b32 s22, {K*QROW}"); E("s_mov_b32 s23, 0x20000")
        for st in range(cfg.pf0,cfg.pf0+cfg.pf):
            E(f"s_mov_b32 s36, {st*64*QROW+3584}")
            E(f"buffer_load_dword v{20+st}, v11, s[20:23], s36 offen")
        if cfg.pfw: E("s_waitcnt vmcnt(0)")
        E("L_nopf:")
        E.vm.append("A")
    bm_full(E)
    E(f"s_mul_i32 s34, s29, {256*OROW}"); E("s_lshl_b32 s35, s31, 8"); E("s_add_u32 s34, s34, s35")
    build_srd(E,24,14,34,M*OROW)
    if cfg.tlb&1:
        E("s_lshl_b32 s33, s31, 9"); build_srd(E,20,6,33,K*QROW)
        E("v_lshlrev_b32 v11, 21, v0"); E("v_cmp_gt_u32 vcc, 8, v0"); E("s_nop 1"); E("v_cndmask_b32 v11, -1, v11, vcc")
        E.vmem("buffer_load_dword v15, v11, s[20:23], 0 offen","PF")
    if cfg.tlb&2:
        E(f"v_mul_u32_u24 v11, {63*OROW}, v2"); E(f"s_mul_i32 s36, s28, {64*OROW}"); E("v_add_u32 v11, s36, v11")
        E("v_cmp_gt_u32 vcc, 2, v2"); E("s_nop 1"); E("v_cndmask_b32 v11, -1, v11, vcc")
        E.vmem("buffer_load_dword v15, v11, s[24:27], 0 offen","PF")
    E("v_bfe_u32 v11, v3, 1, 3"); E("v_xor_b32 v11, v11, v1"); E("v_lshlrev_b32 v11, 4, v11")
    E("s_lshl_b32 s36, s28, 13")
    E("v_lshl_add_u32 v11, v3, 7, v11"); E("v_add_u32 v4, s36, v11")
    for u in range(1,4): E(f"v_xor_b32 v{vxb[u]}, {32*u}, v4")
    for u in range(4): E(f"v_mov_b32 v{vx[u]}, v{vxb[u]}")
    E(f"v_lshlrev_b32 v{vw}, 4, v2"); E(f"v_add_u32 v{vw}, {cfg.WBASE}, v{vw}")
    E(f"v_lshlrev_b32 v10, 4, v0"); E(f"v_add_u32 v10, {cfg.ABASE}, v10")
    E("s_mov_b32 s38, 0")
    E.waitvm("A")
    E("v_lshlrev_b32 v16, 16, v12"); E("v_and_b32 v17, 0xffff0000, v12"); E("v_lshlrev_b32 v18, 16, v13"); E("v_and_b32 v19, 0xffff0000, v13")
    if not cfg.cvt:
        for i in range(4): E(f"v_mul_f32 v{16+i}, 0x58000000, v{16+i}")
    E("ds_write_b128 v10, v[16:19]")
    E("s_lshl_b32 s36, s28, 6"); E("v_lshl_add_u32 v11, v1, 2, s36"); E(f"v_mul_u32_u24 v11, {OROW}, v11")
    E(f"v_lshl_add_u32 v{vo}, v3, 3, v11")
    if cfg.prio: E(f"s_setprio {cfg.prio}")
    stamp(E,cfg,1)
    if cfg.stamps==2: E("s_mov_b32 s75, 0")
    E("s_waitcnt lgkmcnt(0)")
    E("s_barrier")
    E("s_barrier")
    stamp(E,cfg,2)
    def reads(j,u):
        s=u%2
        xr=lambda b: f"ds_read_b128 v[{XF[s]+4*b}:{XF[s]+4*b+3}], v{vx[u]} offset:{b*4096}"
        wr=lambda jj: f"ds_read_b128 v[{WF[s]+4*jj}:{WF[s]+4*jj+3}], v{vw} offset:{(j%2)*WSLOT+(u*4+jj)*1024}"
        return [xr(0)]+[wr(jj) for jj in range(4)]+[xr(1)]
    def mfma(a,xa,wa,first=False):
        c = "0" if first else f"v[{a}:{a+15}]"
        E(f"v_mfma_f32_32x32x16_bf16 v[{a}:{a+15}], v[{xa}:{xa+3}], v[{wa}:{wa+3}], {c}")
    def mfmas(s,first,inter,per=1,pend=0,bar=99):
        inter=list(inter); issued=0; g=0
        need=[2,3,4,5,6,6,6,6]
        for b in range(2):
            for jj in (range(4) if (b==0 or not cfg.snake) else range(3,-1,-1)):
                if pend and g<5: E(f"s_waitcnt lgkmcnt({pend-need[g]+issued})")
                mfma(acc(b,jj),XF[s]+4*b,WF[s]+4*jj,first)
                for _ in range(per):
                    if inter:
                        x=inter.pop(0); E(x)
                        if x.startswith("ds_read"): issued+=1
                g+=1
                if g==bar:
                    assert not any(x.startswith("ds_read") for x in inter)
                    E("s_waitcnt lgkmcnt(0)"); E("s_barrier")
        for x in inter: E(x)
    def bump():
        return ring_advance(cfg,38)+[f"v_add_u32 v{vx[u]}, s38, v{vxb[u]}" for u in range(4)]
    def pstamp():
        if cfg.stamps==2:
            E("s_sub_u32 s72, s72, s60"); E("v_mov_b32 v251, s72"); E("v_cmp_eq_u32 vcc, s75, v2"); E("s_add_u32 s75, s75, 1"); E("s_nop 0"); E("v_cndmask_b32 v250, v250, v251, vcc")
    def phase(j):
        if cfg.stamps==2: E("s_memtime s[72:73]")
        cw = cfg.cw and cfg.stamps!=2
        if j==0:
            for r in reads(0,0): E(r)
        else: mfmas(1,False,reads(j,0),cfg.rd2)
        if not cw: E("s_waitcnt lgkmcnt(0)")
        pstamp()
        mfmas(0,j==0,reads(j,1),cfg.rd2,6 if cw else 0)
        if not cw: E("s_waitcnt lgkmcnt(0)")
        mfmas(1,False,reads(j,2),cfg.rd2,6 if cw else 0)
        if not cw: E("s_waitcnt lgkmcnt(0)")
        early = cfg.bpos<8 and not cfg.bw
        mfmas(0,False,reads(j,3)+bump(),2,6 if cw else 0, cfg.bpos if early else 99)
        if early: return
        E("s_waitcnt lgkmcnt(0)")
        if cfg.bw: E("s_memtime s[88:89]")
        if j<NST-1: E("s_barrier")
        if cfg.bw:
            E("s_memtime s[90:91]"); E("s_waitcnt lgkmcnt(0)"); E("s_sub_u32 s90, s90, s88")
            E("s_add_u32 s86, s86, s90")
    def store_ops(b):
        ops=[]
        for r in range(16):
            t=T+2*r
            if cfg.off:
                import struct
                h=struct.unpack("<I",struct.pack("<f",float(cfg.off)))[0]
                for jj in range(4): ops.append(f"v_add_f32 v{acc(b,jj)+r}, {h:#x}, v{acc(b,jj)+r}")
            ops.append(f"v_cvt_pk_bf16_f32 v{t}, v{acc(b,0)+r}, v{acc(b,1)+r}")
            ops.append(f"v_cvt_pk_bf16_f32 v{t+1}, v{acc(b,2)+r}, v{acc(b,3)+r}")
            row=32*b+8*(r>>2)+(r&3)
            ops.append(f"s_mov_b32 s36, {row*OROW}")
            ops.append(f"buffer_store_dwordx2 v[{t}:{t+1}], v{vo}, s[24:27], s36 offen {cfg.stpol if (b==0 or cfg.stpol2 is None) else cfg.stpol2}")
        return ops
    phase(0)
    last = NST-2 if cfg.tail else NST
    if cfg.loop:
        n=(last-1)//2
        loopify(E,phase,1,n,2,"L_c_loop")
        for j in range(1+2*n,last): phase(j)
    else:
        for j in range(1,last): phase(j)
    if not cfg.tail:
        mfmas(1,False,[])
        stamp(E,cfg,3)
        E("s_nop 7"); E("s_nop 7")
        for b in range(2):
            for x in store_ops(b): E(x)
    else:
        seq=[(14,0,u) for u in range(4)]+[(14,1,0)]+[(15,0,u) for u in range(4)]+[(14,1,u) for u in range(1,4)]+[(15,1,u) for u in range(4)]
        if cfg.tb==4: seq=[(14,0,u) for u in range(4)]+[(15,0,u) for u in range(4)]+[(14,1,u) for u in range(4)]+[(15,1,u) for u in range(4)]
        if cfg.tb==6: seq=[(14,0,u) for u in range(4)]+[(14,1,0),(14,1,1)]+[(15,0,u) for u in range(4)]+[(14,1,u) for u in range(2,4)]+[(15,1,u) for u in range(4)]
        first15=[i for i,h in enumerate(seq) if h[0]==15][0]
        doneb0=max(i for i,h in enumerate(seq) if h[1]==0)
        SX=(XF[0],196,XF[1]); SW=(WF[0],200,WF[1])
        s15=(15%cfg.NX)*XSLOT
        def hreads(i):
            (st,b,u)=seq[i]; k=i%3
            xa = vx[u] if st==14 else vxb[u]
            R=[f"ds_read_b128 v[{SX[k]}:{SX[k]+3}], v{xa} offset:{b*4096+(0 if st==14 else s15)}"]
            R+=[f"ds_read_b128 v[{SW[k]+4*jj}:{SW[k]+4*jj+3}], v{vw} offset:{(st%2)*WSLOT+(u*4+jj)*1024}" for jj in range(4)]
            return R
        assert s15+4096+0<65536
        if cfg.stamps==2: E("s_memtime s[72:73]")
        mfmas(1,False,hreads(0)+hreads(1),2)
        so=[]
        for i,(st,b,u) in enumerate(seq):
            k=i%3
            if i+2==first15:
                E("s_waitcnt lgkmcnt(5)"); E("s_barrier")
            elif i+1<len(seq): E(f"s_waitcnt lgkmcnt(5)")
            else: E("s_waitcnt lgkmcnt(0)")
            if i==0: pstamp()
            nxt=hreads(i+2) if i+2<len(seq) else []
            if i==doneb0+2: so=store_ops(0)
            left=len(seq)-i
            for jj in range(4):
                mfma(acc(b,jj),SX[k],SW[k]+4*jj)
                for _ in range(2 if jj==0 else 1):
                    if nxt: E(nxt.pop(0))
                if so:
                    slots=(left*4-jj)
                    n=-(-len(so)//slots)
                    for _ in range(n):
                        if so: E(so.pop(0))
            assert not nxt
        assert not so
        stamp(E,cfg,3)
        E("s_nop 7"); E("s_nop 7")
        for x in store_ops(1): E(x)
    if cfg.stamps or cfg.enc: stamp(E,cfg,4); E("s_waitcnt vmcnt(0)")
    finish(E,cfg,True)

def ablate(L,cfg):
    R=[]
    if 'H' in cfg.abl or 'G' in cfg.abl:
        idx=[i for i,x in enumerate(L) if x.startswith("buffer_store") and "s[24:27]" in x]
        drop=set(idx[-8:] if 'H' in cfg.abl else idx[-16:])
        L=[x for i,x in enumerate(L) if i not in drop]
    for x in L:
        if 'V' in cfg.abl and (x.startswith("v_fma_f32") or (x.startswith("v_mul_f32") and "0x" not in x and int(x.split()[1][1:-1])>=64) or (x.startswith("v_cvt_pk") and int(x.split()[1][1:-1])<64)): continue
        if 'X' in cfg.abl and x.endswith(" lds"): continue
        if 'W' in cfg.abl and x.startswith("buffer_load") and "s[20:23]" in x: continue
        if 'M' in cfg.abl and x.startswith("v_mfma"): continue
        if 'D' in cfg.abl and x.startswith("ds_write") and "v10," not in x: continue
        if 'R' in cfg.abl and x.startswith("ds_read") and int(x.split()[1][2:].split(":")[0])>=128: continue
        if 'S' in cfg.abl and x.startswith("buffer_store") and "s[24:27]" in x: continue
        R.append(x)
    return R
def generate(cfg):
    out=[header(cfg)]
    E=Emit(); common_prologue(E,cfg); out+=E.L
    E=Emit(); producer(E,cfg); out+=E.L
    if cfg.helper:
        E=Emit(); helper(E,cfg); out+=E.L
    E=Emit(); consumer(E,cfg); out+=E.L
    out.append("L_exit:"); out.append("s_endpgm"); out.append("L_codeend:")
    return "\n".join(ablate(out,cfg))+footer(cfg)

if __name__=="__main__":
    kw={}
    for a in sys.argv[2:]:
        k,v=a.split("="); kw[k]=v.replace("_"," ") if k in ("stpol","abl","wpos","enc","gv","stpol2","off") else int(v)
    open(sys.argv[1],"w").write(generate(Cfg(**kw)))
```

```python
import sys
KN = "standalone__weight_only_int_omniquant__prompt_kernel"
M, K, N = 2048, 1024, 3584
QROW = N*4
OROW = N*2
NST = 16
XSLOT = 32768
WSLOT = 16384
NWG = 224

class Cfg:
    def __init__(s, **kw):
        s.NX = 3; s.XL = 2
        s.RW = 2; s.LW = 1; s.U = 2
        s.stamps = 0; s.prio = 1; s.pprio = 2; s.codepf = 1; s.loop = 1
        s.spin = 0; s.stpol = 'sc1'; s.abl = ''
        s.g = 1; s.g2 = 2; s.start = 0; s.xrot = 0; s.dfirst = 2; s.xfirst = 0; s.tailv = 6
        s.wpos = '60 66 73 80'; s.snake = 1; s.tail = 1; s.tb = 5; s.cvt = 0; s.enc = ''; s.tlb = 0; s.pf = 0; s.pf0 = 0; s.pfw = 0; s.cw = 1; s.rd2 = 1; s.bw = 0; s.gv = ''; s.stpol2 = None; s.pre = 0; s.szf = 0; s.diag = 0; s.bpos = 8; s.off = ''; s.cmode = 0; s.helper = 0; s.hstart = 3; s.hend = 8; s.hx = 0; s.rho = ''
        s.__dict__.update(kw)
        if s.rho: s.xrot = 0
        s.WBASE = s.NX*XSLOT
        s.ABASE = s.WBASE + 2*WSLOT
        s.LDS = s.ABASE + 4096

def order(o, hi, cfg):
    if cfg.g==0: return list(range(NST))
    def key(s):
        if s%4==o and s>=cfg.start:
            g = cfg.g2 if ((s>>2)&1)==hi else cfg.g
            if cfg.gv:
                t=cfg.gv.split()[s>>2]; g=int(t[1] if ((s>>2)&1)==hi else t[0])
                if g==0: return s
            return s-g-0.5
        return s
    return sorted(range(NST), key=key)
def table(o,hi,cfg):
    v=0
    for i,s in enumerate(order(o,hi,cfg)): v|=s<<(4*i)
    return v

class Emit:
    def __init__(s): s.L=[]; s.vm=[]
    def __call__(s, x): s.L.append(x)
    def vmem(s, x, tag): s.L.append(x); s.vm.append(tag)
    def waitvm(s, tag, extra=""):
        idx=[i for i,t in enumerate(s.vm) if t==tag]
        n=(len(s.vm)-1-idx[-1]) if idx else 63
        n=min(n,63)
        s.L.append(f"s_waitcnt vmcnt({n}){extra}")
        return n

def stamp(E, cfg, i):
    if cfg.stamps or cfg.enc: E(f"s_memtime s[{60+2*i}:{61+2*i}]")

def header(cfg):
    return f"""; Fused int4-weight dequant + bf16 GEMM: out[2048,3584] = (x*act) @ ((qw-z)*s); one 256x128 tile per workgroup.
; Waves 0-3 multiply (v_mfma 32x32x16, operands from LDS); waves 4-7 stream x into LDS (LDS-DMA) and turn qw into bf16.
; @launch grid=({256 if cfg.helper else NWG},1,1) block=(512,1,1) lds={cfg.LDS}
.amdgcn_target "amdgcn-amd-amdhsa--gfx950"
.text
.globl {KN}
.p2align 8
.type {KN},@function
{KN}:
"""
def footer(cfg):
    return f"""
.section .rodata,"a"
.p2align 6
.amdhsa_kernel {KN}
  .amdhsa_next_free_vgpr 256
  .amdhsa_next_free_sgpr 96
  .amdhsa_accum_offset 256
  .amdhsa_group_segment_fixed_size 0
  .amdhsa_kernarg_size 64
  .amdhsa_user_sgpr_count 2
  .amdhsa_user_sgpr_kernarg_segment_ptr 1
  .amdhsa_system_sgpr_workgroup_id_x 1
  .amdhsa_float_denorm_mode_32 3
.end_amdhsa_kernel
"""
def common_prologue(E, cfg):
    if cfg.spin or cfg.enc: E("s_memrealtime s[80:81]")
    if cfg.stamps: E("s_memrealtime s[76:77]")
    stamp(E,cfg,0)
    if cfg.bw: E("s_mov_b32 s86, 0")
    E(f"s_cmp_ge_u32 s2, {256 if cfg.helper else NWG}"); E("s_cbranch_scc1 L_exit")
    E("s_load_dwordx4 s[4:7], s[0:1], 0")
    E("s_load_dwordx4 s[12:15], s[0:1], 32")
    E("s_load_dwordx4 s[8:11], s[0:1], 16")
    if cfg.stamps: E("s_load_dwordx2 s[58:59], s[0:1], 56")
    E("v_lshrrev_b32 v1, 6, v0")
    E("v_and_b32 v2, 63, v0")
    E("v_readfirstlane_b32 s28, v1")
    E("s_and_b32 s45, s2, 7")
    E("s_lshr_b32 s47, s2, 3")
    E("s_lshr_b32 s30, s47, 2")
    E("s_lshr_b32 s31, s45, 1"); E("s_mul_i32 s31, s31, 7"); E("s_add_u32 s31, s30, s31")
    E("s_and_b32 s29, s47, 3")
    E("v_and_b32 v3, 31, v0")
    E("v_bfe_u32 v1, v0, 5, 1")
    if cfg.helper: E(f"s_cmp_ge_u32 s2, {NWG}"); E("s_cbranch_scc1 L_helper")
    E("s_cmp_ge_u32 s28, 4")
    E("s_cbranch_scc0 L_consumer")

def bm_full(E):
    E("s_and_b32 s42, s2, 1"); E("s_lshl_b32 s42, s42, 2"); E("s_add_u32 s29, s29, s42")

def build_srd(E, base, ptr, off, size):
    E(f"s_add_u32 s{base}, s{ptr}, s{off}"); E(f"s_addc_u32 s{base+1}, s{ptr+1}, 0")
    E(f"s_sub_u32 s{base+2}, {size}, s{off}"); E(f"s_mov_b32 s{base+3}, 0x20000")

def nextstage(E, cfg, pair, dst):
    if cfg.xrot:
        E(f"s_add_u32 s{dst}, s{pair}, s45"); E(f"s_and_b32 s{dst}, s{dst}, 15")
    else: E(f"s_and_b32 s{dst}, s{pair}, 15")
    E(f"s_lshr_b64 s[{pair}:{pair+1}], s[{pair}:{pair+1}], 4")

def ring_advance(cfg, r):
    return [f"s_add_u32 s{r}, s{r}, {XSLOT}", f"s_cmp_eq_u32 s{r}, {cfg.NX*XSLOT}", f"s_cselect_b32 s{r}, 0, s{r}"]

def loopify(E, phase, j0, n, U, lab):
    E(f"s_mov_b32 s44, {n}")
    bodies=[]
    for it in range(n):
        mark=len(E.L)
        for j in range(j0+it*U,j0+(it+1)*U): phase(j)
        bodies.append(E.L[mark:]); del E.L[mark:]
    assert len(set(len(b) for b in bodies))==1
    merged=[]
    for tup in zip(*bodies):
        if len(set(tup))==1: merged.append(tup[0])
        else:
            assert all(x.startswith("s_waitcnt vmcnt") for x in tup), tup
            merged.append(min(tup,key=lambda x:int(x.split("(")[1].split(")")[0])))
    E(".p2align 6"); E(lab+":")
    E.L.extend(merged)
    E("s_sub_u32 s44, s44, 1"); E("s_cmp_lg_u32 s44, 0"); E(f"s_cbranch_scc1 {lab}")

def producer(E, cfg):
    RAW0 = 64
    OUT, AV, SV, ZV = 32, (48,56), 16, 20
    VQ, VX, vw, va = 200, 208, 7, 9
    def raw(st,e,j): return RAW0 + (st%cfg.RW)*32 + e*4 + j
    tabs=[table(o&3,o>>2,cfg) for o in range(8)]
    first=0
    for o in range(8): first|=(tabs[o]&15)<<(4*o)
    E("s_sub_u32 s31, s28, 4") if False else None
    if cfg.cmode==0:
        E("s_add_u32 s46, s29, s30"); E("s_and_b32 s46, s46, 3"); E("s_and_b32 s42, s30, 4"); E("s_or_b32 s46, s46, s42")
    elif cfg.cmode in (1,4):
        E("s_lshr_b32 s46, s30, 1"); E("s_add_u32 s46, s46, s29"); E("s_and_b32 s46, s46, 3")
        if cfg.cmode==4: E("s_and_b32 s42, s30, 1"); E("s_lshl_b32 s42, s42, 2"); E("s_or_b32 s46, s46, s42")
    elif cfg.cmode in (2,5):
        E("s_mov_b32 s46, s29")
        if cfg.cmode==5: E("s_and_b32 s42, s30, 1"); E("s_lshl_b32 s42, s42, 2"); E("s_or_b32 s46, s46, s42")
    elif cfg.cmode==3:
        E("s_lshr_b32 s46, s30, 2"); E("s_add_u32 s46, s46, s29"); E("s_and_b32 s46, s46, 3")
    assert cfg.xrot in (0,8) and cfg.XL==2
    if cfg.rho:
        rho=[int(c) for c in cfg.rho]
        rm=lambda t: sum(((rho[((t>>(4*i))&15)>>2]<<2)|((t>>(4*i))&3))<<(4*i) for i in range(16))
        tabs=tabs+[rm(t) for t in tabs]
        first2=0
        for o in range(8): first2|=(tabs[8+o]&15)<<(4*o)
        E("s_lshl_b32 s42, s46, 2")
        if first2!=first:
            E("s_bitcmp1_b32 s2, 0"); E(f"s_mov_b32 s37, {first:#x}"); E(f"s_cselect_b32 s37, {first2:#x}, s37"); E("s_lshr_b32 s37, s37, s42")
        else: E(f"s_lshr_b32 s37, {first:#x}, s42")
    else:
        E("s_lshl_b32 s42, s46, 2"); E(f"s_lshr_b32 s37, {first:#x}, s42")
    E("s_and_b32 s37, s37, 15")
    if cfg.xrot:
        E("s_and_b32 s45, s2, 1"); E("s_lshl_b32 s45, s45, 3"); E("s_xor_b32 s37, s37, s45")
    E("s_lshl_b32 s33, s31, 9")
    E("s_lshl_b32 s35, s31, 8")
    E("s_sub_u32 s31, s28, 4")
    E("s_lshl_b32 s36, s31, 4")
    E("v_lshl_add_u32 v10, v1, 3, s36")
    E(f"v_mul_u32_u24 v10, {QROW}, v10")
    E(f"v_lshl_add_u32 v{VQ}, v3, 4, v10")
    for e in range(1,8): E(f"v_add_u32 v{VQ+e}, {e*QROW}, v{VQ}")
    E(f"s_mul_i32 s36, s37, {64*QROW}")
    E("s_waitcnt lgkmcnt(0)")
    stamp(E,cfg,1)
    build_srd(E,20,6,33,K*QROW)
    def advance():
        if cfg.LW==2: E("s_lshl_b32 s40, s37, 7")
        E("s_and_b32 s37, s52, 15"); E("s_lshr_b64 s[52:53], s[52:53], 4")
        E(f"s_mul_i32 s36, s37, {64*QROW}")
        if cfg.LW==1: E("s_lshl_b32 s40, s37, 7")
    def ring():
        E(f"s_add_u32 s43, s43, {XSLOT}"); E("s_cmp_eq_u32 s43, s38"); E("s_cselect_b32 s43, s39, s43")
    def wload(st,e):
        r=raw(st,e,0)
        E.vmem(f"buffer_load_dwordx4 v[{r}:{r+3}], v{VQ+e}, s[20:23], s36 offen", ("W",st))
    def xdma(st,i):
        E.vmem(f"buffer_load_dwordx4 v{VX+i}, s[16:19], s40 offen offset:{(i%4)*1024} lds", ("X",st))
    M0A="s_mov_b32 m0, s43"; M0B="s_add_u32 m0, s43, 4096"
    def aread(st):
        a=AV[st%2]
        E(f"v_lshl_add_u32 v12, s40, 1, v{va}")
        E(f"ds_read_b128 v[{a}:{a+3}], v12"); E(f"ds_read_b128 v[{a+4}:{a+7}], v12 offset:16")
    if cfg.diag==2:
        wload(0,0); E("s_waitcnt vmcnt(0)"); stamp(E,cfg,2)
    for e in range(8): wload(0,e)
    if cfg.diag==1: E("s_waitcnt vmcnt(0)"); stamp(E,cfg,2)
    E("v_lshl_add_u32 v10, v3, 3, s35")
    E.vmem("global_load_dwordx2 v[24:25], v10, s[8:9]", "SZ")
    E.vmem("global_load_dwordx2 v[26:27], v10, s[10:11]", "SZ")
    if cfg.diag: E("s_waitcnt vmcnt(0)"); stamp(E,cfg,3)
    bm_full(E); E("s_lshl_b32 s32, s29, 19")
    build_srd(E,16,4,32,M*K*2)
    E("v_lshrrev_b32 v10, 3, v2"); E("v_and_b32 v12, 7, v2"); E("v_lshrrev_b32 v13, 4, v2"); E("v_xor_b32 v12, v12, v13")
    E("v_lshlrev_b32 v12, 4, v12"); E(f"v_lshl_add_u32 v{VX}, v10, 11, v12"); E(f"v_xor_b32 v{VX+1}, 64, v{VX}")
    for i in range(7,1,-1): E(f"v_add_u32 v{VX+i}, {i*16384-(i%4)*1024}, v{VX+i%2}")
    E(f"v_add_u32 v{VX+1}, {16384-1024}, v{VX+1}")
    E("s_lshl_b32 s39, s31, 13"); E("s_lshl_b32 s41, s31, 17"); E(f"s_add_u32 s38, s39, {cfg.NX*XSLOT}"); E("s_mov_b32 s43, s39")
    for i in range(8): E(f"v_add_u32 v{VX+i}, s41, v{VX+i}")
    E("s_lshl_b32 s40, s37, 7")
    for i in range(8):
        if i%4==0: E(M0A if i==0 else M0B); E("s_nop 0")
        xdma(0,i)
    if cfg.diag: E("s_waitcnt vmcnt(0)"); stamp(E,cfg,4)
    ring(); E(M0A)
    if cfg.rho: E("s_and_b32 s42, s2, 1"); E("s_lshl_b32 s42, s42, 3"); E("s_or_b32 s46, s46, s42")
    E(f"s_mov_b32 s52, {tabs[0]&0xffffffff:#x}"); E(f"s_mov_b32 s53, {tabs[0]>>32:#x}")
    for o in range(1,len(tabs)):
        if tabs[o]!=tabs[0]:
            E(f"s_cmp_eq_u32 s46, {o}"); E(f"s_cselect_b32 s52, {tabs[o]&0xffffffff:#x}, s52"); E(f"s_cselect_b32 s53, {tabs[o]>>32:#x}, s53")
    if cfg.xrot:
        E("s_mul_i32 s45, s45, 0x11111111"); E("s_xor_b32 s52, s52, s45"); E("s_xor_b32 s53, s53, s45")
    E("s_lshr_b64 s[52:53], s[52:53], 4")
    E("s_lshl_b32 s42, s31, 12"); E(f"s_add_u32 s42, s42, {cfg.WBASE}")
    E(f"v_lshl_add_u32 v{vw}, v2, 4, s42")
    E("s_lshl_b32 s42, s31, 6"); E(f"s_add_u32 s42, s42, {cfg.ABASE}")
    E(f"v_lshl_add_u32 v{va}, v1, 5, s42")
    E("s_mov_b32 s47, s40")
    if cfg.LW==2:
        E("s_and_b32 s37, s52, 15"); E("s_lshr_b64 s[52:53], s[52:53], 4"); E(f"s_mul_i32 s36, s37, {64*QROW}")
        for e in range(8): wload(1,e)
    advance()
    if cfg.LW==1:
        for e in range(cfg.pre): wload(1,e)
    if not cfg.diag: stamp(E,cfg,2)
    E("s_barrier")
    if not cfg.diag: stamp(E,cfg,3)
    E(f"v_lshl_add_u32 v12, s47, 1, v{va}")
    E(f"ds_read_b128 v[{AV[0]}:{AV[0]+3}], v12"); E(f"ds_read_b128 v[{AV[0]+4}:{AV[0]+7}], v12 offset:16")
    E.waitvm("SZ")
    for j in range(4):
        for (src,dst) in ((24,SV),(26,ZV)):
            if j%2==0: E(f"v_lshlrev_b32 v{dst+j}, 16, v{src+j//2}")
            else: E(f"v_and_b32 v{dst+j}, 0xffff0000, v{src+j//2}")
    for j in range(4):
        E(f"v_mul_f32 v{ZV+j}, v{ZV+j}, v{SV+j}")
        if cfg.cvt:
            E(f"v_mul_f32 v{SV+j}, 1.0, v{SV+j}")
        else:
            E(f"v_mul_f32 v{SV+j}, 0x71800000, v{SV+j}")
            E(f"v_mul_f32 v{ZV+j}, 0x27000000, v{ZV+j}")
    if cfg.pprio: E(f"s_setprio {cfg.pprio}")
    def phase(j):
        st=j+1
        xs=j+cfg.XL; ws=st+cfg.LW
        a=AV[st%2]
        xi=[(lambda i=i: (xdma(xs,i), (E(M0B) if i==3 else None))) for i in range(8)] if xs<NST else []
        wi=[(lambda e=e: wload(ws,e)) for e in range(cfg.pre if (j==-1 and cfg.LW==1) else 0,8)] if ws<NST else []
        if cfg.xfirst==1: mem=xi+wi
        elif cfg.xfirst==0: mem=wi+xi
        else:
            mem=[]
            while xi or wi:
                if xi: mem.append(xi.pop(0))
                if wi: mem.append(wi.pop(0))
        for _ in range(cfg.dfirst if j>=0 else 0):
            if mem: mem.pop(0)()
        E.waitvm(("W",st), " lgkmcnt(0)")
        if j==-1 and not cfg.diag: stamp(E,cfg,4)
        if st+1<NST: aread(st+1)
        sl=(st%2)*WSLOT
        work=[]; wr=[]
        for jj in range(4):
            for half in range(2):
                rs=range(4*half,4*half+4)
                if cfg.cvt:
                    for e in rs: r=raw(st,e,jj); work.append(f"v_cvt_f32_i32 v{r}, v{r}")
                for e in rs: r=raw(st,e,jj); work.append(f"v_fma_f32 v{r}, v{r}, v{SV+jj}, -v{ZV+jj}")
                for e in rs: r=raw(st,e,jj); work.append(f"v_mul_f32 v{r}, v{r}, v{a+e}")
                for p in (2*half,2*half+1):
                    work.append(f"v_cvt_pk_bf16_f32 v{OUT+4*jj+p}, v{raw(st,2*p,jj)}, v{raw(st,2*p+1,jj)}")
            wr.append(f"ds_write_b128 v{vw}, v[{OUT+4*jj}:{OUT+4*jj+3}] offset:{sl+jj*1024}")
        per=len(work)//4
        pos=[int(x)*per//20 for x in cfg.wpos.split()] if (cfg.wpos and mem) else [per,2*per,3*per,4*per]
        for jj in (3,2,1,0):
            assert pos[jj]>=per*(jj+1)
            work.insert(pos[jj],wr[jj])
        nm=len(mem)-cfg.tailv if len(mem)>cfg.tailv else len(mem)
        nw=len(work); done=0
        for i,w in enumerate(work):
            E(w)
            while done<nm and (i+1)*(nm+1) >= (done+1)*nw: mem.pop(0)(); done+=1
        while mem: mem.pop(0)()
        if xs+1<NST: ring(); E(M0A)
        if ws+1<NST: advance()
        elif xs+1<NST: E("s_lshl_b32 s40, s37, 7")
        E.waitvm(("X",st), " lgkmcnt(0)")
        if cfg.bw: E("s_memtime s[88:89]")
        E("s_barrier")
        if cfg.bw:
            E("s_memtime s[90:91]"); E("s_waitcnt lgkmcnt(0)"); E("s_sub_u32 s90, s90, s88")
            E("s_add_u32 s86, s86, s90")
    U=cfg.U
    assert U%cfg.RW==0 and U%2==0
    last_full = min(NST-1-cfg.XL, NST-2-cfg.LW) - 1
    phase(-1)
    jn=0
    if cfg.loop:
        n=(last_full+1)//U
        if n>=2:
            loopify(E,phase,0,n,U,"L_p_loop"); jn=n*U
    for j in range(jn,NST-1): phase(j)
    finish(E,cfg,False)

def helper(E,cfg):
    E("L_helper:")
    E("s_sub_u32 s47, s47, 28")
    E("s_bfe_u32 s33, s2, 0x20001"); E("s_mul_i32 s33, s33, 3584")
    E("s_lshl_b32 s31, s47, 4"); E("v_lshrrev_b32 v6, 5, v0"); E("v_add_u32 v6, s31, v6"); E(f"v_mul_u32_u24 v6, {QROW}, v6")
    E("v_and_b32 v7, 31, v0"); E("v_lshl_add_u32 v6, v7, 6, v6")
    E("v_add_u32 v8, 2048, v6"); E("v_cmp_gt_u32 vcc, 24, v7"); E("s_and_b32 s45, s2, 1"); E("s_lshl_b32 s45, s45, 3"); E("v_cndmask_b32 v7, -1, v8, vcc")
    if not cfg.xrot: E("s_mov_b32 s45, 0")
    E("s_waitcnt lgkmcnt(0)")
    build_srd(E,20,6,33,K*QROW)
    r=0
    for s in range(cfg.hstart,cfg.hend):
        E(f"s_xor_b32 s40, s45, {s}"); E(f"s_mul_i32 s41, s40, {64*QROW}")
        E(f"buffer_load_dword v{16+r}, v6, s[20:23], s41 offen"); r+=1
        E(f"buffer_load_dword v{16+r}, v7, s[20:23], s41 offen"); r+=1
    E("s_endpgm")

def finish(E,cfg,cons):
    if cfg.enc:
        role,a,b=cfg.enc.split(":")
        if (role=="c")==cons:
            E("s_waitcnt vmcnt(0)"); stamp(E,cfg,5); E("s_memrealtime s[82:83]"); E("s_waitcnt lgkmcnt(0)")
            if a=="r": E("s_sub_u32 s84, s82, s80")
            else: E(f"s_sub_u32 s84, s{60+2*int(b)}, s{60+2*int(a)}"); E("s_lshr_b32 s84, s84, 3")
            E("s_add_u32 s84, s84, 4000")
            lab=f"L_enc{len(E.L)}"
            E(lab+":"); E("s_memrealtime s[82:83]"); E("s_waitcnt lgkmcnt(0)"); E("s_sub_u32 s82, s82, s80")
            E(f"s_cmp_lt_u32 s82, s84"); E(f"s_cbranch_scc1 {lab}")
    if cfg.spin:
        lab=f"L_spin{len(E.L)}"
        E("s_waitcnt vmcnt(0)")
        E(lab+":"); E("s_memrealtime s[82:83]"); E("s_waitcnt lgkmcnt(0)"); E("s_sub_u32 s82, s82, s80")
        E(f"s_cmp_lt_u32 s82, {cfg.spin}"); E(f"s_cbranch_scc1 {lab}")
    if cfg.stamps:
        stamp(E,cfg,5)
        E("s_memrealtime s[78:79]")
        E("s_waitcnt lgkmcnt(0)")
        if cfg.bw: E("s_add_u32 s62, s60, s86")
        E("s_mov_b32 s48, s58"); E("s_mov_b32 s49, s59"); E("s_mov_b32 s50, 0x1000000"); E("s_mov_b32 s51, 0x20000")
        E("s_lshl_b32 s52, s2, 3"); E("s_add_u32 s52, s52, s28"); E("s_lshl_b32 s52, s52, 5")
        E("v_mov_b32 v10, s76"); E("v_mov_b32 v11, s78")
        for i,r in enumerate((62,64,66,68,70)):
            E(f"s_sub_u32 s{r}, s{r}, s60"); E(f"v_mov_b32 v{12+i}, s{r}")
        E("s_getreg_b32 s53, hwreg(HW_REG_HW_ID)"); E("v_mov_b32 v17, s53")
        E("v_mov_b32 v9, s52")
        E("s_mov_b64 exec, 1")
        E("buffer_store_dwordx4 v[10:13], v9, s[48:51], 0 offen")
        E("buffer_store_dwordx4 v[14:17], v9, s[48:51], 0 offen offset:16")
        if cfg.stamps==2 and cons:
            E("s_mov_b64 exec, 0xffff"); E("s_lshl_b32 s52, s2, 3"); E("s_add_u32 s52, s52, s28"); E("s_lshl_b32 s52, s52, 6"); E("s_add_u32 s52, s52, 0x10000")
            E("v_and_b32 v9, 63, v0"); E("v_lshlrev_b32 v9, 2, v9"); E("v_add_u32 v9, s52, v9")
            E("buffer_store_dword v250, v9, s[48:51], 0 offen")
    E("s_endpgm")

def consumer(E,cfg):
    ACC=16; XF=(144,152); WF=(160,176)
    vxb=(4,5,6,7); vx=(192,193,194,195); vw=8; vo=9
    T=216
    def acc(b,j): return ACC+(b*4+j)*16
    E("L_consumer:")
    E("v_lshlrev_b32 v10, 3, v0")
    E("s_waitcnt lgkmcnt(0)")
    E.vmem("global_load_dwordx2 v[12:13], v10, s[12:13]","A")
    if cfg.codepf:
        E("s_getpc_b64 s[48:49]"); E("L_pc:")
        E(f"s_sub_u32 s48, s48, L_pc-{KN}"); E("s_subb_u32 s49, s49, 0")
        E(f"s_mov_b32 s50, L_codeend-{KN}"); E("s_mov_b32 s51, 0x20000")
        E("s_lshl_b32 s43, s47, 9"); E("v_lshlrev_b32 v11, 6, v0"); E("v_add_u32 v14, s43, v11")
        E("v_cmp_gt_u32 vcc, 8, v0"); E("s_nop 1"); E("v_cndmask_b32 v11, -1, v14, vcc")
        E.vmem("buffer_load_dword v14, v11, s[48:51], 0 offen","PF")
    if cfg.pf:
        E("s_cmp_ge_u32 s45, 2"); E("s_cbranch_scc1 L_nopf")
        E("s_mul_i32 s36, s45, 28"); E("s_add_u32 s36, s36, s47"); E("s_lshl_b32 s36, s36, 8")
        E("v_add_u32 v11, s36, v0"); E("v_mul_u32_u24 v14, 24967, v11"); E("v_lshrrev_b32 v14, 22, v14")
        E("v_mul_u32_u24 v15, 168, v14"); E("v_sub_u32 v15, v11, v15")
        E(f"v_mul_u32_u24 v11, {QROW}, v14"); E("v_lshl_add_u32 v11, v15, 6, v11")
        E("v_cmp_gt_u32 vcc, 64, v14"); E("s_mov_b32 s20, s6"); E("s_mov_b32 s21, s7"); E("v_cndmask_b32 v11, -1, v11, vcc")
        E(f"s_mov_b32 s22, {K*QROW}"); E("s_mov_b32 s23, 0x20000")
        for st in range(cfg.pf0,cfg.pf0+cfg.pf):
            E(f"s_mov_b32 s36, {st*64*QROW+3584}")
            E(f"buffer_load_dword v{20+st}, v11, s[20:23], s36 offen")
        if cfg.pfw: E("s_waitcnt vmcnt(0)")
        E("L_nopf:")
        E.vm.append("A")
    bm_full(E)
    E(f"s_mul_i32 s34, s29, {256*OROW}"); E("s_lshl_b32 s35, s31, 8"); E("s_add_u32 s34, s34, s35")
    build_srd(E,24,14,34,M*OROW)
    if cfg.tlb&1:
        E("s_lshl_b32 s33, s31, 9"); build_srd(E,20,6,33,K*QROW)
        E("v_lshlrev_b32 v11, 21, v0"); E("v_cmp_gt_u32 vcc, 8, v0"); E("s_nop 1"); E("v_cndmask_b32 v11, -1, v11, vcc")
        E.vmem("buffer_load_dword v15, v11, s[20:23], 0 offen","PF")
    if cfg.tlb&2:
        E(f"v_mul_u32_u24 v11, {63*OROW}, v2"); E(f"s_mul_i32 s36, s28, {64*OROW}"); E("v_add_u32 v11, s36, v11")
        E("v_cmp_gt_u32 vcc, 2, v2"); E("s_nop 1"); E("v_cndmask_b32 v11, -1, v11, vcc")
        E.vmem("buffer_load_dword v15, v11, s[24:27], 0 offen","PF")
    E("v_bfe_u32 v11, v3, 1, 3"); E("v_xor_b32 v11, v11, v1"); E("v_lshlrev_b32 v11, 4, v11")
    E("s_lshl_b32 s36, s28, 13")
    E("v_lshl_add_u32 v11, v3, 7, v11"); E("v_add_u32 v4, s36, v11")
    for u in range(1,4): E(f"v_xor_b32 v{vxb[u]}, {32*u}, v4")
    for u in range(4): E(f"v_mov_b32 v{vx[u]}, v{vxb[u]}")
    E(f"v_lshlrev_b32 v{vw}, 4, v2"); E(f"v_add_u32 v{vw}, {cfg.WBASE}, v{vw}")
    E(f"v_lshlrev_b32 v10, 4, v0"); E(f"v_add_u32 v10, {cfg.ABASE}, v10")
    E("s_mov_b32 s38, 0")
    E.waitvm("A")
    E("v_lshlrev_b32 v16, 16, v12"); E("v_and_b32 v17, 0xffff0000, v12"); E("v_lshlrev_b32 v18, 16, v13"); E("v_and_b32 v19, 0xffff0000, v13")
    if not cfg.cvt:
        for i in range(4): E(f"v_mul_f32 v{16+i}, 0x58000000, v{16+i}")
    E("ds_write_b128 v10, v[16:19]")
    E("s_lshl_b32 s36, s28, 6"); E("v_lshl_add_u32 v11, v1, 2, s36"); E(f"v_mul_u32_u24 v11, {OROW}, v11")
    E(f"v_lshl_add_u32 v{vo}, v3, 3, v11")
    if cfg.prio: E(f"s_setprio {cfg.prio}")
    stamp(E,cfg,1)
    if cfg.stamps==2: E("s_mov_b32 s75, 0")
    E("s_waitcnt lgkmcnt(0)")
    E("s_barrier")
    E("s_barrier")
    stamp(E,cfg,2)
    def reads(j,u):
        s=u%2
        xr=lambda b: f"ds_read_b128 v[{XF[s]+4*b}:{XF[s]+4*b+3}], v{vx[u]} offset:{b*4096}"
        wr=lambda jj: f"ds_read_b128 v[{WF[s]+4*jj}:{WF[s]+4*jj+3}], v{vw} offset:{(j%2)*WSLOT+(u*4+jj)*1024}"
        return [xr(0)]+[wr(jj) for jj in range(4)]+[xr(1)]
    def mfma(a,xa,wa,first=False):
        c = "0" if first else f"v[{a}:{a+15}]"
        E(f"v_mfma_f32_32x32x16_bf16 v[{a}:{a+15}], v[{xa}:{xa+3}], v[{wa}:{wa+3}], {c}")
    def mfmas(s,first,inter,per=1,pend=0,bar=99):
        inter=list(inter); issued=0; g=0
        need=[2,3,4,5,6,6,6,6]
        for b in range(2):
            for jj in (range(4) if (b==0 or not cfg.snake) else range(3,-1,-1)):
                if pend and g<5: E(f"s_waitcnt lgkmcnt({pend-need[g]+issued})")
                mfma(acc(b,jj),XF[s]+4*b,WF[s]+4*jj,first)
                for _ in range(per):
                    if inter:
                        x=inter.pop(0); E(x)
                        if x.startswith("ds_read"): issued+=1
                g+=1
                if g==bar:
                    assert not any(x.startswith("ds_read") for x in inter)
                    E("s_waitcnt lgkmcnt(0)"); E("s_barrier")
        for x in inter: E(x)
    def bump():
        return ring_advance(cfg,38)+[f"v_add_u32 v{vx[u]}, s38, v{vxb[u]}" for u in range(4)]
    def pstamp():
        if cfg.stamps==2:
            E("s_sub_u32 s72, s72, s60"); E("v_mov_b32 v251, s72"); E("v_cmp_eq_u32 vcc, s75, v2"); E("s_add_u32 s75, s75, 1"); E("s_nop 0"); E("v_cndmask_b32 v250, v250, v251, vcc")
    def phase(j):
        if cfg.stamps==2: E("s_memtime s[72:73]")
        cw = cfg.cw and cfg.stamps!=2
        if j==0:
            for r in reads(0,0): E(r)
        else: mfmas(1,False,reads(j,0),cfg.rd2)
        if not cw: E("s_waitcnt lgkmcnt(0)")
        pstamp()
        mfmas(0,j==0,reads(j,1),cfg.rd2,6 if cw else 0)
        if not cw: E("s_waitcnt lgkmcnt(0)")
        mfmas(1,False,reads(j,2),cfg.rd2,6 if cw else 0)
        if not cw: E("s_waitcnt lgkmcnt(0)")
        early = cfg.bpos<8 and not cfg.bw
        mfmas(0,False,reads(j,3)+bump(),2,6 if cw else 0, cfg.bpos if early else 99)
        if early: return
        E("s_waitcnt lgkmcnt(0)")
        if cfg.bw: E("s_memtime s[88:89]")
        if j<NST-1: E("s_barrier")
        if cfg.bw:
            E("s_memtime s[90:91]"); E("s_waitcnt lgkmcnt(0)"); E("s_sub_u32 s90, s90, s88")
            E("s_add_u32 s86, s86, s90")
    def store_ops(b):
        ops=[]
        for r in range(16):
            t=T+2*r
            if cfg.off:
                import struct
                h=struct.unpack("<I",struct.pack("<f",float(cfg.off)))[0]
                for jj in range(4): ops.append(f"v_add_f32 v{acc(b,jj)+r}, {h:#x}, v{acc(b,jj)+r}")
            ops.append(f"v_cvt_pk_bf16_f32 v{t}, v{acc(b,0)+r}, v{acc(b,1)+r}")
            ops.append(f"v_cvt_pk_bf16_f32 v{t+1}, v{acc(b,2)+r}, v{acc(b,3)+r}")
            row=32*b+8*(r>>2)+(r&3)
            ops.append(f"s_mov_b32 s36, {row*OROW}")
            ops.append(f"buffer_store_dwordx2 v[{t}:{t+1}], v{vo}, s[24:27], s36 offen {cfg.stpol if (b==0 or cfg.stpol2 is None) else cfg.stpol2}")
        return ops
    phase(0)
    last = NST-2 if cfg.tail else NST
    if cfg.loop:
        n=(last-1)//2
        loopify(E,phase,1,n,2,"L_c_loop")
        for j in range(1+2*n,last): phase(j)
    else:
        for j in range(1,last): phase(j)
    if not cfg.tail:
        mfmas(1,False,[])
        stamp(E,cfg,3)
        E("s_nop 7"); E("s_nop 7")
        for b in range(2):
            for x in store_ops(b): E(x)
    else:
        seq=[(14,0,u) for u in range(4)]+[(14,1,0)]+[(15,0,u) for u in range(4)]+[(14,1,u) for u in range(1,4)]+[(15,1,u) for u in range(4)]
        if cfg.tb==4: seq=[(14,0,u) for u in range(4)]+[(15,0,u) for u in range(4)]+[(14,1,u) for u in range(4)]+[(15,1,u) for u in range(4)]
        if cfg.tb==6: seq=[(14,0,u) for u in range(4)]+[(14,1,0),(14,1,1)]+[(15,0,u) for u in range(4)]+[(14,1,u) for u in range(2,4)]+[(15,1,u) for u in range(4)]
        first15=[i for i,h in enumerate(seq) if h[0]==15][0]
        doneb0=max(i for i,h in enumerate(seq) if h[1]==0)
        SX=(XF[0],196,XF[1]); SW=(WF[0],200,WF[1])
        s15=(15%cfg.NX)*XSLOT
        def hreads(i):
            (st,b,u)=seq[i]; k=i%3
            xa = vx[u] if st==14 else vxb[u]
            R=[f"ds_read_b128 v[{SX[k]}:{SX[k]+3}], v{xa} offset:{b*4096+(0 if st==14 else s15)}"]
            R+=[f"ds_read_b128 v[{SW[k]+4*jj}:{SW[k]+4*jj+3}], v{vw} offset:{(st%2)*WSLOT+(u*4+jj)*1024}" for jj in range(4)]
            return R
        assert s15+4096+0<65536
        if cfg.stamps==2: E("s_memtime s[72:73]")
        mfmas(1,False,hreads(0)+hreads(1),2)
        so=[]
        for i,(st,b,u) in enumerate(seq):
            k=i%3
            if i+2==first15:
                E("s_waitcnt lgkmcnt(5)"); E("s_barrier")
            elif i+1<len(seq): E(f"s_waitcnt lgkmcnt(5)")
            else: E("s_waitcnt lgkmcnt(0)")
            if i==0: pstamp()
            nxt=hreads(i+2) if i+2<len(seq) else []
            if i==doneb0+2: so=store_ops(0)
            left=len(seq)-i
            for jj in range(4):
                mfma(acc(b,jj),SX[k],SW[k]+4*jj)
                for _ in range(2 if jj==0 else 1):
                    if nxt: E(nxt.pop(0))
                if so:
                    slots=(left*4-jj)
                    n=-(-len(so)//slots)
                    for _ in range(n):
                        if so: E(so.pop(0))
            assert not nxt
        assert not so
        stamp(E,cfg,3)
        E("s_nop 7"); E("s_nop 7")
        for x in store_ops(1): E(x)
    if cfg.stamps or cfg.enc: stamp(E,cfg,4); E("s_waitcnt vmcnt(0)")
    finish(E,cfg,True)

def ablate(L,cfg):
    R=[]
    if 'H' in cfg.abl or 'G' in cfg.abl:
        idx=[i for i,x in enumerate(L) if x.startswith("buffer_store") and "s[24:27]" in x]
        drop=set(idx[-8:] if 'H' in cfg.abl else idx[-16:])
        L=[x for i,x in enumerate(L) if i not in drop]
    for x in L:
        if 'V' in cfg.abl and (x.startswith("v_fma_f32") or (x.startswith("v_mul_f32") and "0x" not in x and int(x.split()[1][1:-1])>=64) or (x.startswith("v_cvt_pk") and int(x.split()[1][1:-1])<64)): continue
        if 'X' in cfg.abl and x.endswith(" lds"): continue
        if 'W' in cfg.abl and x.startswith("buffer_load") and "s[20:23]" in x: continue
        if 'M' in cfg.abl and x.startswith("v_mfma"): continue
        if 'D' in cfg.abl and x.startswith("ds_write") and "v10," not in x: continue
        if 'R' in cfg.abl and x.startswith("ds_read") and int(x.split()[1][2:].split(":")[0])>=128: continue
        if 'S' in cfg.abl and x.startswith("buffer_store") and "s[24:27]" in x: continue
        R.append(x)
    return R
def generate(cfg):
    out=[header(cfg)]
    E=Emit(); common_prologue(E,cfg); out+=E.L
    E=Emit(); producer(E,cfg); out+=E.L
    if cfg.helper:
        E=Emit(); helper(E,cfg); out+=E.L
    E=Emit(); consumer(E,cfg); out+=E.L
    out.append("L_exit:"); out.append("s_endpgm"); out.append("L_codeend:")
    return "\n".join(ablate(out,cfg))+footer(cfg)

if __name__=="__main__":
    kw={}
    for a in sys.argv[2:]:
        k,v=a.split("="); kw[k]=v.replace("_"," ") if k in ("stpol","abl","wpos","enc","gv","stpol2","off","rho") else int(v)
    open(sys.argv[1],"w").write(generate(Cfg(**kw)))
```

```python
import sys
KN = "standalone__weight_only_int_omniquant__prompt_kernel"
M, K, N = 2048, 1024, 3584
QROW = N*4
OROW = N*2
NST = 16
XSLOT = 32768
WSLOT = 16384
NWG = 224

class Cfg:
    def __init__(s, **kw):
        s.NX = 3; s.XL = 2
        s.RW = 2; s.LW = 1; s.U = 2
        s.stamps = 0; s.prio = 1; s.pprio = 2; s.codepf = 1; s.loop = 1
        s.spin = 0; s.stpol = 'sc1'; s.abl = ''
        s.g = 1; s.g2 = 2; s.start = 0; s.xrot = 0; s.dfirst = 2; s.xfirst = 0; s.tailv = 6
        s.wpos = '60 66 73 80'; s.snake = 1; s.tail = 1; s.tb = 4; s.cvt = 0; s.enc = ''; s.tlb = 0; s.pf = 0; s.pf0 = 0; s.pfw = 0; s.cw = 1; s.rd2 = 1; s.bw = 0; s.gv = ''; s.stpol2 = None; s.pre = 0; s.szf = 0; s.diag = 0; s.bpos = 8; s.off = ''; s.cmode = 0; s.helper = 0; s.hstart = 3; s.hend = 8; s.hx = 0; s.rho = ''; s.xmap = 0
        s.__dict__.update(kw)
        if s.rho: s.xrot = 0
        s.WBASE = s.NX*XSLOT
        s.ABASE = s.WBASE + 2*WSLOT
        s.LDS = s.ABASE + 4096

def order(o, hi, cfg):
    if cfg.g==0: return list(range(NST))
    def key(s):
        if s%4==o and s>=cfg.start:
            g = cfg.g2 if ((s>>2)&1)==hi else cfg.g
            if cfg.gv:
                t=cfg.gv.split()[s>>2]; g=int(t[1] if ((s>>2)&1)==hi else t[0])
                if g==0: return s
            return s-g-0.5
        return s
    return sorted(range(NST), key=key)
def table(o,hi,cfg):
    v=0
    for i,s in enumerate(order(o,hi,cfg)): v|=s<<(4*i)
    return v

class Emit:
    def __init__(s): s.L=[]; s.vm=[]
    def __call__(s, x): s.L.append(x)
    def vmem(s, x, tag): s.L.append(x); s.vm.append(tag)
    def waitvm(s, tag, extra=""):
        idx=[i for i,t in enumerate(s.vm) if t==tag]
        n=(len(s.vm)-1-idx[-1]) if idx else 63
        n=min(n,63)
        s.L.append(f"s_waitcnt vmcnt({n}){extra}")
        return n

def stamp(E, cfg, i):
    if cfg.stamps or cfg.enc: E(f"s_memtime s[{60+2*i}:{61+2*i}]")

def header(cfg):
    return f"""; Fused int4-weight dequant + bf16 GEMM: out[2048,3584] = (x*act) @ ((qw-z)*s); one 256x128 tile per workgroup.
; Waves 0-3 multiply (v_mfma 32x32x16, operands from LDS); waves 4-7 stream x into LDS (LDS-DMA) and turn qw into bf16.
; @launch grid=({256 if cfg.helper else NWG},1,1) block=(512,1,1) lds={cfg.LDS}
.amdgcn_target "amdgcn-amd-amdhsa--gfx950"
.text
.globl {KN}
.p2align 8
.type {KN},@function
{KN}:
"""
def footer(cfg):
    return f"""
.section .rodata,"a"
.p2align 6
.amdhsa_kernel {KN}
  .amdhsa_next_free_vgpr 256
  .amdhsa_next_free_sgpr 96
  .amdhsa_accum_offset 256
  .amdhsa_group_segment_fixed_size 0
  .amdhsa_kernarg_size 64
  .amdhsa_user_sgpr_count 2
  .amdhsa_user_sgpr_kernarg_segment_ptr 1
  .amdhsa_system_sgpr_workgroup_id_x 1
  .amdhsa_float_denorm_mode_32 3
.end_amdhsa_kernel
"""
def common_prologue(E, cfg):
    if cfg.spin or cfg.enc: E("s_memrealtime s[80:81]")
    if cfg.stamps: E("s_memrealtime s[76:77]")
    stamp(E,cfg,0)
    if cfg.bw: E("s_mov_b32 s86, 0")
    E(f"s_cmp_ge_u32 s2, {256 if cfg.helper else NWG}"); E("s_cbranch_scc1 L_exit")
    E("s_load_dwordx4 s[4:7], s[0:1], 0")
    E("s_load_dwordx4 s[12:15], s[0:1], 32")
    E("s_load_dwordx4 s[8:11], s[0:1], 16")
    if cfg.stamps: E("s_load_dwordx2 s[58:59], s[0:1], 56")
    E("v_lshrrev_b32 v1, 6, v0")
    E("v_and_b32 v2, 63, v0")
    E("v_readfirstlane_b32 s28, v1")
    E("s_and_b32 s45, s2, 7")
    E("s_lshr_b32 s47, s2, 3")
    E("s_lshr_b32 s30, s47, 2")
    if cfg.xmap:
        E("s_lshl_b32 s31, s45, 2"); E(f"s_lshr_b32 s31, {XM[cfg.xmap][0]:#x}, s31"); E("s_and_b32 s31, s31, 3")
    else: E("s_lshr_b32 s31, s45, 1")
    E("s_mul_i32 s31, s31, 7"); E("s_add_u32 s31, s30, s31")
    E("s_and_b32 s29, s47, 3")
    E("v_and_b32 v3, 31, v0")
    E("v_bfe_u32 v1, v0, 5, 1")
    if cfg.helper: E(f"s_cmp_ge_u32 s2, {NWG}"); E("s_cbranch_scc1 L_helper")
    E("s_cmp_ge_u32 s28, 4")
    E("s_cbranch_scc0 L_consumer")

XM={1:(0x33221010,0xA6), 2:(0x32103210,0xF0), 3:(0x33221100,0x66), 4:(0x31022310,0xB2)}
def bm_full(E,cfg=None):
    if cfg is not None and cfg.xmap:
        E("s_and_b32 s42, s2, 7"); E(f"s_lshr_b32 s42, {XM[cfg.xmap][1]:#x}, s42"); E("s_and_b32 s42, s42, 1")
    else: E("s_and_b32 s42, s2, 1")
    E("s_lshl_b32 s42, s42, 2"); E("s_add_u32 s29, s29, s42")

def build_srd(E, base, ptr, off, size):
    E(f"s_add_u32 s{base}, s{ptr}, s{off}"); E(f"s_addc_u32 s{base+1}, s{ptr+1}, 0")
    E(f"s_sub_u32 s{base+2}, {size}, s{off}"); E(f"s_mov_b32 s{base+3}, 0x20000")

def nextstage(E, cfg, pair, dst):
    if cfg.xrot:
        E(f"s_add_u32 s{dst}, s{pair}, s45"); E(f"s_and_b32 s{dst}, s{dst}, 15")
    else: E(f"s_and_b32 s{dst}, s{pair}, 15")
    E(f"s_lshr_b64 s[{pair}:{pair+1}], s[{pair}:{pair+1}], 4")

def ring_advance(cfg, r):
    return [f"s_add_u32 s{r}, s{r}, {XSLOT}", f"s_cmp_eq_u32 s{r}, {cfg.NX*XSLOT}", f"s_cselect_b32 s{r}, 0, s{r}"]

def loopify(E, phase, j0, n, U, lab):
    E(f"s_mov_b32 s44, {n}")
    bodies=[]
    for it in range(n):
        mark=len(E.L)
        for j in range(j0+it*U,j0+(it+1)*U): phase(j)
        bodies.append(E.L[mark:]); del E.L[mark:]
    assert len(set(len(b) for b in bodies))==1
    merged=[]
    for tup in zip(*bodies):
        if len(set(tup))==1: merged.append(tup[0])
        else:
            assert all(x.startswith("s_waitcnt vmcnt") for x in tup), tup
            merged.append(min(tup,key=lambda x:int(x.split("(")[1].split(")")[0])))
    E(".p2align 6"); E(lab+":")
    E.L.extend(merged)
    E("s_sub_u32 s44, s44, 1"); E("s_cmp_lg_u32 s44, 0"); E(f"s_cbranch_scc1 {lab}")

def producer(E, cfg):
    RAW0 = 64
    OUT, AV, SV, ZV = 32, (48,56), 16, 20
    VQ, VX, vw, va = 200, 208, 7, 9
    def raw(st,e,j): return RAW0 + (st%cfg.RW)*32 + e*4 + j
    tabs=[table(o&3,o>>2,cfg) for o in range(8)]
    first=0
    for o in range(8): first|=(tabs[o]&15)<<(4*o)
    E("s_sub_u32 s31, s28, 4") if False else None
    if cfg.cmode==0:
        E("s_add_u32 s46, s29, s30"); E("s_and_b32 s46, s46, 3"); E("s_and_b32 s42, s30, 4"); E("s_or_b32 s46, s46, s42")
    elif cfg.cmode in (1,4):
        E("s_lshr_b32 s46, s30, 1"); E("s_add_u32 s46, s46, s29"); E("s_and_b32 s46, s46, 3")
        if cfg.cmode==4: E("s_and_b32 s42, s30, 1"); E("s_lshl_b32 s42, s42, 2"); E("s_or_b32 s46, s46, s42")
    elif cfg.cmode in (2,5):
        E("s_mov_b32 s46, s29")
        if cfg.cmode==5: E("s_and_b32 s42, s30, 1"); E("s_lshl_b32 s42, s42, 2"); E("s_or_b32 s46, s46, s42")
    elif cfg.cmode==3:
        E("s_lshr_b32 s46, s30, 2"); E("s_add_u32 s46, s46, s29"); E("s_and_b32 s46, s46, 3")
    assert cfg.xrot in (0,8) and cfg.XL==2
    if cfg.rho:
        rho=[int(c) for c in cfg.rho]
        rm=lambda t: sum(((rho[((t>>(4*i))&15)>>2]<<2)|((t>>(4*i))&3))<<(4*i) for i in range(16))
        tabs=tabs+[rm(t) for t in tabs]
        first2=0
        for o in range(8): first2|=(tabs[8+o]&15)<<(4*o)
        E("s_lshl_b32 s42, s46, 2")
        if first2!=first:
            E("s_bitcmp1_b32 s2, 0"); E(f"s_mov_b32 s37, {first:#x}"); E(f"s_cselect_b32 s37, {first2:#x}, s37"); E("s_lshr_b32 s37, s37, s42")
        else: E(f"s_lshr_b32 s37, {first:#x}, s42")
    else:
        E("s_lshl_b32 s42, s46, 2"); E(f"s_lshr_b32 s37, {first:#x}, s42")
    E("s_and_b32 s37, s37, 15")
    if cfg.xrot:
        E("s_and_b32 s45, s2, 1"); E("s_lshl_b32 s45, s45, 3"); E("s_xor_b32 s37, s37, s45")
    E("s_lshl_b32 s33, s31, 9")
    E("s_lshl_b32 s35, s31, 8")
    E("s_sub_u32 s31, s28, 4")
    E("s_lshl_b32 s36, s31, 4")
    E("v_lshl_add_u32 v10, v1, 3, s36")
    E(f"v_mul_u32_u24 v10, {QROW}, v10")
    E(f"v_lshl_add_u32 v{VQ}, v3, 4, v10")
    for e in range(1,8): E(f"v_add_u32 v{VQ+e}, {e*QROW}, v{VQ}")
    E(f"s_mul_i32 s36, s37, {64*QROW}")
    E("s_waitcnt lgkmcnt(0)")
    stamp(E,cfg,1)
    build_srd(E,20,6,33,K*QROW)
    def advance():
        if cfg.LW==2: E("s_lshl_b32 s40, s37, 7")
        E("s_and_b32 s37, s52, 15"); E("s_lshr_b64 s[52:53], s[52:53], 4")
        E(f"s_mul_i32 s36, s37, {64*QROW}")
        if cfg.LW==1: E("s_lshl_b32 s40, s37, 7")
    def ring():
        E(f"s_add_u32 s43, s43, {XSLOT}"); E("s_cmp_eq_u32 s43, s38"); E("s_cselect_b32 s43, s39, s43")
    def wload(st,e):
        r=raw(st,e,0)
        E.vmem(f"buffer_load_dwordx4 v[{r}:{r+3}], v{VQ+e}, s[20:23], s36 offen", ("W",st))
    def xdma(st,i):
        E.vmem(f"buffer_load_dwordx4 v{VX+i}, s[16:19], s40 offen offset:{(i%4)*1024} lds", ("X",st))
    M0A="s_mov_b32 m0, s43"; M0B="s_add_u32 m0, s43, 4096"
    def aread(st):
        a=AV[st%2]
        E(f"v_lshl_add_u32 v12, s40, 1, v{va}")
        E(f"ds_read_b128 v[{a}:{a+3}], v12"); E(f"ds_read_b128 v[{a+4}:{a+7}], v12 offset:16")
    if cfg.diag==2:
        wload(0,0); E("s_waitcnt vmcnt(0)"); stamp(E,cfg,2)
    for e in range(8): wload(0,e)
    if cfg.diag==1: E("s_waitcnt vmcnt(0)"); stamp(E,cfg,2)
    E("v_lshl_add_u32 v10, v3, 3, s35")
    E.vmem("global_load_dwordx2 v[24:25], v10, s[8:9]", "SZ")
    E.vmem("global_load_dwordx2 v[26:27], v10, s[10:11]", "SZ")
    if cfg.diag: E("s_waitcnt vmcnt(0)"); stamp(E,cfg,3)
    bm_full(E,cfg); E("s_lshl_b32 s32, s29, 19")
    build_srd(E,16,4,32,M*K*2)
    E("v_lshrrev_b32 v10, 3, v2"); E("v_and_b32 v12, 7, v2"); E("v_lshrrev_b32 v13, 4, v2"); E("v_xor_b32 v12, v12, v13")
    E("v_lshlrev_b32 v12, 4, v12"); E(f"v_lshl_add_u32 v{VX}, v10, 11, v12"); E(f"v_xor_b32 v{VX+1}, 64, v{VX}")
    for i in range(7,1,-1): E(f"v_add_u32 v{VX+i}, {i*16384-(i%4)*1024}, v{VX+i%2}")
    E(f"v_add_u32 v{VX+1}, {16384-1024}, v{VX+1}")
    E("s_lshl_b32 s39, s31, 13"); E("s_lshl_b32 s41, s31, 17"); E(f"s_add_u32 s38, s39, {cfg.NX*XSLOT}"); E("s_mov_b32 s43, s39")
    for i in range(8): E(f"v_add_u32 v{VX+i}, s41, v{VX+i}")
    E("s_lshl_b32 s40, s37, 7")
    for i in range(8):
        if i%4==0: E(M0A if i==0 else M0B); E("s_nop 0")
        xdma(0,i)
    if cfg.diag: E("s_waitcnt vmcnt(0)"); stamp(E,cfg,4)
    ring(); E(M0A)
    if cfg.rho: E("s_and_b32 s42, s2, 1"); E("s_lshl_b32 s42, s42, 3"); E("s_or_b32 s46, s46, s42")
    E(f"s_mov_b32 s52, {tabs[0]&0xffffffff:#x}"); E(f"s_mov_b32 s53, {tabs[0]>>32:#x}")
    for o in range(1,len(tabs)):
        if tabs[o]!=tabs[0]:
            E(f"s_cmp_eq_u32 s46, {o}"); E(f"s_cselect_b32 s52, {tabs[o]&0xffffffff:#x}, s52"); E(f"s_cselect_b32 s53, {tabs[o]>>32:#x}, s53")
    if cfg.xrot:
        E("s_mul_i32 s45, s45, 0x11111111"); E("s_xor_b32 s52, s52, s45"); E("s_xor_b32 s53, s53, s45")
    E("s_lshr_b64 s[52:53], s[52:53], 4")
    E("s_lshl_b32 s42, s31, 12"); E(f"s_add_u32 s42, s42, {cfg.WBASE}")
    E(f"v_lshl_add_u32 v{vw}, v2, 4, s42")
    E("s_lshl_b32 s42, s31, 6"); E(f"s_add_u32 s42, s42, {cfg.ABASE}")
    E(f"v_lshl_add_u32 v{va}, v1, 5, s42")
    E("s_mov_b32 s47, s40")
    if cfg.LW==2:
        E("s_and_b32 s37, s52, 15"); E("s_lshr_b64 s[52:53], s[52:53], 4"); E(f"s_mul_i32 s36, s37, {64*QROW}")
        for e in range(8): wload(1,e)
    advance()
    if cfg.LW==1:
        for e in range(cfg.pre): wload(1,e)
    if not cfg.diag: stamp(E,cfg,2)
    E("s_barrier")
    if not cfg.diag: stamp(E,cfg,3)
    E(f"v_lshl_add_u32 v12, s47, 1, v{va}")
    E(f"ds_read_b128 v[{AV[0]}:{AV[0]+3}], v12"); E(f"ds_read_b128 v[{AV[0]+4}:{AV[0]+7}], v12 offset:16")
    E.waitvm("SZ")
    for j in range(4):
        for (src,dst) in ((24,SV),(26,ZV)):
            if j%2==0: E(f"v_lshlrev_b32 v{dst+j}, 16, v{src+j//2}")
            else: E(f"v_and_b32 v{dst+j}, 0xffff0000, v{src+j//2}")
    for j in range(4):
        E(f"v_mul_f32 v{ZV+j}, v{ZV+j}, v{SV+j}")
        if cfg.cvt:
            E(f"v_mul_f32 v{SV+j}, 1.0, v{SV+j}")
        else:
            E(f"v_mul_f32 v{SV+j}, 0x71800000, v{SV+j}")
            E(f"v_mul_f32 v{ZV+j}, 0x27000000, v{ZV+j}")
    if cfg.pprio: E(f"s_setprio {cfg.pprio}")
    def phase(j):
        st=j+1
        xs=j+cfg.XL; ws=st+cfg.LW
        a=AV[st%2]
        xi=[(lambda i=i: (xdma(xs,i), (E(M0B) if i==3 else None))) for i in range(8)] if xs<NST else []
        wi=[(lambda e=e: wload(ws,e)) for e in range(cfg.pre if (j==-1 and cfg.LW==1) else 0,8)] if ws<NST else []
        if cfg.xfirst==1: mem=xi+wi
        elif cfg.xfirst==0: mem=wi+xi
        else:
            mem=[]
            while xi or wi:
                if xi: mem.append(xi.pop(0))
                if wi: mem.append(wi.pop(0))
        for _ in range(cfg.dfirst if j>=0 else 0):
            if mem: mem.pop(0)()
        E.waitvm(("W",st), " lgkmcnt(0)")
        if j==-1 and not cfg.diag: stamp(E,cfg,4)
        if st+1<NST: aread(st+1)
        sl=(st%2)*WSLOT
        work=[]; wr=[]
        for jj in range(4):
            for half in range(2):
                rs=range(4*half,4*half+4)
                if cfg.cvt:
                    for e in rs: r=raw(st,e,jj); work.append(f"v_cvt_f32_i32 v{r}, v{r}")
                for e in rs: r=raw(st,e,jj); work.append(f"v_fma_f32 v{r}, v{r}, v{SV+jj}, -v{ZV+jj}")
                for e in rs: r=raw(st,e,jj); work.append(f"v_mul_f32 v{r}, v{r}, v{a+e}")
                for p in (2*half,2*half+1):
                    work.append(f"v_cvt_pk_bf16_f32 v{OUT+4*jj+p}, v{raw(st,2*p,jj)}, v{raw(st,2*p+1,jj)}")
            wr.append(f"ds_write_b128 v{vw}, v[{OUT+4*jj}:{OUT+4*jj+3}] offset:{sl+jj*1024}")
        per=len(work)//4
        pos=[int(x)*per//20 for x in cfg.wpos.split()] if (cfg.wpos and mem) else [per,2*per,3*per,4*per]
        for jj in (3,2,1,0):
            assert pos[jj]>=per*(jj+1)
            work.insert(pos[jj],wr[jj])
        nm=len(mem)-cfg.tailv if len(mem)>cfg.tailv else len(mem)
        nw=len(work); done=0
        for i,w in enumerate(work):
            E(w)
            while done<nm and (i+1)*(nm+1) >= (done+1)*nw: mem.pop(0)(); done+=1
        while mem: mem.pop(0)()
        if xs+1<NST: ring(); E(M0A)
        if ws+1<NST: advance()
        elif xs+1<NST: E("s_lshl_b32 s40, s37, 7")
        E.waitvm(("X",st), " lgkmcnt(0)")
        if cfg.bw: E("s_memtime s[88:89]")
        E("s_barrier")
        if cfg.bw:
            E("s_memtime s[90:91]"); E("s_waitcnt lgkmcnt(0)"); E("s_sub_u32 s90, s90, s88")
            E("s_add_u32 s86, s86, s90")
    U=cfg.U
    assert U%cfg.RW==0 and U%2==0
    last_full = min(NST-1-cfg.XL, NST-2-cfg.LW) - 1
    phase(-1)
    jn=0
    if cfg.loop:
        n=(last_full+1)//U
        if n>=2:
            loopify(E,phase,0,n,U,"L_p_loop"); jn=n*U
    for j in range(jn,NST-1): phase(j)
    finish(E,cfg,False)

def helper(E,cfg):
    E("L_helper:")
    E("s_sub_u32 s47, s47, 28")
    E("s_bfe_u32 s33, s2, 0x20001"); E("s_mul_i32 s33, s33, 3584")
    E("s_lshl_b32 s31, s47, 4"); E("v_lshrrev_b32 v6, 5, v0"); E("v_add_u32 v6, s31, v6"); E(f"v_mul_u32_u24 v6, {QROW}, v6")
    E("v_and_b32 v7, 31, v0"); E("v_lshl_add_u32 v6, v7, 6, v6")
    E("v_add_u32 v8, 2048, v6"); E("v_cmp_gt_u32 vcc, 24, v7"); E("s_and_b32 s45, s2, 1"); E("s_lshl_b32 s45, s45, 3"); E("v_cndmask_b32 v7, -1, v8, vcc")
    if not cfg.xrot: E("s_mov_b32 s45, 0")
    E("s_waitcnt lgkmcnt(0)")
    build_srd(E,20,6,33,K*QROW)
    r=0
    for s in range(cfg.hstart,cfg.hend):
        E(f"s_xor_b32 s40, s45, {s}"); E(f"s_mul_i32 s41, s40, {64*QROW}")
        E(f"buffer_load_dword v{16+r}, v6, s[20:23], s41 offen"); r+=1
        E(f"buffer_load_dword v{16+r}, v7, s[20:23], s41 offen"); r+=1
    E("s_endpgm")

def finish(E,cfg,cons):
    if cfg.enc:
        role,a,b=cfg.enc.split(":")
        if (role=="c")==cons:
            E("s_waitcnt vmcnt(0)"); stamp(E,cfg,5); E("s_memrealtime s[82:83]"); E("s_waitcnt lgkmcnt(0)")
            if a=="r": E("s_sub_u32 s84, s82, s80")
            else: E(f"s_sub_u32 s84, s{60+2*int(b)}, s{60+2*int(a)}"); E("s_lshr_b32 s84, s84, 3")
            E("s_add_u32 s84, s84, 4000")
            lab=f"L_enc{len(E.L)}"
            E(lab+":"); E("s_memrealtime s[82:83]"); E("s_waitcnt lgkmcnt(0)"); E("s_sub_u32 s82, s82, s80")
            E(f"s_cmp_lt_u32 s82, s84"); E(f"s_cbranch_scc1 {lab}")
    if cfg.spin:
        lab=f"L_spin{len(E.L)}"
        E("s_waitcnt vmcnt(0)")
        E(lab+":"); E("s_memrealtime s[82:83]"); E("s_waitcnt lgkmcnt(0)"); E("s_sub_u32 s82, s82, s80")
        E(f"s_cmp_lt_u32 s82, {cfg.spin}"); E(f"s_cbranch_scc1 {lab}")
    if cfg.stamps:
        stamp(E,cfg,5)
        E("s_memrealtime s[78:79]")
        E("s_waitcnt lgkmcnt(0)")
        if cfg.bw: E("s_add_u32 s62, s60, s86")
        E("s_mov_b32 s48, s58"); E("s_mov_b32 s49, s59"); E("s_mov_b32 s50, 0x1000000"); E("s_mov_b32 s51, 0x20000")
        E("s_lshl_b32 s52, s2, 3"); E("s_add_u32 s52, s52, s28"); E("s_lshl_b32 s52, s52, 5")
        E("v_mov_b32 v10, s76"); E("v_mov_b32 v11, s78")
        for i,r in enumerate((62,64,66,68,70)):
            E(f"s_sub_u32 s{r}, s{r}, s60"); E(f"v_mov_b32 v{12+i}, s{r}")
        E("s_getreg_b32 s53, hwreg(HW_REG_HW_ID)"); E("v_mov_b32 v17, s53")
        E("v_mov_b32 v9, s52")
        E("s_mov_b64 exec, 1")
        E("buffer_store_dwordx4 v[10:13], v9, s[48:51], 0 offen")
        E("buffer_store_dwordx4 v[14:17], v9, s[48:51], 0 offen offset:16")
        if cfg.stamps==2 and cons:
            E("s_mov_b64 exec, 0xffff"); E("s_lshl_b32 s52, s2, 3"); E("s_add_u32 s52, s52, s28"); E("s_lshl_b32 s52, s52, 6"); E("s_add_u32 s52, s52, 0x10000")
            E("v_and_b32 v9, 63, v0"); E("v_lshlrev_b32 v9, 2, v9"); E("v_add_u32 v9, s52, v9")
            E("buffer_store_dword v250, v9, s[48:51], 0 offen")
    E("s_endpgm")

def consumer(E,cfg):
    ACC=16; XF=(144,152); WF=(160,176)
    vxb=(4,5,6,7); vx=(192,193,194,195); vw=8; vo=9
    T=216
    def acc(b,j): return ACC+(b*4+j)*16
    E("L_consumer:")
    E("v_lshlrev_b32 v10, 3, v0")
    E("s_waitcnt lgkmcnt(0)")
    E.vmem("global_load_dwordx2 v[12:13], v10, s[12:13]","A")
    if cfg.codepf:
        E("s_getpc_b64 s[48:49]"); E("L_pc:")
        E(f"s_sub_u32 s48, s48, L_pc-{KN}"); E("s_subb_u32 s49, s49, 0")
        E(f"s_mov_b32 s50, L_codeend-{KN}"); E("s_mov_b32 s51, 0x20000")
        E("s_lshl_b32 s43, s47, 9"); E("v_lshlrev_b32 v11, 6, v0"); E("v_add_u32 v14, s43, v11")
        E("v_cmp_gt_u32 vcc, 8, v0"); E("s_nop 1"); E("v_cndmask_b32 v11, -1, v14, vcc")
        E.vmem("buffer_load_dword v14, v11, s[48:51], 0 offen","PF")
    if cfg.pf:
        E("s_cmp_ge_u32 s45, 2"); E("s_cbranch_scc1 L_nopf")
        E("s_mul_i32 s36, s45, 28"); E("s_add_u32 s36, s36, s47"); E("s_lshl_b32 s36, s36, 8")
        E("v_add_u32 v11, s36, v0"); E("v_mul_u32_u24 v14, 24967, v11"); E("v_lshrrev_b32 v14, 22, v14")
        E("v_mul_u32_u24 v15, 168, v14"); E("v_sub_u32 v15, v11, v15")
        E(f"v_mul_u32_u24 v11, {QROW}, v14"); E("v_lshl_add_u32 v11, v15, 6, v11")
        E("v_cmp_gt_u32 vcc, 64, v14"); E("s_mov_b32 s20, s6"); E("s_mov_b32 s21, s7"); E("v_cndmask_b32 v11, -1, v11, vcc")
        E(f"s_mov_b32 s22, {K*QROW}"); E("s_mov_b32 s23, 0x20000")
        for st in range(cfg.pf0,cfg.pf0+cfg.pf):
            E(f"s_mov_b32 s36, {st*64*QROW+3584}")
            E(f"buffer_load_dword v{20+st}, v11, s[20:23], s36 offen")
        if cfg.pfw: E("s_waitcnt vmcnt(0)")
        E("L_nopf:")
        E.vm.append("A")
    bm_full(E,cfg)
    E(f"s_mul_i32 s34, s29, {256*OROW}"); E("s_lshl_b32 s35, s31, 8"); E("s_add_u32 s34, s34, s35")
    build_srd(E,24,14,34,M*OROW)
    if cfg.tlb&1:
        E("s_lshl_b32 s33, s31, 9"); build_srd(E,20,6,33,K*QROW)
        E("v_lshlrev_b32 v11, 21, v0"); E("v_cmp_gt_u32 vcc, 8, v0"); E("s_nop 1"); E("v_cndmask_b32 v11, -1, v11, vcc")
        E.vmem("buffer_load_dword v15, v11, s[20:23], 0 offen","PF")
    if cfg.tlb&2:
        E(f"v_mul_u32_u24 v11, {63*OROW}, v2"); E(f"s_mul_i32 s36, s28, {64*OROW}"); E("v_add_u32 v11, s36, v11")
        E("v_cmp_gt_u32 vcc, 2, v2"); E("s_nop 1"); E("v_cndmask_b32 v11, -1, v11, vcc")
        E.vmem("buffer_load_dword v15, v11, s[24:27], 0 offen","PF")
    E("v_bfe_u32 v11, v3, 1, 3"); E("v_xor_b32 v11, v11, v1"); E("v_lshlrev_b32 v11, 4, v11")
    E("s_lshl_b32 s36, s28, 13")
    E("v_lshl_add_u32 v11, v3, 7, v11"); E("v_add_u32 v4, s36, v11")
    for u in range(1,4): E(f"v_xor_b32 v{vxb[u]}, {32*u}, v4")
    for u in range(4): E(f"v_mov_b32 v{vx[u]}, v{vxb[u]}")
    E(f"v_lshlrev_b32 v{vw}, 4, v2"); E(f"v_add_u32 v{vw}, {cfg.WBASE}, v{vw}")
    E(f"v_lshlrev_b32 v10, 4, v0"); E(f"v_add_u32 v10, {cfg.ABASE}, v10")
    E("s_mov_b32 s38, 0")
    E.waitvm("A")
    E("v_lshlrev_b32 v16, 16, v12"); E("v_and_b32 v17, 0xffff0000, v12"); E("v_lshlrev_b32 v18, 16, v13"); E("v_and_b32 v19, 0xffff0000, v13")
    if not cfg.cvt:
        for i in range(4): E(f"v_mul_f32 v{16+i}, 0x58000000, v{16+i}")
    E("ds_write_b128 v10, v[16:19]")
    E("s_lshl_b32 s36, s28, 6"); E("v_lshl_add_u32 v11, v1, 2, s36"); E(f"v_mul_u32_u24 v11, {OROW}, v11")
    E(f"v_lshl_add_u32 v{vo}, v3, 3, v11")
    if cfg.prio: E(f"s_setprio {cfg.prio}")
    stamp(E,cfg,1)
    if cfg.stamps==2: E("s_mov_b32 s75, 0")
    E("s_waitcnt lgkmcnt(0)")
    E("s_barrier")
    E("s_barrier")
    stamp(E,cfg,2)
    def reads(j,u):
        s=u%2
        xr=lambda b: f"ds_read_b128 v[{XF[s]+4*b}:{XF[s]+4*b+3}], v{vx[u]} offset:{b*4096}"
        wr=lambda jj: f"ds_read_b128 v[{WF[s]+4*jj}:{WF[s]+4*jj+3}], v{vw} offset:{(j%2)*WSLOT+(u*4+jj)*1024}"
        return [xr(0)]+[wr(jj) for jj in range(4)]+[xr(1)]
    def mfma(a,xa,wa,first=False):
        c = "0" if first else f"v[{a}:{a+15}]"
        E(f"v_mfma_f32_32x32x16_bf16 v[{a}:{a+15}], v[{xa}:{xa+3}], v[{wa}:{wa+3}], {c}")
    def mfmas(s,first,inter,per=1,pend=0,bar=99):
        inter=list(inter); issued=0; g=0
        need=[2,3,4,5,6,6,6,6]
        for b in range(2):
            for jj in (range(4) if (b==0 or not cfg.snake) else range(3,-1,-1)):
                if pend and g<5: E(f"s_waitcnt lgkmcnt({pend-need[g]+issued})")
                mfma(acc(b,jj),XF[s]+4*b,WF[s]+4*jj,first)
                for _ in range(per):
                    if inter:
                        x=inter.pop(0); E(x)
                        if x.startswith("ds_read"): issued+=1
                g+=1
                if g==bar:
                    assert not any(x.startswith("ds_read") for x in inter)
                    E("s_waitcnt lgkmcnt(0)"); E("s_barrier")
        for x in inter: E(x)
    def bump():
        return ring_advance(cfg,38)+[f"v_add_u32 v{vx[u]}, s38, v{vxb[u]}" for u in range(4)]
    def pstamp():
        if cfg.stamps==2:
            E("s_sub_u32 s72, s72, s60"); E("v_mov_b32 v251, s72"); E("v_cmp_eq_u32 vcc, s75, v2"); E("s_add_u32 s75, s75, 1"); E("s_nop 0"); E("v_cndmask_b32 v250, v250, v251, vcc")
    def phase(j):
        if cfg.stamps==2: E("s_memtime s[72:73]")
        cw = cfg.cw and cfg.stamps!=2
        if j==0:
            for r in reads(0,0): E(r)
        else: mfmas(1,False,reads(j,0),cfg.rd2)
        if not cw: E("s_waitcnt lgkmcnt(0)")
        pstamp()
        mfmas(0,j==0,reads(j,1),cfg.rd2,6 if cw else 0)
        if not cw: E("s_waitcnt lgkmcnt(0)")
        mfmas(1,False,reads(j,2),cfg.rd2,6 if cw else 0)
        if not cw: E("s_waitcnt lgkmcnt(0)")
        early = cfg.bpos<8 and not cfg.bw
        mfmas(0,False,reads(j,3)+bump(),2,6 if cw else 0, cfg.bpos if early else 99)
        if early: return
        E("s_waitcnt lgkmcnt(0)")
        if cfg.bw: E("s_memtime s[88:89]")
        if j<NST-1: E("s_barrier")
        if cfg.bw:
            E("s_memtime s[90:91]"); E("s_waitcnt lgkmcnt(0)"); E("s_sub_u32 s90, s90, s88")
            E("s_add_u32 s86, s86, s90")
    def store_ops(b):
        ops=[]
        for r in range(16):
            t=T+2*r
            if cfg.off:
                import struct
                h=struct.unpack("<I",struct.pack("<f",float(cfg.off)))[0]
                for jj in range(4): ops.append(f"v_add_f32 v{acc(b,jj)+r}, {h:#x}, v{acc(b,jj)+r}")
            ops.append(f"v_cvt_pk_bf16_f32 v{t}, v{acc(b,0)+r}, v{acc(b,1)+r}")
            ops.append(f"v_cvt_pk_bf16_f32 v{t+1}, v{acc(b,2)+r}, v{acc(b,3)+r}")
            row=32*b+8*(r>>2)+(r&3)
            ops.append(f"s_mov_b32 s36, {row*OROW}")
            ops.append(f"buffer_store_dwordx2 v[{t}:{t+1}], v{vo}, s[24:27], s36 offen {cfg.stpol if (b==0 or cfg.stpol2 is None) else cfg.stpol2}")
        return ops
    phase(0)
    last = NST-2 if cfg.tail else NST
    if cfg.loop:
        n=(last-1)//2
        loopify(E,phase,1,n,2,"L_c_loop")
        for j in range(1+2*n,last): phase(j)
    else:
        for j in range(1,last): phase(j)
    if not cfg.tail:
        mfmas(1,False,[])
        stamp(E,cfg,3)
        E("s_nop 7"); E("s_nop 7")
        for b in range(2):
            for x in store_ops(b): E(x)
    else:
        seq=[(14,0,u) for u in range(4)]+[(14,1,0)]+[(15,0,u) for u in range(4)]+[(14,1,u) for u in range(1,4)]+[(15,1,u) for u in range(4)]
        if cfg.tb==4: seq=[(14,0,u) for u in range(4)]+[(15,0,u) for u in range(4)]+[(14,1,u) for u in range(4)]+[(15,1,u) for u in range(4)]
        if cfg.tb==6: seq=[(14,0,u) for u in range(4)]+[(14,1,0),(14,1,1)]+[(15,0,u) for u in range(4)]+[(14,1,u) for u in range(2,4)]+[(15,1,u) for u in range(4)]
        first15=[i for i,h in enumerate(seq) if h[0]==15][0]
        doneb0=max(i for i,h in enumerate(seq) if h[1]==0)
        SX=(XF[0],196,XF[1]); SW=(WF[0],200,WF[1])
        s15=(15%cfg.NX)*XSLOT
        def hreads(i):
            (st,b,u)=seq[i]; k=i%3
            xa = vx[u] if st==14 else vxb[u]
            R=[f"ds_read_b128 v[{SX[k]}:{SX[k]+3}], v{xa} offset:{b*4096+(0 if st==14 else s15)}"]
            R+=[f"ds_read_b128 v[{SW[k]+4*jj}:{SW[k]+4*jj+3}], v{vw} offset:{(st%2)*WSLOT+(u*4+jj)*1024}" for jj in range(4)]
            return R
        assert s15+4096+0<65536
        if cfg.stamps==2: E("s_memtime s[72:73]")
        mfmas(1,False,hreads(0)+hreads(1),2)
        so=[]
        for i,(st,b,u) in enumerate(seq):
            k=i%3
            if i+2==first15:
                E("s_waitcnt lgkmcnt(5)"); E("s_barrier")
            elif i+1<len(seq): E(f"s_waitcnt lgkmcnt(5)")
            else: E("s_waitcnt lgkmcnt(0)")
            if i==0: pstamp()
            nxt=hreads(i+2) if i+2<len(seq) else []
            if i==doneb0+2: so=store_ops(0)
            left=len(seq)-i
            for jj in range(4):
                mfma(acc(b,jj),SX[k],SW[k]+4*jj)
                for _ in range(2 if jj==0 else 1):
                    if nxt: E(nxt.pop(0))
                if so:
                    slots=(left*4-jj)
                    n=-(-len(so)//slots)
                    for _ in range(n):
                        if so: E(so.pop(0))
            assert not nxt
        assert not so
        stamp(E,cfg,3)
        E("s_nop 7"); E("s_nop 7")
        for x in store_ops(1): E(x)
    if cfg.stamps or cfg.enc: stamp(E,cfg,4); E("s_waitcnt vmcnt(0)")
    finish(E,cfg,True)

def ablate(L,cfg):
    R=[]
    if 'H' in cfg.abl or 'G' in cfg.abl:
        idx=[i for i,x in enumerate(L) if x.startswith("buffer_store") and "s[24:27]" in x]
        drop=set(idx[-8:] if 'H' in cfg.abl else idx[-16:])
        L=[x for i,x in enumerate(L) if i not in drop]
    for x in L:
        if 'V' in cfg.abl and (x.startswith("v_fma_f32") or (x.startswith("v_mul_f32") and "0x" not in x and int(x.split()[1][1:-1])>=64) or (x.startswith("v_cvt_pk") and int(x.split()[1][1:-1])<64)): continue
        if 'X' in cfg.abl and x.endswith(" lds"): continue
        if 'W' in cfg.abl and x.startswith("buffer_load") and "s[20:23]" in x: continue
        if 'M' in cfg.abl and x.startswith("v_mfma"): continue
        if 'D' in cfg.abl and x.startswith("ds_write") and "v10," not in x: continue
        if 'R' in cfg.abl and x.startswith("ds_read") and int(x.split()[1][2:].split(":")[0])>=128: continue
        if 'S' in cfg.abl and x.startswith("buffer_store") and "s[24:27]" in x: continue
        R.append(x)
    return R
def generate(cfg):
    out=[header(cfg)]
    E=Emit(); common_prologue(E,cfg); out+=E.L
    E=Emit(); producer(E,cfg); out+=E.L
    if cfg.helper:
        E=Emit(); helper(E,cfg); out+=E.L
    E=Emit(); consumer(E,cfg); out+=E.L
    out.append("L_exit:"); out.append("s_endpgm"); out.append("L_codeend:")
    return "\n".join(ablate(out,cfg))+footer(cfg)

if __name__=="__main__":
    kw={}
    for a in sys.argv[2:]:
        k,v=a.split("="); kw[k]=v.replace("_"," ") if k in ("stpol","abl","wpos","enc","gv","stpol2","off","rho") else int(v)
    open(sys.argv[1],"w").write(generate(Cfg(**kw)))
```

```python
import sys
KN = "standalone__weight_only_int_omniquant__prompt_kernel"
M, K, N = 2048, 1024, 3584
QROW = N*4
OROW = N*2
NST = 16
XSLOT = 32768
WSLOT = 16384
NWG = 224

class Cfg:
    def __init__(s, **kw):
        s.NX = 3; s.XL = 2
        s.RW = 2; s.LW = 1; s.U = 2
        s.stamps = 0; s.prio = 1; s.pprio = 2; s.codepf = 1; s.loop = 1
        s.spin = 0; s.stpol = 'sc1'; s.abl = ''
        s.g = 1; s.g2 = 2; s.start = 0; s.xrot = 0; s.dfirst = 2; s.xfirst = 0; s.tailv = 6
        s.wpos = '60 66 73 80'; s.snake = 1; s.tail = 1; s.tb = 4; s.cvt = 0; s.enc = ''; s.tlb = 0; s.pf = 0; s.pf0 = 0; s.pfw = 0; s.cw = 1; s.rd2 = 1; s.bw = 0; s.gv = ''; s.stpol2 = None; s.pre = 0; s.szf = 0; s.diag = 0; s.bpos = 8; s.off = ''; s.cmode = 0; s.helper = 0; s.hstart = 3; s.hend = 8; s.hx = 0; s.rho = ''; s.xmap = 0; s.sdelay = 0; s.etail = 0
        s.__dict__.update(kw)
        if s.rho: s.xrot = 0
        s.WBASE = s.NX*XSLOT
        s.ABASE = s.WBASE + 2*WSLOT
        s.LDS = s.ABASE + 4096

def order(o, hi, cfg):
    if cfg.g==0: return list(range(NST))
    def key(s):
        if s%4==o and s>=cfg.start:
            g = cfg.g2 if ((s>>2)&1)==hi else cfg.g
            if cfg.gv:
                t=cfg.gv.split()[s>>2]; g=int(t[1] if ((s>>2)&1)==hi else t[0])
                if g==0: return s
            return s-g-0.5
        return s
    return sorted(range(NST), key=key)
def table(o,hi,cfg):
    v=0
    for i,s in enumerate(order(o,hi,cfg)): v|=s<<(4*i)
    return v

class Emit:
    def __init__(s): s.L=[]; s.vm=[]
    def __call__(s, x): s.L.append(x)
    def vmem(s, x, tag): s.L.append(x); s.vm.append(tag)
    def waitvm(s, tag, extra=""):
        idx=[i for i,t in enumerate(s.vm) if t==tag]
        n=(len(s.vm)-1-idx[-1]) if idx else 63
        n=min(n,63)
        s.L.append(f"s_waitcnt vmcnt({n}){extra}")
        return n

def stamp(E, cfg, i):
    if cfg.stamps or cfg.enc: E(f"s_memtime s[{60+2*i}:{61+2*i}]")

def header(cfg):
    return f"""; Fused int4-weight dequant + bf16 GEMM: out[2048,3584] = (x*act) @ ((qw-z)*s); one 256x128 tile per workgroup.
; Waves 0-3 multiply (v_mfma 32x32x16, operands from LDS); waves 4-7 stream x into LDS (LDS-DMA) and turn qw into bf16.
; @launch grid=({256 if cfg.helper else NWG},1,1) block=(512,1,1) lds={cfg.LDS}
.amdgcn_target "amdgcn-amd-amdhsa--gfx950"
.text
.globl {KN}
.p2align 8
.type {KN},@function
{KN}:
"""
def footer(cfg):
    return f"""
.section .rodata,"a"
.p2align 6
.amdhsa_kernel {KN}
  .amdhsa_next_free_vgpr 256
  .amdhsa_next_free_sgpr 96
  .amdhsa_accum_offset 256
  .amdhsa_group_segment_fixed_size 0
  .amdhsa_kernarg_size 64
  .amdhsa_user_sgpr_count 2
  .amdhsa_user_sgpr_kernarg_segment_ptr 1
  .amdhsa_system_sgpr_workgroup_id_x 1
  .amdhsa_float_denorm_mode_32 3
.end_amdhsa_kernel
"""
def common_prologue(E, cfg):
    if cfg.spin or cfg.enc: E("s_memrealtime s[80:81]")
    if cfg.stamps: E("s_memrealtime s[76:77]")
    stamp(E,cfg,0)
    if cfg.bw: E("s_mov_b32 s86, 0")
    E(f"s_cmp_ge_u32 s2, {256 if cfg.helper else NWG}"); E("s_cbranch_scc1 L_exit")
    E("s_load_dwordx4 s[4:7], s[0:1], 0")
    E("s_load_dwordx4 s[12:15], s[0:1], 32")
    E("s_load_dwordx4 s[8:11], s[0:1], 16")
    if cfg.stamps: E("s_load_dwordx2 s[58:59], s[0:1], 56")
    E("v_lshrrev_b32 v1, 6, v0")
    E("v_and_b32 v2, 63, v0")
    E("v_readfirstlane_b32 s28, v1")
    E("s_and_b32 s45, s2, 7")
    E("s_lshr_b32 s47, s2, 3")
    E("s_lshr_b32 s30, s47, 2")
    if cfg.xmap:
        E("s_lshl_b32 s31, s45, 2"); E(f"s_lshr_b32 s31, {XM[cfg.xmap][0]:#x}, s31"); E("s_and_b32 s31, s31, 3")
    else: E("s_lshr_b32 s31, s45, 1")
    E("s_mul_i32 s31, s31, 7"); E("s_add_u32 s31, s30, s31")
    E("s_and_b32 s29, s47, 3")
    E("v_and_b32 v3, 31, v0")
    E("v_bfe_u32 v1, v0, 5, 1")
    if cfg.helper: E(f"s_cmp_ge_u32 s2, {NWG}"); E("s_cbranch_scc1 L_helper")
    E("s_cmp_ge_u32 s28, 4")
    E("s_cbranch_scc0 L_consumer")

XM={1:(0x33221010,0xA6), 2:(0x32103210,0xF0), 3:(0x33221100,0x66), 4:(0x31022310,0xB2)}
def bm_full(E,cfg=None):
    if cfg is not None and cfg.xmap:
        E("s_and_b32 s42, s2, 7"); E(f"s_lshr_b32 s42, {XM[cfg.xmap][1]:#x}, s42"); E("s_and_b32 s42, s42, 1")
    else: E("s_and_b32 s42, s2, 1")
    E("s_lshl_b32 s42, s42, 2"); E("s_add_u32 s29, s29, s42")

def build_srd(E, base, ptr, off, size):
    E(f"s_add_u32 s{base}, s{ptr}, s{off}"); E(f"s_addc_u32 s{base+1}, s{ptr+1}, 0")
    E(f"s_sub_u32 s{base+2}, {size}, s{off}"); E(f"s_mov_b32 s{base+3}, 0x20000")

def nextstage(E, cfg, pair, dst):
    if cfg.xrot:
        E(f"s_add_u32 s{dst}, s{pair}, s45"); E(f"s_and_b32 s{dst}, s{dst}, 15")
    else: E(f"s_and_b32 s{dst}, s{pair}, 15")
    E(f"s_lshr_b64 s[{pair}:{pair+1}], s[{pair}:{pair+1}], 4")

def ring_advance(cfg, r):
    return [f"s_add_u32 s{r}, s{r}, {XSLOT}", f"s_cmp_eq_u32 s{r}, {cfg.NX*XSLOT}", f"s_cselect_b32 s{r}, 0, s{r}"]

def loopify(E, phase, j0, n, U, lab):
    E(f"s_mov_b32 s44, {n}")
    bodies=[]
    for it in range(n):
        mark=len(E.L)
        for j in range(j0+it*U,j0+(it+1)*U): phase(j)
        bodies.append(E.L[mark:]); del E.L[mark:]
    assert len(set(len(b) for b in bodies))==1
    merged=[]
    for tup in zip(*bodies):
        if len(set(tup))==1: merged.append(tup[0])
        else:
            assert all(x.startswith("s_waitcnt vmcnt") for x in tup), tup
            merged.append(min(tup,key=lambda x:int(x.split("(")[1].split(")")[0])))
    E(".p2align 6"); E(lab+":")
    E.L.extend(merged)
    E("s_sub_u32 s44, s44, 1"); E("s_cmp_lg_u32 s44, 0"); E(f"s_cbranch_scc1 {lab}")

def producer(E, cfg):
    RAW0 = 64
    OUT, AV, SV, ZV = 32, (48,56), 16, 20
    VQ, VX, vw, va = 200, 208, 7, 9
    def raw(st,e,j): return RAW0 + (st%cfg.RW)*32 + e*4 + j
    tabs=[table(o&3,o>>2,cfg) for o in range(8)]
    first=0
    for o in range(8): first|=(tabs[o]&15)<<(4*o)
    E("s_sub_u32 s31, s28, 4") if False else None
    if cfg.cmode==0:
        E("s_add_u32 s46, s29, s30"); E("s_and_b32 s46, s46, 3"); E("s_and_b32 s42, s30, 4"); E("s_or_b32 s46, s46, s42")
    elif cfg.cmode in (1,4):
        E("s_lshr_b32 s46, s30, 1"); E("s_add_u32 s46, s46, s29"); E("s_and_b32 s46, s46, 3")
        if cfg.cmode==4: E("s_and_b32 s42, s30, 1"); E("s_lshl_b32 s42, s42, 2"); E("s_or_b32 s46, s46, s42")
    elif cfg.cmode in (2,5):
        E("s_mov_b32 s46, s29")
        if cfg.cmode==5: E("s_and_b32 s42, s30, 1"); E("s_lshl_b32 s42, s42, 2"); E("s_or_b32 s46, s46, s42")
    elif cfg.cmode==3:
        E("s_lshr_b32 s46, s30, 2"); E("s_add_u32 s46, s46, s29"); E("s_and_b32 s46, s46, 3")
    assert cfg.xrot in (0,8) and cfg.XL==2
    if cfg.rho:
        rho=[int(c) for c in cfg.rho]
        rm=lambda t: sum(((rho[((t>>(4*i))&15)>>2]<<2)|((t>>(4*i))&3))<<(4*i) for i in range(16))
        tabs=tabs+[rm(t) for t in tabs]
        first2=0
        for o in range(8): first2|=(tabs[8+o]&15)<<(4*o)
        E("s_lshl_b32 s42, s46, 2")
        if first2!=first:
            E("s_bitcmp1_b32 s2, 0"); E(f"s_mov_b32 s37, {first:#x}"); E(f"s_cselect_b32 s37, {first2:#x}, s37"); E("s_lshr_b32 s37, s37, s42")
        else: E(f"s_lshr_b32 s37, {first:#x}, s42")
    else:
        E("s_lshl_b32 s42, s46, 2"); E(f"s_lshr_b32 s37, {first:#x}, s42")
    E("s_and_b32 s37, s37, 15")
    if cfg.xrot:
        E("s_and_b32 s45, s2, 1"); E("s_lshl_b32 s45, s45, 3"); E("s_xor_b32 s37, s37, s45")
    E("s_lshl_b32 s33, s31, 9")
    E("s_lshl_b32 s35, s31, 8")
    E("s_sub_u32 s31, s28, 4")
    E("s_lshl_b32 s36, s31, 4")
    E("v_lshl_add_u32 v10, v1, 3, s36")
    E(f"v_mul_u32_u24 v10, {QROW}, v10")
    E(f"v_lshl_add_u32 v{VQ}, v3, 4, v10")
    for e in range(1,8): E(f"v_add_u32 v{VQ+e}, {e*QROW}, v{VQ}")
    E(f"s_mul_i32 s36, s37, {64*QROW}")
    E("s_waitcnt lgkmcnt(0)")
    stamp(E,cfg,1)
    build_srd(E,20,6,33,K*QROW)
    def advance():
        if cfg.LW==2: E("s_lshl_b32 s40, s37, 7")
        E("s_and_b32 s37, s52, 15"); E("s_lshr_b64 s[52:53], s[52:53], 4")
        E(f"s_mul_i32 s36, s37, {64*QROW}")
        if cfg.LW==1: E("s_lshl_b32 s40, s37, 7")
    def ring():
        E(f"s_add_u32 s43, s43, {XSLOT}"); E("s_cmp_eq_u32 s43, s38"); E("s_cselect_b32 s43, s39, s43")
    def wload(st,e):
        r=raw(st,e,0)
        E.vmem(f"buffer_load_dwordx4 v[{r}:{r+3}], v{VQ+e}, s[20:23], s36 offen", ("W",st))
    def xdma(st,i):
        E.vmem(f"buffer_load_dwordx4 v{VX+i}, s[16:19], s40 offen offset:{(i%4)*1024} lds", ("X",st))
    M0A="s_mov_b32 m0, s43"; M0B="s_add_u32 m0, s43, 4096"
    def aread(st):
        a=AV[st%2]
        E(f"v_lshl_add_u32 v12, s40, 1, v{va}")
        E(f"ds_read_b128 v[{a}:{a+3}], v12"); E(f"ds_read_b128 v[{a+4}:{a+7}], v12 offset:16")
    if cfg.diag==2:
        wload(0,0); E("s_waitcnt vmcnt(0)"); stamp(E,cfg,2)
    for e in range(8): wload(0,e)
    if cfg.diag==1: E("s_waitcnt vmcnt(0)"); stamp(E,cfg,2)
    E("v_lshl_add_u32 v10, v3, 3, s35")
    E.vmem("global_load_dwordx2 v[24:25], v10, s[8:9]", "SZ")
    E.vmem("global_load_dwordx2 v[26:27], v10, s[10:11]", "SZ")
    if cfg.diag: E("s_waitcnt vmcnt(0)"); stamp(E,cfg,3)
    bm_full(E,cfg); E("s_lshl_b32 s32, s29, 19")
    build_srd(E,16,4,32,M*K*2)
    E("v_lshrrev_b32 v10, 3, v2"); E("v_and_b32 v12, 7, v2"); E("v_lshrrev_b32 v13, 4, v2"); E("v_xor_b32 v12, v12, v13")
    E("v_lshlrev_b32 v12, 4, v12"); E(f"v_lshl_add_u32 v{VX}, v10, 11, v12"); E(f"v_xor_b32 v{VX+1}, 64, v{VX}")
    for i in range(7,1,-1): E(f"v_add_u32 v{VX+i}, {i*16384-(i%4)*1024}, v{VX+i%2}")
    E(f"v_add_u32 v{VX+1}, {16384-1024}, v{VX+1}")
    E("s_lshl_b32 s39, s31, 13"); E("s_lshl_b32 s41, s31, 17"); E(f"s_add_u32 s38, s39, {cfg.NX*XSLOT}"); E("s_mov_b32 s43, s39")
    for i in range(8): E(f"v_add_u32 v{VX+i}, s41, v{VX+i}")
    E("s_lshl_b32 s40, s37, 7")
    for i in range(8):
        if i%4==0: E(M0A if i==0 else M0B); E("s_nop 0")
        xdma(0,i)
    if cfg.diag: E("s_waitcnt vmcnt(0)"); stamp(E,cfg,4)
    ring(); E(M0A)
    if cfg.rho: E("s_and_b32 s42, s2, 1"); E("s_lshl_b32 s42, s42, 3"); E("s_or_b32 s46, s46, s42")
    E(f"s_mov_b32 s52, {tabs[0]&0xffffffff:#x}"); E(f"s_mov_b32 s53, {tabs[0]>>32:#x}")
    for o in range(1,len(tabs)):
        if tabs[o]!=tabs[0]:
            E(f"s_cmp_eq_u32 s46, {o}"); E(f"s_cselect_b32 s52, {tabs[o]&0xffffffff:#x}, s52"); E(f"s_cselect_b32 s53, {tabs[o]>>32:#x}, s53")
    if cfg.xrot:
        E("s_mul_i32 s45, s45, 0x11111111"); E("s_xor_b32 s52, s52, s45"); E("s_xor_b32 s53, s53, s45")
    E("s_lshr_b64 s[52:53], s[52:53], 4")
    E("s_lshl_b32 s42, s31, 12"); E(f"s_add_u32 s42, s42, {cfg.WBASE}")
    E(f"v_lshl_add_u32 v{vw}, v2, 4, s42")
    E("s_lshl_b32 s42, s31, 6"); E(f"s_add_u32 s42, s42, {cfg.ABASE}")
    E(f"v_lshl_add_u32 v{va}, v1, 5, s42")
    E("s_mov_b32 s47, s40")
    if cfg.LW==2:
        E("s_and_b32 s37, s52, 15"); E("s_lshr_b64 s[52:53], s[52:53], 4"); E(f"s_mul_i32 s36, s37, {64*QROW}")
        for e in range(8): wload(1,e)
    advance()
    if cfg.LW==1:
        for e in range(cfg.pre): wload(1,e)
    if not cfg.diag: stamp(E,cfg,2)
    E("s_barrier")
    if not cfg.diag: stamp(E,cfg,3)
    E(f"v_lshl_add_u32 v12, s47, 1, v{va}")
    E(f"ds_read_b128 v[{AV[0]}:{AV[0]+3}], v12"); E(f"ds_read_b128 v[{AV[0]+4}:{AV[0]+7}], v12 offset:16")
    E.waitvm("SZ")
    for j in range(4):
        for (src,dst) in ((24,SV),(26,ZV)):
            if j%2==0: E(f"v_lshlrev_b32 v{dst+j}, 16, v{src+j//2}")
            else: E(f"v_and_b32 v{dst+j}, 0xffff0000, v{src+j//2}")
    for j in range(4):
        E(f"v_mul_f32 v{ZV+j}, v{ZV+j}, v{SV+j}")
        if cfg.cvt:
            E(f"v_mul_f32 v{SV+j}, 1.0, v{SV+j}")
        else:
            E(f"v_mul_f32 v{SV+j}, 0x71800000, v{SV+j}")
            E(f"v_mul_f32 v{ZV+j}, 0x27000000, v{ZV+j}")
    if cfg.pprio: E(f"s_setprio {cfg.pprio}")
    def phase(j):
        st=j+1
        xs=j+cfg.XL; ws=st+cfg.LW
        a=AV[st%2]
        xi=[(lambda i=i: (xdma(xs,i), (E(M0B) if i==3 else None))) for i in range(8)] if xs<NST else []
        wi=[(lambda e=e: wload(ws,e)) for e in range(cfg.pre if (j==-1 and cfg.LW==1) else 0,8)] if ws<NST else []
        if cfg.xfirst==1: mem=xi+wi
        elif cfg.xfirst==0: mem=wi+xi
        else:
            mem=[]
            while xi or wi:
                if xi: mem.append(xi.pop(0))
                if wi: mem.append(wi.pop(0))
        for _ in range(cfg.dfirst if j>=0 else 0):
            if mem: mem.pop(0)()
        E.waitvm(("W",st), " lgkmcnt(0)")
        if j==-1 and not cfg.diag: stamp(E,cfg,4)
        if st+1<NST: aread(st+1)
        sl=(st%2)*WSLOT
        work=[]; wr=[]
        for jj in range(4):
            for half in range(2):
                rs=range(4*half,4*half+4)
                if cfg.cvt:
                    for e in rs: r=raw(st,e,jj); work.append(f"v_cvt_f32_i32 v{r}, v{r}")
                for e in rs: r=raw(st,e,jj); work.append(f"v_fma_f32 v{r}, v{r}, v{SV+jj}, -v{ZV+jj}")
                for e in rs: r=raw(st,e,jj); work.append(f"v_mul_f32 v{r}, v{r}, v{a+e}")
                for p in (2*half,2*half+1):
                    work.append(f"v_cvt_pk_bf16_f32 v{OUT+4*jj+p}, v{raw(st,2*p,jj)}, v{raw(st,2*p+1,jj)}")
            wr.append(f"ds_write_b128 v{vw}, v[{OUT+4*jj}:{OUT+4*jj+3}] offset:{sl+jj*1024}")
        per=len(work)//4
        pos=[int(x)*per//20 for x in cfg.wpos.split()] if (cfg.wpos and mem) else [per,2*per,3*per,4*per]
        for jj in (3,2,1,0):
            assert pos[jj]>=per*(jj+1)
            work.insert(pos[jj],wr[jj])
        nm=len(mem)-cfg.tailv if len(mem)>cfg.tailv else len(mem)
        nw=len(work); done=0
        for i,w in enumerate(work):
            E(w)
            while done<nm and (i+1)*(nm+1) >= (done+1)*nw: mem.pop(0)(); done+=1
        while mem: mem.pop(0)()
        if xs+1<NST: ring(); E(M0A)
        if ws+1<NST: advance()
        elif xs+1<NST: E("s_lshl_b32 s40, s37, 7")
        E.waitvm(("X",st), " lgkmcnt(0)")
        if cfg.bw: E("s_memtime s[88:89]")
        E("s_barrier")
        if cfg.bw:
            E("s_memtime s[90:91]"); E("s_waitcnt lgkmcnt(0)"); E("s_sub_u32 s90, s90, s88")
            E("s_add_u32 s86, s86, s90")
    U=cfg.U
    assert U%cfg.RW==0 and U%2==0
    last_full = min(NST-1-cfg.XL, NST-2-cfg.LW) - 1
    phase(-1)
    jn=0
    if cfg.loop:
        n=(last_full+1)//U
        if n>=2:
            loopify(E,phase,0,n,U,"L_p_loop"); jn=n*U
    for j in range(jn,NST-1): phase(j)
    finish(E,cfg,False)

def helper(E,cfg):
    E("L_helper:")
    E("s_sub_u32 s47, s47, 28")
    E("s_bfe_u32 s33, s2, 0x20001"); E("s_mul_i32 s33, s33, 3584")
    E("s_lshl_b32 s31, s47, 4"); E("v_lshrrev_b32 v6, 5, v0"); E("v_add_u32 v6, s31, v6"); E(f"v_mul_u32_u24 v6, {QROW}, v6")
    E("v_and_b32 v7, 31, v0"); E("v_lshl_add_u32 v6, v7, 6, v6")
    E("v_add_u32 v8, 2048, v6"); E("v_cmp_gt_u32 vcc, 24, v7"); E("s_and_b32 s45, s2, 1"); E("s_lshl_b32 s45, s45, 3"); E("v_cndmask_b32 v7, -1, v8, vcc")
    if not cfg.xrot: E("s_mov_b32 s45, 0")
    E("s_waitcnt lgkmcnt(0)")
    build_srd(E,20,6,33,K*QROW)
    r=0
    for s in range(cfg.hstart,cfg.hend):
        E(f"s_xor_b32 s40, s45, {s}"); E(f"s_mul_i32 s41, s40, {64*QROW}")
        E(f"buffer_load_dword v{16+r}, v6, s[20:23], s41 offen"); r+=1
        E(f"buffer_load_dword v{16+r}, v7, s[20:23], s41 offen"); r+=1
    E("s_endpgm")

def finish(E,cfg,cons):
    if cfg.enc:
        role,a,b=cfg.enc.split(":")
        if (role=="c")==cons:
            E("s_waitcnt vmcnt(0)"); stamp(E,cfg,5); E("s_memrealtime s[82:83]"); E("s_waitcnt lgkmcnt(0)")
            if a=="r": E("s_sub_u32 s84, s82, s80")
            else: E(f"s_sub_u32 s84, s{60+2*int(b)}, s{60+2*int(a)}"); E("s_lshr_b32 s84, s84, 3")
            E("s_add_u32 s84, s84, 4000")
            lab=f"L_enc{len(E.L)}"
            E(lab+":"); E("s_memrealtime s[82:83]"); E("s_waitcnt lgkmcnt(0)"); E("s_sub_u32 s82, s82, s80")
            E(f"s_cmp_lt_u32 s82, s84"); E(f"s_cbranch_scc1 {lab}")
    if cfg.spin:
        lab=f"L_spin{len(E.L)}"
        E("s_waitcnt vmcnt(0)")
        E(lab+":"); E("s_memrealtime s[82:83]"); E("s_waitcnt lgkmcnt(0)"); E("s_sub_u32 s82, s82, s80")
        E(f"s_cmp_lt_u32 s82, {cfg.spin}"); E(f"s_cbranch_scc1 {lab}")
    if cfg.stamps:
        stamp(E,cfg,5)
        E("s_memrealtime s[78:79]")
        E("s_waitcnt lgkmcnt(0)")
        if cfg.bw: E("s_add_u32 s62, s60, s86")
        E("s_mov_b32 s48, s58"); E("s_mov_b32 s49, s59"); E("s_mov_b32 s50, 0x1000000"); E("s_mov_b32 s51, 0x20000")
        E("s_lshl_b32 s52, s2, 3"); E("s_add_u32 s52, s52, s28"); E("s_lshl_b32 s52, s52, 5")
        E("v_mov_b32 v10, s76"); E("v_mov_b32 v11, s78")
        for i,r in enumerate((62,64,66,68,70)):
            E(f"s_sub_u32 s{r}, s{r}, s60"); E(f"v_mov_b32 v{12+i}, s{r}")
        E("s_getreg_b32 s53, hwreg(HW_REG_HW_ID)"); E("v_mov_b32 v17, s53")
        E("v_mov_b32 v9, s52")
        E("s_mov_b64 exec, 1")
        E("buffer_store_dwordx4 v[10:13], v9, s[48:51], 0 offen")
        E("buffer_store_dwordx4 v[14:17], v9, s[48:51], 0 offen offset:16")
        if cfg.stamps==2 and cons:
            E("s_mov_b64 exec, 0xffff"); E("s_lshl_b32 s52, s2, 3"); E("s_add_u32 s52, s52, s28"); E("s_lshl_b32 s52, s52, 6"); E("s_add_u32 s52, s52, 0x10000")
            E("v_and_b32 v9, 63, v0"); E("v_lshlrev_b32 v9, 2, v9"); E("v_add_u32 v9, s52, v9")
            E("buffer_store_dword v250, v9, s[48:51], 0 offen")
    E("s_endpgm")

def consumer(E,cfg):
    ACC=16; XF=(144,152); WF=(160,176)
    vxb=(4,5,6,7); vx=(192,193,194,195); vw=8; vo=9
    T=216
    def acc(b,j): return ACC+(b*4+j)*16
    E("L_consumer:")
    E("v_lshlrev_b32 v10, 3, v0")
    E("s_waitcnt lgkmcnt(0)")
    E.vmem("global_load_dwordx2 v[12:13], v10, s[12:13]","A")
    if cfg.codepf:
        E("s_getpc_b64 s[48:49]"); E("L_pc:")
        E(f"s_sub_u32 s48, s48, L_pc-{KN}"); E("s_subb_u32 s49, s49, 0")
        E(f"s_mov_b32 s50, L_codeend-{KN}"); E("s_mov_b32 s51, 0x20000")
        E("s_lshl_b32 s43, s47, 9"); E("v_lshlrev_b32 v11, 6, v0"); E("v_add_u32 v14, s43, v11")
        E("v_cmp_gt_u32 vcc, 8, v0"); E("s_nop 1"); E("v_cndmask_b32 v11, -1, v14, vcc")
        E.vmem("buffer_load_dword v14, v11, s[48:51], 0 offen","PF")
    if cfg.pf:
        E("s_cmp_ge_u32 s45, 2"); E("s_cbranch_scc1 L_nopf")
        E("s_mul_i32 s36, s45, 28"); E("s_add_u32 s36, s36, s47"); E("s_lshl_b32 s36, s36, 8")
        E("v_add_u32 v11, s36, v0"); E("v_mul_u32_u24 v14, 24967, v11"); E("v_lshrrev_b32 v14, 22, v14")
        E("v_mul_u32_u24 v15, 168, v14"); E("v_sub_u32 v15, v11, v15")
        E(f"v_mul_u32_u24 v11, {QROW}, v14"); E("v_lshl_add_u32 v11, v15, 6, v11")
        E("v_cmp_gt_u32 vcc, 64, v14"); E("s_mov_b32 s20, s6"); E("s_mov_b32 s21, s7"); E("v_cndmask_b32 v11, -1, v11, vcc")
        E(f"s_mov_b32 s22, {K*QROW}"); E("s_mov_b32 s23, 0x20000")
        for st in range(cfg.pf0,cfg.pf0+cfg.pf):
            E(f"s_mov_b32 s36, {st*64*QROW+3584}")
            E(f"buffer_load_dword v{20+st}, v11, s[20:23], s36 offen")
        if cfg.pfw: E("s_waitcnt vmcnt(0)")
        E("L_nopf:")
        E.vm.append("A")
    bm_full(E,cfg)
    E(f"s_mul_i32 s34, s29, {256*OROW}"); E("s_lshl_b32 s35, s31, 8"); E("s_add_u32 s34, s34, s35")
    build_srd(E,24,14,34,M*OROW)
    if cfg.tlb&1:
        E("s_lshl_b32 s33, s31, 9"); build_srd(E,20,6,33,K*QROW)
        E("v_lshlrev_b32 v11, 21, v0"); E("v_cmp_gt_u32 vcc, 8, v0"); E("s_nop 1"); E("v_cndmask_b32 v11, -1, v11, vcc")
        E.vmem("buffer_load_dword v15, v11, s[20:23], 0 offen","PF")
    if cfg.tlb&2:
        E(f"v_mul_u32_u24 v11, {63*OROW}, v2"); E(f"s_mul_i32 s36, s28, {64*OROW}"); E("v_add_u32 v11, s36, v11")
        E("v_cmp_gt_u32 vcc, 2, v2"); E("s_nop 1"); E("v_cndmask_b32 v11, -1, v11, vcc")
        E.vmem("buffer_load_dword v15, v11, s[24:27], 0 offen","PF")
    E("v_bfe_u32 v11, v3, 1, 3"); E("v_xor_b32 v11, v11, v1"); E("v_lshlrev_b32 v11, 4, v11")
    E("s_lshl_b32 s36, s28, 13")
    E("v_lshl_add_u32 v11, v3, 7, v11"); E("v_add_u32 v4, s36, v11")
    for u in range(1,4): E(f"v_xor_b32 v{vxb[u]}, {32*u}, v4")
    for u in range(4): E(f"v_mov_b32 v{vx[u]}, v{vxb[u]}")
    E(f"v_lshlrev_b32 v{vw}, 4, v2"); E(f"v_add_u32 v{vw}, {cfg.WBASE}, v{vw}")
    E(f"v_lshlrev_b32 v10, 4, v0"); E(f"v_add_u32 v10, {cfg.ABASE}, v10")
    E("s_mov_b32 s38, 0")
    E.waitvm("A")
    E("v_lshlrev_b32 v16, 16, v12"); E("v_and_b32 v17, 0xffff0000, v12"); E("v_lshlrev_b32 v18, 16, v13"); E("v_and_b32 v19, 0xffff0000, v13")
    if not cfg.cvt:
        for i in range(4): E(f"v_mul_f32 v{16+i}, 0x58000000, v{16+i}")
    E("ds_write_b128 v10, v[16:19]")
    E("s_lshl_b32 s36, s28, 6"); E("v_lshl_add_u32 v11, v1, 2, s36"); E(f"v_mul_u32_u24 v11, {OROW}, v11")
    E(f"v_lshl_add_u32 v{vo}, v3, 3, v11")
    if cfg.prio: E(f"s_setprio {cfg.prio}")
    stamp(E,cfg,1)
    if cfg.stamps==2: E("s_mov_b32 s75, 0")
    E("s_waitcnt lgkmcnt(0)")
    E("s_barrier")
    E("s_barrier")
    stamp(E,cfg,2)
    def reads(j,u):
        s=u%2
        xr=lambda b: f"ds_read_b128 v[{XF[s]+4*b}:{XF[s]+4*b+3}], v{vx[u]} offset:{b*4096}"
        wr=lambda jj: f"ds_read_b128 v[{WF[s]+4*jj}:{WF[s]+4*jj+3}], v{vw} offset:{(j%2)*WSLOT+(u*4+jj)*1024}"
        return [xr(0)]+[wr(jj) for jj in range(4)]+[xr(1)]
    def mfma(a,xa,wa,first=False):
        c = "0" if first else f"v[{a}:{a+15}]"
        E(f"v_mfma_f32_32x32x16_bf16 v[{a}:{a+15}], v[{xa}:{xa+3}], v[{wa}:{wa+3}], {c}")
    def mfmas(s,first,inter,per=1,pend=0,bar=99):
        inter=list(inter); issued=0; g=0
        need=[2,3,4,5,6,6,6,6]
        for b in range(2):
            for jj in (range(4) if (b==0 or not cfg.snake) else range(3,-1,-1)):
                if pend and g<5: E(f"s_waitcnt lgkmcnt({pend-need[g]+issued})")
                mfma(acc(b,jj),XF[s]+4*b,WF[s]+4*jj,first)
                for _ in range(per):
                    if inter:
                        x=inter.pop(0); E(x)
                        if x.startswith("ds_read"): issued+=1
                g+=1
                if g==bar:
                    assert not any(x.startswith("ds_read") for x in inter)
                    E("s_waitcnt lgkmcnt(0)"); E("s_barrier")
        for x in inter: E(x)
    def bump():
        return ring_advance(cfg,38)+[f"v_add_u32 v{vx[u]}, s38, v{vxb[u]}" for u in range(4)]
    def pstamp():
        if cfg.stamps==2:
            E("s_sub_u32 s72, s72, s60"); E("v_mov_b32 v251, s72"); E("v_cmp_eq_u32 vcc, s75, v2"); E("s_add_u32 s75, s75, 1"); E("s_nop 0"); E("v_cndmask_b32 v250, v250, v251, vcc")
    def phase(j):
        if cfg.stamps==2: E("s_memtime s[72:73]")
        cw = cfg.cw and cfg.stamps!=2
        if j==0:
            for r in reads(0,0): E(r)
        else: mfmas(1,False,reads(j,0),cfg.rd2)
        if not cw: E("s_waitcnt lgkmcnt(0)")
        pstamp()
        mfmas(0,j==0,reads(j,1),cfg.rd2,6 if cw else 0)
        if not cw: E("s_waitcnt lgkmcnt(0)")
        mfmas(1,False,reads(j,2),cfg.rd2,6 if cw else 0)
        if not cw: E("s_waitcnt lgkmcnt(0)")
        early = cfg.bpos<8 and not cfg.bw
        mfmas(0,False,reads(j,3)+bump(),2,6 if cw else 0, cfg.bpos if early else 99)
        if early: return
        E("s_waitcnt lgkmcnt(0)")
        if cfg.bw: E("s_memtime s[88:89]")
        if j<NST-1: E("s_barrier")
        if cfg.bw:
            E("s_memtime s[90:91]"); E("s_waitcnt lgkmcnt(0)"); E("s_sub_u32 s90, s90, s88")
            E("s_add_u32 s86, s86, s90")
    def store_ops(b):
        ops=[]
        for r in range(16):
            t=T+2*r
            if cfg.off:
                import struct
                h=struct.unpack("<I",struct.pack("<f",float(cfg.off)))[0]
                for jj in range(4): ops.append(f"v_add_f32 v{acc(b,jj)+r}, {h:#x}, v{acc(b,jj)+r}")
            ops.append(f"v_cvt_pk_bf16_f32 v{t}, v{acc(b,0)+r}, v{acc(b,1)+r}")
            ops.append(f"v_cvt_pk_bf16_f32 v{t+1}, v{acc(b,2)+r}, v{acc(b,3)+r}")
            row=32*b+8*(r>>2)+(r&3)
            ops.append(f"s_mov_b32 s36, {row*OROW}")
            ops.append(f"buffer_store_dwordx2 v[{t}:{t+1}], v{vo}, s[24:27], s36 offen {cfg.stpol if (b==0 or cfg.stpol2 is None) else cfg.stpol2}")
        return ops
    phase(0)
    last = NST-2 if cfg.tail else NST
    if cfg.loop:
        n=(last-1)//2
        loopify(E,phase,1,n,2,"L_c_loop")
        for j in range(1+2*n,last): phase(j)
    else:
        for j in range(1,last): phase(j)
    if cfg.tail and cfg.etail:
        E("s_and_b32 s42, s2, 7"); E(f"s_cmp_ge_u32 s42, {cfg.etail}"); E("s_cbranch_scc1 L_tail")
        for j in range(last,NST): phase(j)
        mfmas(1,False,[])
        stamp(E,cfg,3)
        E("s_nop 7"); E("s_nop 7")
        for b in range(2):
            for x in store_ops(b): E(x)
        E("s_branch L_done")
        E("L_tail:")
    if not cfg.tail:
        mfmas(1,False,[])
        stamp(E,cfg,3)
        if cfg.sdelay:
            E("s_memrealtime s[80:81]"); E("s_waitcnt lgkmcnt(0)")
            E("L_sd:"); E("s_memrealtime s[82:83]"); E("s_waitcnt lgkmcnt(0)"); E("s_sub_u32 s82, s82, s80"); E(f"s_cmp_lt_u32 s82, {cfg.sdelay}"); E("s_cbranch_scc1 L_sd")
        E("s_nop 7"); E("s_nop 7")
        for b in range(2):
            for x in store_ops(b): E(x)
    else:
        seq=[(14,0,u) for u in range(4)]+[(14,1,0)]+[(15,0,u) for u in range(4)]+[(14,1,u) for u in range(1,4)]+[(15,1,u) for u in range(4)]
        if cfg.tb==4: seq=[(14,0,u) for u in range(4)]+[(15,0,u) for u in range(4)]+[(14,1,u) for u in range(4)]+[(15,1,u) for u in range(4)]
        if cfg.tb==6: seq=[(14,0,u) for u in range(4)]+[(14,1,0),(14,1,1)]+[(15,0,u) for u in range(4)]+[(14,1,u) for u in range(2,4)]+[(15,1,u) for u in range(4)]
        first15=[i for i,h in enumerate(seq) if h[0]==15][0]
        doneb0=max(i for i,h in enumerate(seq) if h[1]==0)
        SX=(XF[0],196,XF[1]); SW=(WF[0],200,WF[1])
        s15=(15%cfg.NX)*XSLOT
        def hreads(i):
            (st,b,u)=seq[i]; k=i%3
            xa = vx[u] if st==14 else vxb[u]
            R=[f"ds_read_b128 v[{SX[k]}:{SX[k]+3}], v{xa} offset:{b*4096+(0 if st==14 else s15)}"]
            R+=[f"ds_read_b128 v[{SW[k]+4*jj}:{SW[k]+4*jj+3}], v{vw} offset:{(st%2)*WSLOT+(u*4+jj)*1024}" for jj in range(4)]
            return R
        assert s15+4096+0<65536
        if cfg.stamps==2: E("s_memtime s[72:73]")
        mfmas(1,False,hreads(0)+hreads(1),2)
        so=[]
        for i,(st,b,u) in enumerate(seq):
            k=i%3
            if i+2==first15:
                E("s_waitcnt lgkmcnt(5)"); E("s_barrier")
            elif i+1<len(seq): E(f"s_waitcnt lgkmcnt(5)")
            else: E("s_waitcnt lgkmcnt(0)")
            if i==0: pstamp()
            nxt=hreads(i+2) if i+2<len(seq) else []
            if i==doneb0+2: so=store_ops(0)
            left=len(seq)-i
            for jj in range(4):
                mfma(acc(b,jj),SX[k],SW[k]+4*jj)
                for _ in range(2 if jj==0 else 1):
                    if nxt: E(nxt.pop(0))
                if so:
                    slots=(left*4-jj)
                    n=-(-len(so)//slots)
                    for _ in range(n):
                        if so: E(so.pop(0))
            assert not nxt
        assert not so
        stamp(E,cfg,3)
        E("s_nop 7"); E("s_nop 7")
        for x in store_ops(1): E(x)
        if cfg.etail: E("L_done:")
    if cfg.stamps or cfg.enc: stamp(E,cfg,4); E("s_waitcnt vmcnt(0)")
    finish(E,cfg,True)

def ablate(L,cfg):
    R=[]
    if 'H' in cfg.abl or 'G' in cfg.abl:
        idx=[i for i,x in enumerate(L) if x.startswith("buffer_store") and "s[24:27]" in x]
        drop=set(idx[-8:] if 'H' in cfg.abl else idx[-16:])
        L=[x for i,x in enumerate(L) if i not in drop]
    for x in L:
        if 'V' in cfg.abl and (x.startswith("v_fma_f32") or (x.startswith("v_mul_f32") and "0x" not in x and int(x.split()[1][1:-1])>=64) or (x.startswith("v_cvt_pk") and int(x.split()[1][1:-1])<64)): continue
        if 'X' in cfg.abl and x.endswith(" lds"): continue
        if 'W' in cfg.abl and x.startswith("buffer_load") and "s[20:23]" in x: continue
        if 'M' in cfg.abl and x.startswith("v_mfma"): continue
        if 'D' in cfg.abl and x.startswith("ds_write") and "v10," not in x: continue
        if 'R' in cfg.abl and x.startswith("ds_read") and int(x.split()[1][2:].split(":")[0])>=128: continue
        if 'S' in cfg.abl and x.startswith("buffer_store") and "s[24:27]" in x: continue
        R.append(x)
    return R
def generate(cfg):
    out=[header(cfg)]
    E=Emit(); common_prologue(E,cfg); out+=E.L
    E=Emit(); producer(E,cfg); out+=E.L
    if cfg.helper:
        E=Emit(); helper(E,cfg); out+=E.L
    E=Emit(); consumer(E,cfg); out+=E.L
    out.append("L_exit:"); out.append("s_endpgm"); out.append("L_codeend:")
    return "\n".join(ablate(out,cfg))+footer(cfg)

if __name__=="__main__":
    kw={}
    for a in sys.argv[2:]:
        k,v=a.split("="); kw[k]=v.replace("_"," ") if k in ("stpol","abl","wpos","enc","gv","stpol2","off","rho") else int(v)
    open(sys.argv[1],"w").write(generate(Cfg(**kw)))
```

```python
import sys
KN = "standalone__weight_only_int_omniquant__prompt_kernel"
M, K, N = 2048, 1024, 3584
QROW, OROW = N*4, N*2
NST = 16
NX, XSLOT = 3, 32768
WSLOT = 16384
WBASE = NX*XSLOT
ABASE = WBASE + 2*WSLOT
LDS = ABASE + 4096
NWG = 224
STPOL = "sc1 nt"

def order(o, hi):
    key = lambda s: (s - (2 if ((s>>2)&1)==hi else 1) - 0.5) if s%4==o else s
    return sorted(range(NST), key=key)
TABS = [sum(s<<(4*i) for i,s in enumerate(order(o&3, o>>2))) for o in range(8)]

class Emit:
    def __init__(s): s.L=[]; s.vm=[]
    def __call__(s, x): s.L.append("    "+x)
    def label(s, x): s.L.append(x+":")
    def c(s, x): s.L.append("    ; "+x)
    def vmem(s, x, tag): s(x); s.vm.append(tag)
    def waitvm(s, tag, extra=""):
        idx=[i for i,t in enumerate(s.vm) if t==tag]
        n=min((len(s.vm)-1-idx[-1]) if idx else 63, 63)
        s(f"s_waitcnt vmcnt({n}){extra}")

def srd(E, base, ptr, off, size):
    E(f"s_add_u32 s{base}, s{ptr}, s{off}"); E(f"s_addc_u32 s{base+1}, s{ptr+1}, 0")
    E(f"s_sub_u32 s{base+2}, {size}, s{off}"); E(f"s_mov_b32 s{base+3}, 0x20000")

def bm_full(E):
    E("s_and_b32 s42, s2, 1"); E("s_lshl_b32 s42, s42, 2"); E("s_add_u32 s29, s29, s42")

def loopify(E, phase, j0, n, U, lab):
    E(f"s_mov_b32 s44, {n}")
    bodies=[]
    for it in range(n):
        mark=len(E.L)
        for j in range(j0+it*U, j0+(it+1)*U): phase(j)
        bodies.append(E.L[mark:]); del E.L[mark:]
    assert len({len(b) for b in bodies})==1
    merged=[]
    for tup in zip(*bodies):
        if len(set(tup))==1: merged.append(tup[0])
        else:
            assert all(x.strip().startswith("s_waitcnt vmcnt") for x in tup), tup
            merged.append(min(tup, key=lambda x:int(x.split("(")[1].split(")")[0])))
    E(".p2align 6"); E.label(lab)
    E.L.extend(merged)
    E("s_sub_u32 s44, s44, 1"); E("s_cmp_lg_u32 s44, 0"); E(f"s_cbranch_scc1 {lab}")

def prologue(E):
    E(f"s_cmp_ge_u32 s2, {NWG}"); E("s_cbranch_scc1 L_exit")
    E("s_load_dwordx4 s[4:7], s[0:1], 0"); E("s_load_dwordx4 s[12:15], s[0:1], 32"); E("s_load_dwordx4 s[8:11], s[0:1], 16")
    E("v_lshrrev_b32 v1, 6, v0"); E("v_and_b32 v2, 63, v0"); E("v_readfirstlane_b32 s28, v1")
    E.c("tile of this workgroup: ids with equal id%8 cover a 4 x 7 block of tiles (L2 locality, speed only)")
    E("s_and_b32 s45, s2, 7"); E("s_lshr_b32 s47, s2, 3"); E("s_lshr_b32 s30, s47, 2")
    E("s_lshr_b32 s31, s45, 1"); E("s_mul_i32 s31, s31, 7"); E("s_add_u32 s31, s30, s31")
    E("s_and_b32 s29, s47, 3")
    E("v_and_b32 v3, 31, v0"); E("v_bfe_u32 v1, v0, 5, 1")
    E("s_cmp_ge_u32 s28, 4"); E("s_cbranch_scc0 L_consumer")

def producer(E):
    RAW0, OUT, AV, SV, ZV = 64, 32, (48,56), 16, 20
    VQ, VX, vw, va = 200, 208, 7, 9
    raw = lambda st,e,j: RAW0 + (st%2)*32 + e*4 + j
    first = sum((TABS[o]&15)<<(4*o) for o in range(8))
    E.c("================ producer waves (4..7) ================")
    E.c("s46 = K-order class, s37 = first stage; lane (c = lane&31, kh = lane>>5) loads qw rows 16p+8kh+e, columns 4c..4c+3")
    E("s_add_u32 s46, s29, s30"); E("s_and_b32 s46, s46, 3"); E("s_and_b32 s42, s30, 4"); E("s_or_b32 s46, s46, s42")
    E("s_lshl_b32 s42, s46, 2"); E(f"s_lshr_b32 s37, {first:#x}, s42"); E("s_and_b32 s37, s37, 15")
    E("s_lshl_b32 s33, s31, 9"); E("s_lshl_b32 s35, s31, 8"); E("s_sub_u32 s31, s28, 4"); E("s_lshl_b32 s36, s31, 4")
    E("v_lshl_add_u32 v10, v1, 3, s36"); E(f"v_mul_u32_u24 v10, {QROW}, v10"); E(f"v_lshl_add_u32 v{VQ}, v3, 4, v10")
    for e in range(1,8): E(f"v_add_u32 v{VQ+e}, {e*QROW}, v{VQ}")
    E(f"s_mul_i32 s36, s37, {64*QROW}")
    E("s_waitcnt lgkmcnt(0)")
    srd(E,20,6,33,K*QROW)
    def advance():
        E("s_and_b32 s37, s52, 15"); E("s_lshr_b64 s[52:53], s[52:53], 4")
        E(f"s_mul_i32 s36, s37, {64*QROW}"); E("s_lshl_b32 s40, s37, 7")
    def ring():
        E(f"s_add_u32 s43, s43, {XSLOT}"); E("s_cmp_eq_u32 s43, s38"); E("s_cselect_b32 s43, s39, s43")
    def wload(st,e):
        r=raw(st,e,0); E.vmem(f"buffer_load_dwordx4 v[{r}:{r+3}], v{VQ+e}, s[20:23], s36 offen", ("W",st))
    def xdma(st,i):
        E.vmem(f"buffer_load_dwordx4 v{VX+i}, s[16:19], s40 offen offset:{(i%4)*1024} lds", ("X",st))
    M0A, M0B = "s_mov_b32 m0, s43", "s_add_u32 m0, s43, 4096"
    def aread(st, sreg):
        a=AV[st%2]
        E(f"v_lshl_add_u32 v12, s{sreg}, 1, v{va}")
        E(f"ds_read_b128 v[{a}:{a+3}], v12"); E(f"ds_read_b128 v[{a+4}:{a+7}], v12 offset:16")
    for e in range(8): wload(0,e)
    E.c("scales / zeros of this lane's 4 columns")
    E("v_lshl_add_u32 v10, v3, 3, s35")
    E.vmem("global_load_dwordx2 v[24:25], v10, s[8:9]", "SZ"); E.vmem("global_load_dwordx2 v[26:27], v10, s[10:11]", "SZ")
    E.c("x tile by LDS-DMA: 8 rows x 128 B per instruction, 16-byte chunks xor-swizzled by (row>>1)&7 on the source side")
    bm_full(E); E("s_lshl_b32 s32, s29, 19")
    srd(E,16,4,32,M*K*2)
    E("v_lshrrev_b32 v10, 3, v2"); E("v_and_b32 v12, 7, v2"); E("v_lshrrev_b32 v13, 4, v2"); E("v_xor_b32 v12, v12, v13")
    E("v_lshlrev_b32 v12, 4, v12"); E(f"v_lshl_add_u32 v{VX}, v10, 11, v12"); E(f"v_xor_b32 v{VX+1}, 64, v{VX}")
    for i in range(7,1,-1): E(f"v_add_u32 v{VX+i}, {i*16384-(i%4)*1024}, v{VX+i%2}")
    E(f"v_add_u32 v{VX+1}, {16384-1024}, v{VX+1}")
    E("s_lshl_b32 s39, s31, 13"); E("s_lshl_b32 s41, s31, 17"); E(f"s_add_u32 s38, s39, {NX*XSLOT}"); E("s_mov_b32 s43, s39")
    for i in range(8): E(f"v_add_u32 v{VX+i}, s41, v{VX+i}")
    E("s_lshl_b32 s40, s37, 7")
    for i in range(8):
        if i%4==0: E(M0A if i==0 else M0B); E("s_nop 0")
        xdma(0,i)
    ring(); E(M0A)
    E.c("K order: 16 stage numbers, 4 bits each")
    E(f"s_mov_b32 s52, {TABS[0]&0xffffffff:#x}"); E(f"s_mov_b32 s53, {TABS[0]>>32:#x}")
    for o in range(1,8):
        E(f"s_cmp_eq_u32 s46, {o}"); E(f"s_cselect_b32 s52, {TABS[o]&0xffffffff:#x}, s52"); E(f"s_cselect_b32 s53, {TABS[o]>>32:#x}, s53")
    E("s_lshr_b64 s[52:53], s[52:53], 4")
    E("s_lshl_b32 s42, s31, 12"); E(f"s_add_u32 s42, s42, {WBASE}"); E(f"v_lshl_add_u32 v{vw}, v2, 4, s42")
    E("s_lshl_b32 s42, s31, 6"); E(f"s_add_u32 s42, s42, {ABASE}"); E(f"v_lshl_add_u32 v{va}, v1, 5, s42")
    E("s_mov_b32 s47, s40")
    advance()
    E("s_barrier")
    aread(0,47)
    E.waitvm("SZ")
    E.c("S = s*2^100, Z = z*s*2^-49: fma(q_bits, S, -Z) = (q-z)*s*2^-49 with the integer read as an fp32 denormal (q*2^-149)")
    for j in range(4):
        for (src,dst) in ((24,SV),(26,ZV)):
            if j%2==0: E(f"v_lshlrev_b32 v{dst+j}, 16, v{src+j//2}")
            else: E(f"v_and_b32 v{dst+j}, 0xffff0000, v{src+j//2}")
    for j in range(4):
        E(f"v_mul_f32 v{ZV+j}, v{ZV+j}, v{SV+j}")
        E(f"v_mul_f32 v{SV+j}, 0x71800000, v{SV+j}")
        E(f"v_mul_f32 v{ZV+j}, 0x27000000, v{ZV+j}")
    E("s_setprio 2")
    def phase(j):
        st, nx = j+1, j+2
        a=AV[st%2]
        E.c("---- phase: dequantise the next step's weights, load qw and x two steps ahead")
        mem=[]
        if nx<NST:
            mem+=[(lambda e=e: wload(nx,e)) for e in range(8)]
            mem+=[(lambda i=i: (xdma(nx,i), (E(M0B) if i==3 else None))) for i in range(8)]
        for _ in range(2 if j>=0 else 0):
            if mem: mem.pop(0)()
        E.waitvm(("W",st), " lgkmcnt(0)")
        if nx<NST: aread(nx,40)
        sl=(st%2)*WSLOT
        work=[]; wr=[]
        for jj in range(4):
            for half in range(2):
                rs=range(4*half,4*half+4)
                for e in rs: r=raw(st,e,jj); work.append(f"v_fma_f32 v{r}, v{r}, v{SV+jj}, -v{ZV+jj}")
                for e in rs: r=raw(st,e,jj); work.append(f"v_mul_f32 v{r}, v{r}, v{a+e}")
                for p in (2*half,2*half+1):
                    work.append(f"v_cvt_pk_bf16_f32 v{OUT+4*jj+p}, v{raw(st,2*p,jj)}, v{raw(st,2*p+1,jj)}")
            wr.append(f"ds_write_b128 v{vw}, v[{OUT+4*jj}:{OUT+4*jj+3}] offset:{sl+jj*1024}")
        pos=[60,66,73,80] if mem else [20,40,60,80]
        for jj in (3,2,1,0): work.insert(pos[jj], wr[jj])
        nm=len(mem)-6 if len(mem)>6 else len(mem)
        nw=len(work); done=0
        for i,w in enumerate(work):
            E(w)
            while done<nm and (i+1)*(nm+1) >= (done+1)*nw: mem.pop(0)(); done+=1
        while mem: mem.pop(0)()
        if nx+1<NST: ring(); E(M0A); advance()
        E.waitvm(("X",st), " lgkmcnt(0)")
        E("s_barrier")
    phase(-1)
    loopify(E, phase, 0, 6, 2, "L_p_loop")
    for j in range(12,NST-1): phase(j)
    E("s_endpgm")

def consumer(E):
    ACC, XF, WF = 16, (144,152), (160,176)
    vxb, vx, vw, vo, T = (4,5,6,7), (192,193,194,195), 8, 9, 216
    acc = lambda b,j: ACC+(b*4+j)*16
    E.label("L_consumer")
    E.c("================ consumer waves (0..3): rows 64w..64w+63, all 128 columns ================")
    E("v_lshlrev_b32 v10, 3, v0")
    E("s_waitcnt lgkmcnt(0)")
    E.vmem("global_load_dwordx2 v[12:13], v10, s[12:13]","A")
    E.c("each workgroup reads its own 512-byte slice of this kernel's code (brings the code into L2 early)")
    E("s_getpc_b64 s[48:49]"); E.label("L_pc")
    E(f"s_sub_u32 s48, s48, L_pc-{KN}"); E("s_subb_u32 s49, s49, 0")
    E(f"s_mov_b32 s50, L_codeend-{KN}"); E("s_mov_b32 s51, 0x20000")
    E("s_lshl_b32 s43, s47, 9"); E("v_lshlrev_b32 v11, 6, v0"); E("v_add_u32 v14, s43, v11")
    E("v_cmp_gt_u32 vcc, 8, v0"); E("s_nop 1"); E("v_cndmask_b32 v11, -1, v14, vcc")
    E.vmem("buffer_load_dword v14, v11, s[48:51], 0 offen","PF")
    bm_full(E)
    E(f"s_mul_i32 s34, s29, {256*OROW}"); E("s_lshl_b32 s35, s31, 8"); E("s_add_u32 s34, s34, s35")
    srd(E,24,14,34,M*OROW)
    E.c("x fragment address: (64w + m)*128 + (((2u+kh) ^ ((m>>1)&7)) * 16)")
    E("v_bfe_u32 v11, v3, 1, 3"); E("v_xor_b32 v11, v11, v1"); E("v_lshlrev_b32 v11, 4, v11")
    E("s_lshl_b32 s36, s28, 13"); E("v_lshl_add_u32 v11, v3, 7, v11"); E("v_add_u32 v4, s36, v11")
    for u in range(1,4): E(f"v_xor_b32 v{vxb[u]}, {32*u}, v4")
    for u in range(4): E(f"v_mov_b32 v{vx[u]}, v{vxb[u]}")
    E(f"v_lshlrev_b32 v{vw}, 4, v2"); E(f"v_add_u32 v{vw}, {WBASE}, v{vw}")
    E(f"v_lshlrev_b32 v10, 4, v0"); E(f"v_add_u32 v10, {ABASE}, v10")
    E("s_mov_b32 s38, 0")
    E.waitvm("A")
    E.c("act_scale table: fp32 a*2^49")
    E("v_lshlrev_b32 v16, 16, v12"); E("v_and_b32 v17, 0xffff0000, v12"); E("v_lshlrev_b32 v18, 16, v13"); E("v_and_b32 v19, 0xffff0000, v13")
    for i in range(4): E(f"v_mul_f32 v{16+i}, 0x58000000, v{16+i}")
    E("ds_write_b128 v10, v[16:19]")
    E("s_lshl_b32 s36, s28, 6"); E("v_lshl_add_u32 v11, v1, 2, s36"); E(f"v_mul_u32_u24 v11, {OROW}, v11")
    E(f"v_lshl_add_u32 v{vo}, v3, 3, v11")
    E("s_setprio 1")
    E("s_waitcnt lgkmcnt(0)")
    E("s_barrier"); E("s_barrier")
    def reads(j,u):
        s=u%2
        xr=lambda b: f"ds_read_b128 v[{XF[s]+4*b}:{XF[s]+4*b+3}], v{vx[u]} offset:{b*4096}"
        wr=lambda jj: f"ds_read_b128 v[{WF[s]+4*jj}:{WF[s]+4*jj+3}], v{vw} offset:{(j%2)*WSLOT+(u*4+jj)*1024}"
        return [xr(0)]+[wr(jj) for jj in range(4)]+[xr(1)]
    def mfma(a,xa,wa,first=False):
        E(f"v_mfma_f32_32x32x16_bf16 v[{a}:{a+15}], v[{xa}:{xa+3}], v[{wa}:{wa+3}], {'0' if first else f'v[{a}:{a+15}]'}")
    def mfmas(s,first,inter,per=1,pend=0):
        inter=list(inter); issued=0; g=0; need=[2,3,4,5,6]
        for b in range(2):
            for jj in (range(4) if b==0 else range(3,-1,-1)):
                if pend and g<5: E(f"s_waitcnt lgkmcnt({pend-need[g]+issued})")
                mfma(acc(b,jj),XF[s]+4*b,WF[s]+4*jj,first)
                for _ in range(per):
                    if inter:
                        x=inter.pop(0); E(x); issued+=x.startswith("ds_read")
                g+=1
        assert not inter
    bump=[f"s_add_u32 s38, s38, {XSLOT}", f"s_cmp_eq_u32 s38, {NX*XSLOT}", "s_cselect_b32 s38, 0, s38"]+[f"v_add_u32 v{vx[u]}, s38, v{vxb[u]}" for u in range(4)]
    def phase(j):
        E.c("---- phase: one K step of 64 (the MFMAs trail the LDS reads by one k16 group)")
        if j==0:
            for r in reads(0,0): E(r)
        else: mfmas(1,False,reads(j,0))
        mfmas(0,j==0,reads(j,1),1,6)
        mfmas(1,False,reads(j,2),1,6)
        mfmas(0,False,reads(j,3)+bump,2,6)
        E("s_waitcnt lgkmcnt(0)")
        E("s_barrier")
    def store_ops(b):
        ops=[]
        for r in range(16):
            t=T+2*r
            ops.append(f"v_cvt_pk_bf16_f32 v{t}, v{acc(b,0)+r}, v{acc(b,1)+r}")
            ops.append(f"v_cvt_pk_bf16_f32 v{t+1}, v{acc(b,2)+r}, v{acc(b,3)+r}")
            ops.append(f"s_mov_b32 s36, {(32*b+8*(r>>2)+(r&3))*OROW}")
            ops.append(f"buffer_store_dwordx2 v[{t}:{t+1}], v{vo}, s[24:27], s36 offen {STPOL}")
        return ops
    phase(0)
    loopify(E, phase, 1, 6, 2, "L_c_loop")
    phase(13)
    E.c("---- last two steps by half tiles: rows 0-31 finish first and are stored under the MFMAs of rows 32-63")
    seq=[(st,b,u) for b in range(2) for st in (14,15) for u in range(4)]
    SX, SW = (XF[0],196,XF[1]), (WF[0],200,WF[1])
    def hreads(i):
        (st,b,u)=seq[i]; k=i%3
        R=[f"ds_read_b128 v[{SX[k]}:{SX[k]+3}], v{vx[u] if st==14 else vxb[u]} offset:{b*4096+(0 if st==14 else (15%NX)*XSLOT)}"]
        return R+[f"ds_read_b128 v[{SW[k]+4*jj}:{SW[k]+4*jj+3}], v{vw} offset:{(st%2)*WSLOT+(u*4+jj)*1024}" for jj in range(4)]
    mfmas(1,False,hreads(0)+hreads(1),2)
    so=[]
    for i,(st,b,u) in enumerate(seq):
        k=i%3
        E(f"s_waitcnt lgkmcnt({5 if i+1<len(seq) else 0})")
        if i+2==4: E("s_barrier")
        nxt=hreads(i+2) if i+2<len(seq) else []
        if i==9: so=store_ops(0)
        for jj in range(4):
            mfma(acc(b,jj),SX[k],SW[k]+4*jj)
            for _ in range(2 if jj==0 else 1):
                if nxt: E(nxt.pop(0))
            if so:
                for _ in range(-(-len(so)//((len(seq)-i)*4-jj))):
                    if so: E(so.pop(0))
    assert not so
    E("s_nop 7"); E("s_nop 7")
    for x in store_ops(1): E(x)
    E("s_endpgm")

HEADER = f"""; out[2048,3584] = (x * act_scale) @ ((qw - zeros) * scales): fused weight dequantisation + bf16 GEMM, fp32 accumulation.
;
; @launch grid=({NWG},1,1) block=(512,1,1) lds={LDS}
.amdgcn_target "amdgcn-amd-amdhsa--gfx950"
.text
.globl {KN}
.p2align 8
.type {KN},@function
{KN}:
"""
FOOTER = f"""
.section .rodata,"a"
.p2align 6
.amdhsa_kernel {KN}
  .amdhsa_next_free_vgpr 256
  .amdhsa_next_free_sgpr 96
  .amdhsa_accum_offset 256
  .amdhsa_group_segment_fixed_size 0
  .amdhsa_kernarg_size 64
  .amdhsa_user_sgpr_count 2
  .amdhsa_user_sgpr_kernarg_segment_ptr 1
  .amdhsa_system_sgpr_workgroup_id_x 1
  .amdhsa_float_denorm_mode_32 3
.end_amdhsa_kernel
"""
def generate():
    out=[]
    for part in (prologue, producer, consumer):
        E=Emit(); part(E); out+=E.L
    out+=["L_exit:", "    s_endpgm", "L_codeend:"]
    return HEADER+"\n".join(out)+FOOTER
if __name__=="__main__":
    open(sys.argv[1],"w").write(generate())
```

```python
import sys
KN = "standalone__weight_only_int_omniquant__prompt_kernel"
M, K, N = 2048, 1024, 3584
QROW = N*4
OROW = N*2
NST = 16
XSLOT = 32768
WSLOT = 16384
NWG = 224

class Cfg:
    def __init__(s, **kw):
        s.NX = 3; s.XL = 2
        s.RW = 2; s.LW = 1; s.U = 2
        s.stamps = 0; s.prio = 1; s.pprio = 2; s.codepf = 1; s.loop = 1
        s.spin = 0; s.stpol = 'sc1 nt'; s.abl = ''
        s.g = 1; s.g2 = 2; s.start = 0; s.xrot = 0; s.dfirst = 2; s.xfirst = 0; s.tailv = 6
        s.wpos = '60 66 73 80'; s.snake = 1; s.tail = 1; s.tb = 4; s.cvt = 0; s.enc = ''; s.tlb = 0; s.pf = 0; s.pf0 = 0; s.pfw = 0; s.cw = 1; s.rd2 = 1; s.bw = 0; s.gv = ''; s.stpol2 = None; s.pre = 0; s.szf = 0; s.diag = 0; s.bpos = 8; s.off = ''; s.cmode = 0; s.helper = 0; s.hstart = 3; s.hend = 8; s.hx = 0; s.rho = ''; s.xmap = 0; s.sdelay = 0; s.etail = 0
        s.__dict__.update(kw)
        if s.rho: s.xrot = 0
        s.WBASE = s.NX*XSLOT
        s.ABASE = s.WBASE + 2*WSLOT
        s.LDS = s.ABASE + 4096

def order(o, hi, cfg):
    if cfg.g==0: return list(range(NST))
    def key(s):
        if s%4==o and s>=cfg.start:
            g = cfg.g2 if ((s>>2)&1)==hi else cfg.g
            if cfg.gv:
                t=cfg.gv.split()[s>>2]; g=int(t[1] if ((s>>2)&1)==hi else t[0])
                if g==0: return s
            return s-g-0.5
        return s
    return sorted(range(NST), key=key)
def table(o,hi,cfg):
    v=0
    for i,s in enumerate(order(o,hi,cfg)): v|=s<<(4*i)
    return v

class Emit:
    def __init__(s): s.L=[]; s.vm=[]
    def __call__(s, x): s.L.append(x)
    def vmem(s, x, tag): s.L.append(x); s.vm.append(tag)
    def waitvm(s, tag, extra=""):
        idx=[i for i,t in enumerate(s.vm) if t==tag]
        n=(len(s.vm)-1-idx[-1]) if idx else 63
        n=min(n,63)
        s.L.append(f"s_waitcnt vmcnt({n}){extra}")
        return n

def stamp(E, cfg, i):
    if cfg.stamps or cfg.enc: E(f"s_memtime s[{60+2*i}:{61+2*i}]")

def header(cfg):
    return f"""; Fused int4-weight dequant + bf16 GEMM: out[2048,3584] = (x*act) @ ((qw-z)*s); one 256x128 tile per workgroup.
; Waves 0-3 multiply (v_mfma 32x32x16, operands from LDS); waves 4-7 stream x into LDS (LDS-DMA) and turn qw into bf16.
; @launch grid=({256 if cfg.helper else NWG},1,1) block=(512,1,1) lds={cfg.LDS}
.amdgcn_target "amdgcn-amd-amdhsa--gfx950"
.text
.globl {KN}
.p2align 8
.type {KN},@function
{KN}:
"""
def footer(cfg):
    return f"""
.section .rodata,"a"
.p2align 6
.amdhsa_kernel {KN}
  .amdhsa_next_free_vgpr 256
  .amdhsa_next_free_sgpr 96
  .amdhsa_accum_offset 256
  .amdhsa_group_segment_fixed_size 0
  .amdhsa_kernarg_size 64
  .amdhsa_user_sgpr_count 2
  .amdhsa_user_sgpr_kernarg_segment_ptr 1
  .amdhsa_system_sgpr_workgroup_id_x 1
  .amdhsa_float_denorm_mode_32 3
.end_amdhsa_kernel
"""
def common_prologue(E, cfg):
    if cfg.spin or cfg.enc: E("s_memrealtime s[80:81]")
    if cfg.stamps: E("s_memrealtime s[76:77]")
    stamp(E,cfg,0)
    if cfg.bw: E("s_mov_b32 s86, 0")
    E(f"s_cmp_ge_u32 s2, {256 if cfg.helper else NWG}"); E("s_cbranch_scc1 L_exit")
    E("s_load_dwordx4 s[4:7], s[0:1], 0")
    E("s_load_dwordx4 s[12:15], s[0:1], 32")
    E("s_load_dwordx4 s[8:11], s[0:1], 16")
    if cfg.stamps: E("s_load_dwordx2 s[58:59], s[0:1], 56")
    E("v_lshrrev_b32 v1, 6, v0")
    E("v_and_b32 v2, 63, v0")
    E("v_readfirstlane_b32 s28, v1")
    E("s_and_b32 s45, s2, 7")
    E("s_lshr_b32 s47, s2, 3")
    E("s_lshr_b32 s30, s47, 2")
    if cfg.xmap:
        E("s_lshl_b32 s31, s45, 2"); E(f"s_lshr_b32 s31, {XM[cfg.xmap][0]:#x}, s31"); E("s_and_b32 s31, s31, 3")
    else: E("s_lshr_b32 s31, s45, 1")
    E("s_mul_i32 s31, s31, 7"); E("s_add_u32 s31, s30, s31")
    E("s_and_b32 s29, s47, 3")
    E("v_and_b32 v3, 31, v0")
    E("v_bfe_u32 v1, v0, 5, 1")
    if cfg.helper: E(f"s_cmp_ge_u32 s2, {NWG}"); E("s_cbranch_scc1 L_helper")
    E("s_cmp_ge_u32 s28, 4")
    E("s_cbranch_scc0 L_consumer")

XM={1:(0x33221010,0xA6), 2:(0x32103210,0xF0), 3:(0x33221100,0x66), 4:(0x31022310,0xB2)}
def bm_full(E,cfg=None):
    if cfg is not None and cfg.xmap:
        E("s_and_b32 s42, s2, 7"); E(f"s_lshr_b32 s42, {XM[cfg.xmap][1]:#x}, s42"); E("s_and_b32 s42, s42, 1")
    else: E("s_and_b32 s42, s2, 1")
    E("s_lshl_b32 s42, s42, 2"); E("s_add_u32 s29, s29, s42")

def build_srd(E, base, ptr, off, size):
    E(f"s_add_u32 s{base}, s{ptr}, s{off}"); E(f"s_addc_u32 s{base+1}, s{ptr+1}, 0")
    E(f"s_sub_u32 s{base+2}, {size}, s{off}"); E(f"s_mov_b32 s{base+3}, 0x20000")

def nextstage(E, cfg, pair, dst):
    if cfg.xrot:
        E(f"s_add_u32 s{dst}, s{pair}, s45"); E(f"s_and_b32 s{dst}, s{dst}, 15")
    else: E(f"s_and_b32 s{dst}, s{pair}, 15")
    E(f"s_lshr_b64 s[{pair}:{pair+1}], s[{pair}:{pair+1}], 4")

def ring_advance(cfg, r):
    return [f"s_add_u32 s{r}, s{r}, {XSLOT}", f"s_cmp_eq_u32 s{r}, {cfg.NX*XSLOT}", f"s_cselect_b32 s{r}, 0, s{r}"]

def loopify(E, phase, j0, n, U, lab):
    E(f"s_mov_b32 s44, {n}")
    bodies=[]
    for it in range(n):
        mark=len(E.L)
        for j in range(j0+it*U,j0+(it+1)*U): phase(j)
        bodies.append(E.L[mark:]); del E.L[mark:]
    assert len(set(len(b) for b in bodies))==1
    merged=[]
    for tup in zip(*bodies):
        if len(set(tup))==1: merged.append(tup[0])
        else:
            assert all(x.startswith("s_waitcnt vmcnt") for x in tup), tup
            merged.append(min(tup,key=lambda x:int(x.split("(")[1].split(")")[0])))
    E(".p2align 6"); E(lab+":")
    E.L.extend(merged)
    E("s_sub_u32 s44, s44, 1"); E("s_cmp_lg_u32 s44, 0"); E(f"s_cbranch_scc1 {lab}")

def producer(E, cfg):
    RAW0 = 64
    OUT, AV, SV, ZV = 32, (48,56), 16, 20
    VQ, VX, vw, va = 200, 208, 7, 9
    def raw(st,e,j): return RAW0 + (st%cfg.RW)*32 + e*4 + j
    tabs=[table(o&3,o>>2,cfg) for o in range(8)]
    first=0
    for o in range(8): first|=(tabs[o]&15)<<(4*o)
    E("s_sub_u32 s31, s28, 4") if False else None
    if cfg.cmode==0:
        E("s_add_u32 s46, s29, s30"); E("s_and_b32 s46, s46, 3"); E("s_and_b32 s42, s30, 4"); E("s_or_b32 s46, s46, s42")
    elif cfg.cmode in (1,4):
        E("s_lshr_b32 s46, s30, 1"); E("s_add_u32 s46, s46, s29"); E("s_and_b32 s46, s46, 3")
        if cfg.cmode==4: E("s_and_b32 s42, s30, 1"); E("s_lshl_b32 s42, s42, 2"); E("s_or_b32 s46, s46, s42")
    elif cfg.cmode in (2,5):
        E("s_mov_b32 s46, s29")
        if cfg.cmode==5: E("s_and_b32 s42, s30, 1"); E("s_lshl_b32 s42, s42, 2"); E("s_or_b32 s46, s46, s42")
    elif cfg.cmode==3:
        E("s_lshr_b32 s46, s30, 2"); E("s_add_u32 s46, s46, s29"); E("s_and_b32 s46, s46, 3")
    assert cfg.xrot in (0,8) and cfg.XL==2
    if cfg.rho:
        rho=[int(c) for c in cfg.rho]
        rm=lambda t: sum(((rho[((t>>(4*i))&15)>>2]<<2)|((t>>(4*i))&3))<<(4*i) for i in range(16))
        tabs=tabs+[rm(t) for t in tabs]
        first2=0
        for o in range(8): first2|=(tabs[8+o]&15)<<(4*o)
        E("s_lshl_b32 s42, s46, 2")
        if first2!=first:
            E("s_bitcmp1_b32 s2, 0"); E(f"s_mov_b32 s37, {first:#x}"); E(f"s_cselect_b32 s37, {first2:#x}, s37"); E("s_lshr_b32 s37, s37, s42")
        else: E(f"s_lshr_b32 s37, {first:#x}, s42")
    else:
        E("s_lshl_b32 s42, s46, 2"); E(f"s_lshr_b32 s37, {first:#x}, s42")
    E("s_and_b32 s37, s37, 15")
    if cfg.xrot:
        E("s_and_b32 s45, s2, 1"); E("s_lshl_b32 s45, s45, 3"); E("s_xor_b32 s37, s37, s45")
    E("s_lshl_b32 s33, s31, 9")
    E("s_lshl_b32 s35, s31, 8")
    E("s_sub_u32 s31, s28, 4")
    E("s_lshl_b32 s36, s31, 4")
    E("v_lshl_add_u32 v10, v1, 3, s36")
    E(f"v_mul_u32_u24 v10, {QROW}, v10")
    E(f"v_lshl_add_u32 v{VQ}, v3, 4, v10")
    for e in range(1,8): E(f"v_add_u32 v{VQ+e}, {e*QROW}, v{VQ}")
    E(f"s_mul_i32 s36, s37, {64*QROW}")
    E("s_waitcnt lgkmcnt(0)")
    stamp(E,cfg,1)
    build_srd(E,20,6,33,K*QROW)
    def advance():
        if cfg.LW==2: E("s_lshl_b32 s40, s37, 7")
        E("s_and_b32 s37, s52, 15"); E("s_lshr_b64 s[52:53], s[52:53], 4")
        E(f"s_mul_i32 s36, s37, {64*QROW}")
        if cfg.LW==1: E("s_lshl_b32 s40, s37, 7")
    def ring():
        E(f"s_add_u32 s43, s43, {XSLOT}"); E("s_cmp_eq_u32 s43, s38"); E("s_cselect_b32 s43, s39, s43")
    def wload(st,e):
        r=raw(st,e,0)
        E.vmem(f"buffer_load_dwordx4 v[{r}:{r+3}], v{VQ+e}, s[20:23], s36 offen", ("W",st))
    def xdma(st,i):
        E.vmem(f"buffer_load_dwordx4 v{VX+i}, s[16:19], s40 offen offset:{(i%4)*1024} lds", ("X",st))
    M0A="s_mov_b32 m0, s43"; M0B="s_add_u32 m0, s43, 4096"
    def aread(st):
        a=AV[st%2]
        E(f"v_lshl_add_u32 v12, s40, 1, v{va}")
        E(f"ds_read_b128 v[{a}:{a+3}], v12"); E(f"ds_read_b128 v[{a+4}:{a+7}], v12 offset:16")
    if cfg.diag==2:
        wload(0,0); E("s_waitcnt vmcnt(0)"); stamp(E,cfg,2)
    for e in range(8): wload(0,e)
    if cfg.diag==1: E("s_waitcnt vmcnt(0)"); stamp(E,cfg,2)
    E("v_lshl_add_u32 v10, v3, 3, s35")
    E.vmem("global_load_dwordx2 v[24:25], v10, s[8:9]", "SZ")
    E.vmem("global_load_dwordx2 v[26:27], v10, s[10:11]", "SZ")
    if cfg.diag: E("s_waitcnt vmcnt(0)"); stamp(E,cfg,3)
    bm_full(E,cfg); E("s_lshl_b32 s32, s29, 19")
    build_srd(E,16,4,32,M*K*2)
    E("v_lshrrev_b32 v10, 3, v2"); E("v_and_b32 v12, 7, v2"); E("v_lshrrev_b32 v13, 4, v2"); E("v_xor_b32 v12, v12, v13")
    E("v_lshlrev_b32 v12, 4, v12"); E(f"v_lshl_add_u32 v{VX}, v10, 11, v12"); E(f"v_xor_b32 v{VX+1}, 64, v{VX}")
    for i in range(7,1,-1): E(f"v_add_u32 v{VX+i}, {i*16384-(i%4)*1024}, v{VX+i%2}")
    E(f"v_add_u32 v{VX+1}, {16384-1024}, v{VX+1}")
    E("s_lshl_b32 s39, s31, 13"); E("s_lshl_b32 s41, s31, 17"); E(f"s_add_u32 s38, s39, {cfg.NX*XSLOT}"); E("s_mov_b32 s43, s39")
    for i in range(8): E(f"v_add_u32 v{VX+i}, s41, v{VX+i}")
    E("s_lshl_b32 s40, s37, 7")
    for i in range(8):
        if i%4==0: E(M0A if i==0 else M0B); E("s_nop 0")
        xdma(0,i)
    if cfg.diag: E("s_waitcnt vmcnt(0)"); stamp(E,cfg,4)
    ring(); E(M0A)
    if cfg.rho: E("s_and_b32 s42, s2, 1"); E("s_lshl_b32 s42, s42, 3"); E("s_or_b32 s46, s46, s42")
    E(f"s_mov_b32 s52, {tabs[0]&0xffffffff:#x}"); E(f"s_mov_b32 s53, {tabs[0]>>32:#x}")
    for o in range(1,len(tabs)):
        if tabs[o]!=tabs[0]:
            E(f"s_cmp_eq_u32 s46, {o}"); E(f"s_cselect_b32 s52, {tabs[o]&0xffffffff:#x}, s52"); E(f"s_cselect_b32 s53, {tabs[o]>>32:#x}, s53")
    if cfg.xrot:
        E("s_mul_i32 s45, s45, 0x11111111"); E("s_xor_b32 s52, s52, s45"); E("s_xor_b32 s53, s53, s45")
    E("s_lshr_b64 s[52:53], s[52:53], 4")
    E("s_lshl_b32 s42, s31, 12"); E(f"s_add_u32 s42, s42, {cfg.WBASE}")
    E(f"v_lshl_add_u32 v{vw}, v2, 4, s42")
    E("s_lshl_b32 s42, s31, 6"); E(f"s_add_u32 s42, s42, {cfg.ABASE}")
    E(f"v_lshl_add_u32 v{va}, v1, 5, s42")
    E("s_mov_b32 s47, s40")
    if cfg.LW==2:
        E("s_and_b32 s37, s52, 15"); E("s_lshr_b64 s[52:53], s[52:53], 4"); E(f"s_mul_i32 s36, s37, {64*QROW}")
        for e in range(8): wload(1,e)
    advance()
    if cfg.LW==1:
        for e in range(cfg.pre): wload(1,e)
    if not cfg.diag: stamp(E,cfg,2)
    E("s_barrier")
    if not cfg.diag: stamp(E,cfg,3)
    E(f"v_lshl_add_u32 v12, s47, 1, v{va}")
    E(f"ds_read_b128 v[{AV[0]}:{AV[0]+3}], v12"); E(f"ds_read_b128 v[{AV[0]+4}:{AV[0]+7}], v12 offset:16")
    E.waitvm("SZ")
    for j in range(4):
        for (src,dst) in ((24,SV),(26,ZV)):
            if j%2==0: E(f"v_lshlrev_b32 v{dst+j}, 16, v{src+j//2}")
            else: E(f"v_and_b32 v{dst+j}, 0xffff0000, v{src+j//2}")
    for j in range(4):
        E(f"v_mul_f32 v{ZV+j}, v{ZV+j}, v{SV+j}")
        if cfg.cvt:
            E(f"v_mul_f32 v{SV+j}, 1.0, v{SV+j}")
        else:
            E(f"v_mul_f32 v{SV+j}, 0x71800000, v{SV+j}")
            E(f"v_mul_f32 v{ZV+j}, 0x27000000, v{ZV+j}")
    if cfg.pprio: E(f"s_setprio {cfg.pprio}")
    def phase(j):
        st=j+1
        xs=j+cfg.XL; ws=st+cfg.LW
        a=AV[st%2]
        xi=[(lambda i=i: (xdma(xs,i), (E(M0B) if i==3 else None))) for i in range(8)] if xs<NST else []
        wi=[(lambda e=e: wload(ws,e)) for e in range(cfg.pre if (j==-1 and cfg.LW==1) else 0,8)] if ws<NST else []
        if cfg.xfirst==1: mem=xi+wi
        elif cfg.xfirst==0: mem=wi+xi
        else:
            mem=[]
            while xi or wi:
                if xi: mem.append(xi.pop(0))
                if wi: mem.append(wi.pop(0))
        for _ in range(cfg.dfirst if j>=0 else 0):
            if mem: mem.pop(0)()
        E.waitvm(("W",st), " lgkmcnt(0)")
        if j==-1 and not cfg.diag: stamp(E,cfg,4)
        if st+1<NST: aread(st+1)
        sl=(st%2)*WSLOT
        work=[]; wr=[]
        for jj in range(4):
            for half in range(2):
                rs=range(4*half,4*half+4)
                if cfg.cvt:
                    for e in rs: r=raw(st,e,jj); work.append(f"v_cvt_f32_i32 v{r}, v{r}")
                for e in rs: r=raw(st,e,jj); work.append(f"v_fma_f32 v{r}, v{r}, v{SV+jj}, -v{ZV+jj}")
                for e in rs: r=raw(st,e,jj); work.append(f"v_mul_f32 v{r}, v{r}, v{a+e}")
                for p in (2*half,2*half+1):
                    work.append(f"v_cvt_pk_bf16_f32 v{OUT+4*jj+p}, v{raw(st,2*p,jj)}, v{raw(st,2*p+1,jj)}")
            wr.append(f"ds_write_b128 v{vw}, v[{OUT+4*jj}:{OUT+4*jj+3}] offset:{sl+jj*1024}")
        per=len(work)//4
        pos=[int(x)*per//20 for x in cfg.wpos.split()] if (cfg.wpos and mem) else [per,2*per,3*per,4*per]
        for jj in (3,2,1,0):
            assert pos[jj]>=per*(jj+1)
            work.insert(pos[jj],wr[jj])
        nm=len(mem)-cfg.tailv if len(mem)>cfg.tailv else len(mem)
        nw=len(work); done=0
        for i,w in enumerate(work):
            E(w)
            while done<nm and (i+1)*(nm+1) >= (done+1)*nw: mem.pop(0)(); done+=1
        while mem: mem.pop(0)()
        if xs+1<NST: ring(); E(M0A)
        if ws+1<NST: advance()
        elif xs+1<NST: E("s_lshl_b32 s40, s37, 7")
        E.waitvm(("X",st), " lgkmcnt(0)")
        if cfg.bw: E("s_memtime s[88:89]")
        E("s_barrier")
        if cfg.bw:
            E("s_memtime s[90:91]"); E("s_waitcnt lgkmcnt(0)"); E("s_sub_u32 s90, s90, s88")
            E("s_add_u32 s86, s86, s90")
    U=cfg.U
    assert U%cfg.RW==0 and U%2==0
    last_full = min(NST-1-cfg.XL, NST-2-cfg.LW) - 1
    phase(-1)
    jn=0
    if cfg.loop:
        n=(last_full+1)//U
        if n>=2:
            loopify(E,phase,0,n,U,"L_p_loop"); jn=n*U
    for j in range(jn,NST-1): phase(j)
    finish(E,cfg,False)

def helper2(E,cfg):
    E("L_helper:")
    E("s_cmp_ge_u32 s45, 2"); E("s_cbranch_scc1 L_exit")
    E("s_sub_u32 s47, s47, 28"); E("s_lshl_b32 s47, s47, 1"); E("s_add_u32 s47, s47, s45"); E("s_lshl_b32 s47, s47, 9")
    E("v_add_u32 v4, s47, v0")
    E("s_waitcnt lgkmcnt(0)")
    E("s_mov_b32 s20, s6"); E("s_mov_b32 s21, s7"); E(f"s_mov_b32 s22, {K*QROW}"); E("s_mov_b32 s23, 0x20000")
    E(f"s_mov_b32 s36, {cfg.hstart*64*QROW+3584}")
    for it in range(cfg.hend):
        E(f"v_add_u32 v5, {it*4096}, v4"); E("v_mul_u32_u24 v6, 24967, v5"); E("v_lshrrev_b32 v6, 22, v6")
        E("v_mul_u32_u24 v7, 168, v6"); E("v_sub_u32 v7, v5, v7"); E(f"v_mul_u32_u24 v6, {QROW}, v6"); E("v_lshl_add_u32 v6, v7, 6, v6")
        E(f"buffer_load_dword v{16+it}, v6, s[20:23], s36 offen")
    E("s_endpgm")

def helper(E,cfg):
    if cfg.helper==2: return helper2(E,cfg)
    E("L_helper:")
    E("s_sub_u32 s47, s47, 28")
    E("s_bfe_u32 s33, s2, 0x20001"); E("s_mul_i32 s33, s33, 3584")
    E("s_lshl_b32 s31, s47, 4"); E("v_lshrrev_b32 v6, 5, v0"); E("v_add_u32 v6, s31, v6"); E(f"v_mul_u32_u24 v6, {QROW}, v6")
    E("v_and_b32 v7, 31, v0"); E("v_lshl_add_u32 v6, v7, 6, v6")
    E("v_add_u32 v8, 2048, v6"); E("v_cmp_gt_u32 vcc, 24, v7"); E("s_and_b32 s45, s2, 1"); E("s_lshl_b32 s45, s45, 3"); E("v_cndmask_b32 v7, -1, v8, vcc")
    if not cfg.xrot: E("s_mov_b32 s45, 0")
    E("s_waitcnt lgkmcnt(0)")
    build_srd(E,20,6,33,K*QROW)
    r=0
    for s in range(cfg.hstart,cfg.hend):
        E(f"s_xor_b32 s40, s45, {s}"); E(f"s_mul_i32 s41, s40, {64*QROW}")
        E(f"buffer_load_dword v{16+r}, v6, s[20:23], s41 offen"); r+=1
        E(f"buffer_load_dword v{16+r}, v7, s[20:23], s41 offen"); r+=1
    E("s_endpgm")

def finish(E,cfg,cons):
    if cfg.enc:
        role,a,b=cfg.enc.split(":")
        if (role=="c")==cons:
            E("s_waitcnt vmcnt(0)"); stamp(E,cfg,5); E("s_memrealtime s[82:83]"); E("s_waitcnt lgkmcnt(0)")
            if a=="r": E("s_sub_u32 s84, s82, s80")
            else: E(f"s_sub_u32 s84, s{60+2*int(b)}, s{60+2*int(a)}"); E("s_lshr_b32 s84, s84, 3")
            E("s_add_u32 s84, s84, 4000")
            lab=f"L_enc{len(E.L)}"
            E(lab+":"); E("s_memrealtime s[82:83]"); E("s_waitcnt lgkmcnt(0)"); E("s_sub_u32 s82, s82, s80")
            E(f"s_cmp_lt_u32 s82, s84"); E(f"s_cbranch_scc1 {lab}")
    if cfg.spin:
        lab=f"L_spin{len(E.L)}"
        E("s_waitcnt vmcnt(0)")
        E(lab+":"); E("s_memrealtime s[82:83]"); E("s_waitcnt lgkmcnt(0)"); E("s_sub_u32 s82, s82, s80")
        E(f"s_cmp_lt_u32 s82, {cfg.spin}"); E(f"s_cbranch_scc1 {lab}")
    if cfg.stamps:
        stamp(E,cfg,5)
        E("s_memrealtime s[78:79]")
        E("s_waitcnt lgkmcnt(0)")
        if cfg.bw: E("s_add_u32 s62, s60, s86")
        E("s_mov_b32 s48, s58"); E("s_mov_b32 s49, s59"); E("s_mov_b32 s50, 0x1000000"); E("s_mov_b32 s51, 0x20000")
        E("s_lshl_b32 s52, s2, 3"); E("s_add_u32 s52, s52, s28"); E("s_lshl_b32 s52, s52, 5")
        E("v_mov_b32 v10, s76"); E("v_mov_b32 v11, s78")
        for i,r in enumerate((62,64,66,68,70)):
            E(f"s_sub_u32 s{r}, s{r}, s60"); E(f"v_mov_b32 v{12+i}, s{r}")
        E("s_getreg_b32 s53, hwreg(HW_REG_HW_ID)"); E("v_mov_b32 v17, s53")
        E("v_mov_b32 v9, s52")
        E("s_mov_b64 exec, 1")
        E("buffer_store_dwordx4 v[10:13], v9, s[48:51], 0 offen")
        E("buffer_store_dwordx4 v[14:17], v9, s[48:51], 0 offen offset:16")
        if cfg.stamps==2 and cons:
            E("s_mov_b64 exec, 0xffff"); E("s_lshl_b32 s52, s2, 3"); E("s_add_u32 s52, s52, s28"); E("s_lshl_b32 s52, s52, 6"); E("s_add_u32 s52, s52, 0x10000")
            E("v_and_b32 v9, 63, v0"); E("v_lshlrev_b32 v9, 2, v9"); E("v_add_u32 v9, s52, v9")
            E("buffer_store_dword v250, v9, s[48:51], 0 offen")
    E("s_endpgm")

def consumer(E,cfg):
    ACC=16; XF=(144,152); WF=(160,176)
    vxb=(4,5,6,7); vx=(192,193,194,195); vw=8; vo=9
    T=216
    def acc(b,j): return ACC+(b*4+j)*16
    E("L_consumer:")
    E("v_lshlrev_b32 v10, 3, v0")
    E("s_waitcnt lgkmcnt(0)")
    E.vmem("global_load_dwordx2 v[12:13], v10, s[12:13]","A")
    if cfg.codepf:
        E("s_getpc_b64 s[48:49]"); E("L_pc:")
        E(f"s_sub_u32 s48, s48, L_pc-{KN}"); E("s_subb_u32 s49, s49, 0")
        E(f"s_mov_b32 s50, L_codeend-{KN}"); E("s_mov_b32 s51, 0x20000")
        E("s_lshl_b32 s43, s47, 9"); E("v_lshlrev_b32 v11, 6, v0"); E("v_add_u32 v14, s43, v11")
        E("v_cmp_gt_u32 vcc, 8, v0"); E("s_nop 1"); E("v_cndmask_b32 v11, -1, v14, vcc")
        E.vmem("buffer_load_dword v14, v11, s[48:51], 0 offen","PF")
    if cfg.pf:
        E("s_cmp_ge_u32 s45, 2"); E("s_cbranch_scc1 L_nopf")
        E("s_mul_i32 s36, s45, 28"); E("s_add_u32 s36, s36, s47"); E("s_lshl_b32 s36, s36, 8")
        E("v_add_u32 v11, s36, v0"); E("v_mul_u32_u24 v14, 24967, v11"); E("v_lshrrev_b32 v14, 22, v14")
        E("v_mul_u32_u24 v15, 168, v14"); E("v_sub_u32 v15, v11, v15")
        E(f"v_mul_u32_u24 v11, {QROW}, v14"); E("v_lshl_add_u32 v11, v15, 6, v11")
        E("v_cmp_gt_u32 vcc, 64, v14"); E("s_mov_b32 s20, s6"); E("s_mov_b32 s21, s7"); E("v_cndmask_b32 v11, -1, v11, vcc")
        E(f"s_mov_b32 s22, {K*QROW}"); E("s_mov_b32 s23, 0x20000")
        for st in range(cfg.pf0,cfg.pf0+cfg.pf):
            E(f"s_mov_b32 s36, {st*64*QROW+3584}")
            E(f"buffer_load_dword v{20+st}, v11, s[20:23], s36 offen")
        if cfg.pfw: E("s_waitcnt vmcnt(0)")
        E("L_nopf:")
        E.vm.append("A")
    bm_full(E,cfg)
    E(f"s_mul_i32 s34, s29, {256*OROW}"); E("s_lshl_b32 s35, s31, 8"); E("s_add_u32 s34, s34, s35")
    build_srd(E,24,14,34,M*OROW)
    if cfg.tlb&1:
        E("s_lshl_b32 s33, s31, 9"); build_srd(E,20,6,33,K*QROW)
        E("v_lshlrev_b32 v11, 21, v0"); E("v_cmp_gt_u32 vcc, 8, v0"); E("s_nop 1"); E("v_cndmask_b32 v11, -1, v11, vcc")
        E.vmem("buffer_load_dword v15, v11, s[20:23], 0 offen","PF")
    if cfg.tlb&2:
        E(f"v_mul_u32_u24 v11, {63*OROW}, v2"); E(f"s_mul_i32 s36, s28, {64*OROW}"); E("v_add_u32 v11, s36, v11")
        E("v_cmp_gt_u32 vcc, 2, v2"); E("s_nop 1"); E("v_cndmask_b32 v11, -1, v11, vcc")
        E.vmem("buffer_load_dword v15, v11, s[24:27], 0 offen","PF")
    E("v_bfe_u32 v11, v3, 1, 3"); E("v_xor_b32 v11, v11, v1"); E("v_lshlrev_b32 v11, 4, v11")
    E("s_lshl_b32 s36, s28, 13")
    E("v_lshl_add_u32 v11, v3, 7, v11"); E("v_add_u32 v4, s36, v11")
    for u in range(1,4): E(f"v_xor_b32 v{vxb[u]}, {32*u}, v4")
    for u in range(4): E(f"v_mov_b32 v{vx[u]}, v{vxb[u]}")
    E(f"v_lshlrev_b32 v{vw}, 4, v2"); E(f"v_add_u32 v{vw}, {cfg.WBASE}, v{vw}")
    E(f"v_lshlrev_b32 v10, 4, v0"); E(f"v_add_u32 v10, {cfg.ABASE}, v10")
    E("s_mov_b32 s38, 0")
    E.waitvm("A")
    E("v_lshlrev_b32 v16, 16, v12"); E("v_and_b32 v17, 0xffff0000, v12"); E("v_lshlrev_b32 v18, 16, v13"); E("v_and_b32 v19, 0xffff0000, v13")
    if not cfg.cvt:
        for i in range(4): E(f"v_mul_f32 v{16+i}, 0x58000000, v{16+i}")
    E("ds_write_b128 v10, v[16:19]")
    E("s_lshl_b32 s36, s28, 6"); E("v_lshl_add_u32 v11, v1, 2, s36"); E(f"v_mul_u32_u24 v11, {OROW}, v11")
    E(f"v_lshl_add_u32 v{vo}, v3, 3, v11")
    if cfg.prio: E(f"s_setprio {cfg.prio}")
    stamp(E,cfg,1)
    if cfg.stamps==2: E("s_mov_b32 s75, 0")
    E("s_waitcnt lgkmcnt(0)")
    E("s_barrier")
    E("s_barrier")
    stamp(E,cfg,2)
    def reads(j,u):
        s=u%2
        xr=lambda b: f"ds_read_b128 v[{XF[s]+4*b}:{XF[s]+4*b+3}], v{vx[u]} offset:{b*4096}"
        wr=lambda jj: f"ds_read_b128 v[{WF[s]+4*jj}:{WF[s]+4*jj+3}], v{vw} offset:{(j%2)*WSLOT+(u*4+jj)*1024}"
        return [xr(0)]+[wr(jj) for jj in range(4)]+[xr(1)]
    def mfma(a,xa,wa,first=False):
        c = "0" if first else f"v[{a}:{a+15}]"
        E(f"v_mfma_f32_32x32x16_bf16 v[{a}:{a+15}], v[{xa}:{xa+3}], v[{wa}:{wa+3}], {c}")
    def mfmas(s,first,inter,per=1,pend=0,bar=99):
        inter=list(inter); issued=0; g=0
        need=[2,3,4,5,6,6,6,6]
        for b in range(2):
            for jj in (range(4) if (b==0 or not cfg.snake) else range(3,-1,-1)):
                if pend and g<5: E(f"s_waitcnt lgkmcnt({pend-need[g]+issued})")
                mfma(acc(b,jj),XF[s]+4*b,WF[s]+4*jj,first)
                for _ in range(per):
                    if inter:
                        x=inter.pop(0); E(x)
                        if x.startswith("ds_read"): issued+=1
                g+=1
                if g==bar:
                    assert not any(x.startswith("ds_read") for x in inter)
                    E("s_waitcnt lgkmcnt(0)"); E("s_barrier")
        for x in inter: E(x)
    def bump():
        return ring_advance(cfg,38)+[f"v_add_u32 v{vx[u]}, s38, v{vxb[u]}" for u in range(4)]
    def pstamp():
        if cfg.stamps==2:
            E("s_sub_u32 s72, s72, s60"); E("v_mov_b32 v251, s72"); E("v_cmp_eq_u32 vcc, s75, v2"); E("s_add_u32 s75, s75, 1"); E("s_nop 0"); E("v_cndmask_b32 v250, v250, v251, vcc")
    def phase(j):
        if cfg.stamps==2: E("s_memtime s[72:73]")
        cw = cfg.cw and cfg.stamps!=2
        if j==0:
            for r in reads(0,0): E(r)
        else: mfmas(1,False,reads(j,0),cfg.rd2)
        if not cw: E("s_waitcnt lgkmcnt(0)")
        pstamp()
        mfmas(0,j==0,reads(j,1),cfg.rd2,6 if cw else 0)
        if not cw: E("s_waitcnt lgkmcnt(0)")
        mfmas(1,False,reads(j,2),cfg.rd2,6 if cw else 0)
        if not cw: E("s_waitcnt lgkmcnt(0)")
        early = cfg.bpos<8 and not cfg.bw
        mfmas(0,False,reads(j,3)+bump(),2,6 if cw else 0, cfg.bpos if early else 99)
        if early: return
        E("s_waitcnt lgkmcnt(0)")
        if cfg.bw: E("s_memtime s[88:89]")
        if j<NST-1: E("s_barrier")
        if cfg.bw:
            E("s_memtime s[90:91]"); E("s_waitcnt lgkmcnt(0)"); E("s_sub_u32 s90, s90, s88")
            E("s_add_u32 s86, s86, s90")
    def store_ops(b):
        ops=[]
        for r in range(16):
            t=T+2*r
            if cfg.off:
                import struct
                h=struct.unpack("<I",struct.pack("<f",float(cfg.off)))[0]
                for jj in range(4): ops.append(f"v_add_f32 v{acc(b,jj)+r}, {h:#x}, v{acc(b,jj)+r}")
            ops.append(f"v_cvt_pk_bf16_f32 v{t}, v{acc(b,0)+r}, v{acc(b,1)+r}")
            ops.append(f"v_cvt_pk_bf16_f32 v{t+1}, v{acc(b,2)+r}, v{acc(b,3)+r}")
            row=32*b+8*(r>>2)+(r&3)
            ops.append(f"s_mov_b32 s36, {row*OROW}")
            ops.append(f"buffer_store_dwordx2 v[{t}:{t+1}], v{vo}, s[24:27], s36 offen {cfg.stpol if (b==0 or cfg.stpol2 is None) else cfg.stpol2}")
        return ops
    phase(0)
    last = NST-2 if cfg.tail else NST
    if cfg.loop:
        n=(last-1)//2
        loopify(E,phase,1,n,2,"L_c_loop")
        for j in range(1+2*n,last): phase(j)
    else:
        for j in range(1,last): phase(j)
    if cfg.tail and cfg.etail:
        E("s_and_b32 s42, s2, 7"); E(f"s_cmp_ge_u32 s42, {cfg.etail}"); E("s_cbranch_scc1 L_tail")
        for j in range(last,NST): phase(j)
        mfmas(1,False,[])
        stamp(E,cfg,3)
        E("s_nop 7"); E("s_nop 7")
        for b in range(2):
            for x in store_ops(b): E(x)
        E("s_branch L_done")
        E("L_tail:")
    if not cfg.tail:
        mfmas(1,False,[])
        stamp(E,cfg,3)
        if cfg.sdelay:
            E("s_memrealtime s[80:81]"); E("s_waitcnt lgkmcnt(0)")
            E("L_sd:"); E("s_memrealtime s[82:83]"); E("s_waitcnt lgkmcnt(0)"); E("s_sub_u32 s82, s82, s80"); E(f"s_cmp_lt_u32 s82, {cfg.sdelay}"); E("s_cbranch_scc1 L_sd")
        E("s_nop 7"); E("s_nop 7")
        for b in range(2):
            for x in store_ops(b): E(x)
    else:
        seq=[(14,0,u) for u in range(4)]+[(14,1,0)]+[(15,0,u) for u in range(4)]+[(14,1,u) for u in range(1,4)]+[(15,1,u) for u in range(4)]
        if cfg.tb==4: seq=[(14,0,u) for u in range(4)]+[(15,0,u) for u in range(4)]+[(14,1,u) for u in range(4)]+[(15,1,u) for u in range(4)]
        if cfg.tb==6: seq=[(14,0,u) for u in range(4)]+[(14,1,0),(14,1,1)]+[(15,0,u) for u in range(4)]+[(14,1,u) for u in range(2,4)]+[(15,1,u) for u in range(4)]
        first15=[i for i,h in enumerate(seq) if h[0]==15][0]
        doneb0=max(i for i,h in enumerate(seq) if h[1]==0)
        SX=(XF[0],196,XF[1]); SW=(WF[0],200,WF[1])
        s15=(15%cfg.NX)*XSLOT
        def hreads(i):
            (st,b,u)=seq[i]; k=i%3
            xa = vx[u] if st==14 else vxb[u]
            R=[f"ds_read_b128 v[{SX[k]}:{SX[k]+3}], v{xa} offset:{b*4096+(0 if st==14 else s15)}"]
            R+=[f"ds_read_b128 v[{SW[k]+4*jj}:{SW[k]+4*jj+3}], v{vw} offset:{(st%2)*WSLOT+(u*4+jj)*1024}" for jj in range(4)]
            return R
        assert s15+4096+0<65536
        if cfg.stamps==2: E("s_memtime s[72:73]")
        mfmas(1,False,hreads(0)+hreads(1),2)
        so=[]
        for i,(st,b,u) in enumerate(seq):
            k=i%3
            if i+2==first15:
                E("s_waitcnt lgkmcnt(5)"); E("s_barrier")
            elif i+1<len(seq): E(f"s_waitcnt lgkmcnt(5)")
            else: E("s_waitcnt lgkmcnt(0)")
            if i==0: pstamp()
            nxt=hreads(i+2) if i+2<len(seq) else []
            if i==doneb0+2: so=store_ops(0)
            left=len(seq)-i
            for jj in range(4):
                mfma(acc(b,jj),SX[k],SW[k]+4*jj)
                for _ in range(2 if jj==0 else 1):
                    if nxt: E(nxt.pop(0))
                if so:
                    slots=(left*4-jj)
                    n=-(-len(so)//slots)
                    for _ in range(n):
                        if so: E(so.pop(0))
            assert not nxt
        assert not so
        stamp(E,cfg,3)
        E("s_nop 7"); E("s_nop 7")
        for x in store_ops(1): E(x)
        if cfg.etail: E("L_done:")
    if cfg.stamps or cfg.enc: stamp(E,cfg,4); E("s_waitcnt vmcnt(0)")
    finish(E,cfg,True)

def ablate(L,cfg):
    R=[]
    if 'H' in cfg.abl or 'G' in cfg.abl:
        idx=[i for i,x in enumerate(L) if x.startswith("buffer_store") and "s[24:27]" in x]
        drop=set(idx[-8:] if 'H' in cfg.abl else idx[-16:])
        L=[x for i,x in enumerate(L) if i not in drop]
    for x in L:
        if 'V' in cfg.abl and (x.startswith("v_fma_f32") or (x.startswith("v_mul_f32") and "0x" not in x and int(x.split()[1][1:-1])>=64) or (x.startswith("v_cvt_pk") and int(x.split()[1][1:-1])<64)): continue
        if 'X' in cfg.abl and x.endswith(" lds"): continue
        if 'W' in cfg.abl and x.startswith("buffer_load") and "s[20:23]" in x: continue
        if 'M' in cfg.abl and x.startswith("v_mfma"): continue
        if 'D' in cfg.abl and x.startswith("ds_write") and "v10," not in x: continue
        if 'R' in cfg.abl and x.startswith("ds_read") and int(x.split()[1][2:].split(":")[0])>=128: continue
        if 'S' in cfg.abl and x.startswith("buffer_store") and "s[24:27]" in x: continue
        R.append(x)
    return R
def generate(cfg):
    out=[header(cfg)]
    E=Emit(); common_prologue(E,cfg); out+=E.L
    E=Emit(); producer(E,cfg); out+=E.L
    if cfg.helper:
        E=Emit(); helper(E,cfg); out+=E.L
    E=Emit(); consumer(E,cfg); out+=E.L
    out.append("L_exit:"); out.append("s_endpgm"); out.append("L_codeend:")
    return "\n".join(ablate(out,cfg))+footer(cfg)

if __name__=="__main__":
    kw={}
    for a in sys.argv[2:]:
        k,v=a.split("="); kw[k]=v.replace("_"," ") if k in ("stpol","abl","wpos","enc","gv","stpol2","off","rho") else int(v)
    open(sys.argv[1],"w").write(generate(Cfg(**kw)))
```
